```python
import torch

def _softmax(x, axis=-1):
    return torch.softmax(x, dim=axis)
def _gelu(x):
    return torch.nn.functional.gelu(x, approximate="tanh")
def _silu(x):
    return torch.nn.functional.silu(x)
def _sigmoid(x):
    return torch.sigmoid(x)
def _layernorm(x, axis=-1, eps=1e-5):
    m = x.mean(dim=axis, keepdim=True)
    v = x.var(dim=axis, keepdim=True, unbiased=False)
    return (x - m) / torch.sqrt(v + eps)
def _scatter_add(tgt, idx, src, axis=0):
    return tgt.clone().index_add_(axis, idx, src)
def _segment_sum(src, seg, n):
    out = torch.zeros((n,) + src.shape[1:], dtype=src.dtype)
    return out.index_add_(0, seg, src)
def _pad(x, pw):
    flat = tuple(v for pair in reversed(pw) for v in pair)
    return torch.nn.functional.pad(x, flat)

kernel_name = 'gated_mix__linear_attn_block__dense_activation_gelu__prompt'

def setup_inputs():

    _w = (lambda a: (lambda t: t.to(torch.bfloat16) if t.is_floating_point() else t)(torch.as_tensor(a)))
    def _A_setup():
        B, S, D = 1, 2048, 512
        return {
            "x": _w((lambda *s: torch.randn(*s, dtype=torch.bfloat16) * 0.05)(B, S, D)),
            "wqkv": _w((lambda *s: torch.randn(*s, dtype=torch.bfloat16) * 0.8)(D, 3 * D)),
            "wo": _w((lambda *s: torch.randn(*s, dtype=torch.bfloat16) * 0.05)(D, D)),
        }
    _A_in = _A_setup()

    def _B_setup():
        B, S, D, F = 1, 2048, 512, 1376
        return {
            "x": _w((lambda *s: torch.randn(*s, dtype=torch.bfloat16) * 0.05)(B, S, D)),
            "w1": _w((lambda *s: torch.randn(*s, dtype=torch.bfloat16) * 3.2)(D, F) * (D ** -0.5)),
            "b1": _w((lambda *s: torch.randn(*s, dtype=torch.bfloat16) * 3.2)(F) * 0.01),
            "w2": _w((lambda *s: torch.randn(*s, dtype=torch.bfloat16) * 0.4)(F, D) * (F ** -0.5)),
            "b2": _w((lambda *s: torch.randn(*s, dtype=torch.bfloat16) * 0.8)(D) * 0.01),
        }
    _B_in = _B_setup()

    return {
        "A_x": _A_in["x"],
        "A_wqkv": _A_in["wqkv"],
        "A_wo": _A_in["wo"],
        "B_x": _B_in["x"],
        "B_w1": _B_in["w1"],
        "B_b1": _B_in["b1"],
        "B_w2": _B_in["w2"],
        "B_b2": _B_in["b2"],
        "gate_w": _w((lambda *s: torch.randn(*s, dtype=torch.bfloat16) * 0.05)(512) * 16.0),
    }

def reference(A_x, A_wqkv, A_wo, B_x, B_w1, B_b1, B_w2, B_b2, gate_w):
    def _A_ref(x, wqkv, wo):
        B, S, D = x.shape
        H = 32; Dh = D // H
        qkv = (lambda x, *d: x.permute(*d))((x @ wqkv).reshape(B, S, 3, H, Dh), 2, 0, 3, 1, 4)
        q, k, v = qkv[0], qkv[1], qkv[2]
        phi = lambda t: torch.where(t > 0, t + 1, torch.exp(t)) + 1e-6
        pq, pk = phi(q), phi(k)
        kv = torch.einsum("bhsd,bhse->bhde", pk, v)
        z = torch.einsum("bhsd->bhd", pk)
        num = torch.einsum("bhqd,bhde->bhqe", pq, kv)
        den = torch.einsum("bhqd,bhd->bhq", pq, z)[..., None] + 1e-6
        o = num / den
        return (lambda x, *d: x.permute(*d))(o, 0, 2, 1, 3).reshape(B, S, D) @ wo

    def _B_ref(x, w1, b1, w2, b2):
        h = torch.einsum("bsd,df->bsf", x, w1) + b1
        h = _gelu(h)
        return torch.einsum("bsf,fd->bsd", h, w2) + b2

    x = A_x
    g = _sigmoid((x * gate_w).sum(-1, keepdims=True))
    a = _A_ref(x, A_wqkv, A_wo)
    b = _B_ref(x, B_w1, B_b1, B_w2, B_b2)
    return g * a + (1 - g) * b
```

```python
import re

_REG = re.compile(r'^(-?)(\|?)([vas])(\d+)(\|?)$')
_RNG = re.compile(r'^(-?)([vas])\[(\d+):(\d+)\]$')
TRANS = ('v_exp_f32', 'v_log_f32', 'v_rcp_f32', 'v_rsq_f32', 'v_sqrt_f32', 'v_sin_f32', 'v_cos_f32')


def regs_of(op):
    op = op.strip()
    if op.startswith('abs(') and op.endswith(')'):
        op = op[4:-1]
    if op.startswith('-abs(') and op.endswith(')'):
        op = op[5:-1]
    m = _REG.match(op)
    if m:
        return [(m.group(3), int(m.group(4)))]
    m = _RNG.match(op)
    if m:
        return [(m.group(2), i) for i in range(int(m.group(3)), int(m.group(4)) + 1)]
    if op == 'vcc':
        return [('s', 'vcc')]
    if op == 'exec':
        return [('s', 'exec')]
    if op == 'm0':
        return [('s', 'm0')]
    return []


def split_ops(s):
    out, depth, cur = [], 0, ''
    for ch in s:
        if ch in '[(':
            depth += 1
        if ch in '])':
            depth -= 1
        if ch == ',' and depth == 0:
            out.append(cur.strip())
            cur = ''
        else:
            cur += ch
    if cur.strip():
        out.append(cur.strip())
    return out


class Asm:
    def __init__(self):
        self.lines = []
        self.pos = 0
        self.lastw = {}
        self.mfma_c_read = {}
        self.store_read = {}
        self.vm = []
        self.lg = []
        self.ninst = 0
        self.nnop = 0
        self.stats = {}
        self.lgmax = 15

    def raw(self, text):
        self.lines.append(text)

    def comment(self, text):
        self.lines.append('    ; ' + text)

    def label(self, name):
        self.lines.append(name + ':')

    def _put(self, text, states=1):
        self.lines.append('    ' + text)
        self.pos += states
        self.ninst += 1

    def nop(self, n):
        while n > 0:
            k = min(n, 16)
            self._put('s_nop %d' % (k - 1), k)
            self.nnop += k
            n -= k

    def _wait(self, vm=None, lg=None):
        parts = []
        if vm is not None and vm < len(self.vm):
            vmn = min(vm, 63)
            parts.append('vmcnt(%d)' % vmn)
            self.vm = self.vm[len(self.vm) - vmn:] if vmn else []
        if lg is not None and lg < len(self.lg):
            lgn = min(lg, 15)
            parts.append('lgkmcnt(%d)' % lgn)
            self.lg = self.lg[len(self.lg) - lgn:] if lgn else []
        if parts:
            self._put('s_waitcnt ' + ' '.join(parts))

    @staticmethod
    def _need(fifo, pred):
        last = None
        for i, e in enumerate(fifo):
            if pred(e):
                last = i
        return None if last is None else len(fifo) - 1 - last

    def wait_vm(self, *tags):
        self._wait(vm=self._need(self.vm, lambda e: e['tag'] in tags))

    def wait_lg(self, *tags):
        self._wait(lg=self._need(self.lg, lambda e: e['tag'] in tags))

    def wait_both(self, vmtags=(), lgtags=()):
        self._wait(vm=self._need(self.vm, lambda e: e['tag'] in vmtags),
                   lg=self._need(self.lg, lambda e: e['tag'] in lgtags))

    def wait_all(self, vm=True, lg=True):
        self._wait(vm=0 if vm else None, lg=0 if lg else None)

    def force_wait(self, text):
        self._put('s_waitcnt ' + text)
        m = re.search(r'vmcnt\((\d+)\)', text)
        if m:
            n = int(m.group(1))
            self.vm = self.vm[len(self.vm) - n:] if 0 < n < len(self.vm) else ([] if n == 0 else self.vm)
        m = re.search(r'lgkmcnt\((\d+)\)', text)
        if m:
            n = int(m.group(1))
            self.lg = self.lg[len(self.lg) - n:] if 0 < n < len(self.lg) else ([] if n == 0 else self.lg)

    def pending_vm(self, tag):
        return any(e['tag'] == tag for e in self.vm)

    def __call__(self, text, tag=None, count=True):
        text = text.strip()
        sp = text.split(None, 1)
        mn = sp[0]
        rest = sp[1] if len(sp) > 1 else ''
        ops = split_ops(rest)
        mods = ''
        if ops:
            lp = ops[-1].split(None, 1)
            if len(lp) > 1:
                ops[-1] = lp[0]
                mods = lp[1]
        R = [regs_of(o) for o in ops]
        reads, writes = [], []
        kind = 'other'
        srcA = srcB = srcC = []
        if mn.startswith('v_mfma'):
            kind = 'mfma'
            writes = R[0]
            srcA, srcB, srcC = R[1], R[2], R[3]
            reads = srcA + srcB + srcC
        elif mn.startswith('v_cmp'):
            kind = 'valu'
            writes = R[0]
            reads = sum(R[1:], [])
        elif mn.startswith('v_permlane'):
            kind = 'valu'
            writes = R[0] + R[1]
            reads = R[0] + R[1]
        elif mn.startswith('v_'):
            kind = 'trans' if mn.split('_e')[0] in TRANS or mn in TRANS else 'valu'
            writes = R[0]
            reads = sum(R[1:], [])
            if mn.startswith(('v_fmac', 'v_dot2c', 'v_pk_fmac', 'v_writelane')):
                reads = reads + R[0]
        elif mn.startswith('ds_read'):
            kind = 'ds'
            writes = R[0]
            reads = R[1]
        elif mn.startswith('ds_write') or mn.startswith('ds_add'):
            kind = 'ds'
            reads = sum(R, [])
        elif mn.startswith('buffer_load'):
            kind = 'vmem'
            if re.search(r'\blds\b', mods):
                reads = sum(R, []) + [('s', 'm0')]
            else:
                writes = R[0]
                reads = sum(R[1:], [])
                if 'd16' in mn:
                    reads = reads + R[0]
        elif mn.startswith('buffer_store') or mn.startswith('buffer_atomic'):
            kind = 'vmem'
            reads = sum(R, [])
            if mn.startswith('buffer_atomic') and re.search(r'\bsc0\b', mods):
                writes = R[0]
        elif mn.startswith('s_'):
            kind = 'salu'
            if mn.startswith(('s_cmp', 's_cbranch', 's_branch', 's_barrier', 's_endpgm', 's_sleep', 's_setprio', 's_nop', 's_waitcnt')):
                reads = sum(R, [])
            else:
                writes = R[0] if R else []
                reads = sum(R[1:], [])
                if 'saveexec' in mn:
                    writes = writes + [('s', 'exec')]
        else:
            raise ValueError('unknown instruction ' + text)

        touched = set(reads) | set(writes)
        nv = self._need(self.vm, lambda e: e['dst'] & touched)
        nl = self._need(self.lg, lambda e: e['dst'] & touched)
        if nv is not None or nl is not None:
            self._wait(vm=nv, lg=nl)

        need = 0

        def req(ppos, ws):
            nonlocal need
            d = self.pos - ppos - 1
            if ws - d > need:
                need = ws - d

        isv = kind in ('valu', 'trans')
        for r in reads:
            w = self.lastw.get(r)
            if not w:
                continue
            ppos, pk, extra = w
            if pk == 'mfma':
                passes, dset = extra
                if kind == 'mfma':
                    if r in srcC and r not in srcA and r not in srcB:
                        if tuple(srcC) == dset:
                            req(ppos, 0 if passes >= 4 else 2)
                        else:
                            req(ppos, {2: 4, 4: 6, 8: 10, 16: 18}[passes])
                    else:
                        req(ppos, {2: 5, 4: 8, 8: 12, 16: 20}[passes])
                else:
                    req(ppos, {2: 5, 4: 8, 8: 12, 16: 20}[passes])
            elif pk in ('valu', 'trans'):
                if r[0] in 'va':
                    if kind == 'mfma':
                        req(ppos, 2)
                    if mn.startswith('v_permlane'):
                        req(ppos, 2)
                    if mn.startswith(('v_readfirstlane', 'v_readlane')):
                        req(ppos, 1)
                    if pk == 'trans' and kind in ('valu',):
                        req(ppos, 1)
                    if pk == 'trans' and kind in ('vmem', 'ds'):
                        req(ppos, 1)
                else:
                    if isv:
                        req(ppos, 2)
                    if kind == 'vmem':
                        req(ppos, 5)
                    if kind == 'salu':
                        req(ppos, 1)
            elif pk == 'salu':
                if r == ('s', 'm0') and kind == 'vmem':
                    req(ppos, 1)
        for r in writes:
            w = self.lastw.get(r)
            if w and w[1] == 'mfma' and kind != 'mfma':
                req(w[0], {2: 5, 4: 8, 8: 12, 16: 20}[w[2][0]])
            if w and w[1] == 'mfma' and kind == 'mfma' and tuple(writes) != w[2][1]:
                req(w[0], {2: 5, 4: 8, 8: 12, 16: 20}[w[2][0]])
            if w and w[1] == 'mfma' and kind == 'mfma' and tuple(writes) == w[2][1] and tuple(srcC) != w[2][1]:
                req(w[0], {2: 5, 4: 8, 8: 12, 16: 20}[w[2][0]])
            if r in self.mfma_c_read and kind != 'mfma':
                req(self.mfma_c_read[r][0], {2: 1, 4: 3, 8: 7, 16: 15}[self.mfma_c_read[r][1]])
            if r in self.store_read:
                req(self.store_read[r], 2)
        if need > 0:
            self.nop(need)

        p = self.pos
        self._put(text)
        self.stats[kind] = self.stats.get(kind, 0) + 1
        if kind == 'mfma':
            passes = 8 if '32x32' in mn else 4
            for r in writes:
                self.lastw[r] = (p, 'mfma', (passes, tuple(writes)))
            for r in srcC:
                self.mfma_c_read[r] = (p, passes)
        elif kind in ('valu', 'trans', 'salu'):
            for r in writes:
                self.lastw[r] = (p, kind, None)
        elif kind == 'vmem':
            for r in writes:
                self.lastw.pop(r, None)
            if count:
                self.vm.append(dict(dst=set(writes), tag=tag))
            if mn.startswith(('buffer_store_dwordx4', 'buffer_store_dwordx3')):
                for r in R[0]:
                    self.store_read[r] = p
            assert len(self.vm) <= 63, 'too many vmem ops outstanding'
        elif kind == 'ds':
            for r in writes:
                self.lastw.pop(r, None)
            self.lg.append(dict(dst=set(writes), tag=tag))
            if len(self.lg) > 15:
                raise AssertionError('too many lds ops outstanding: ' + text)

    def ds(self, text, tag=None):
        if len(self.lg) >= self.lgmax:
            self._wait(lg=self.lgmax - 1)
        self(text, tag=tag)

    def text(self):
        return '\n'.join(self.lines) + '\n'

    def fork(self):
        import copy
        o = Asm()
        o.lines = self.lines
        o.pos = self.pos
        o.lastw = dict(self.lastw)
        o.mfma_c_read = dict(self.mfma_c_read)
        o.store_read = dict(self.store_read)
        o.vm = copy.deepcopy(self.vm)
        o.lg = copy.deepcopy(self.lg)
        o.lgmax = self.lgmax
        return o
```

```python
import sys, os, struct, argparse
sys.path.insert(0, os.path.dirname(os.path.abspath(__file__)))
from asmlib import Asm

NAME = "gated_mix__linear_attn_block__dense_activation_gelu__prompt"

UNIT = 131072
KVACC = 0x780000
AFLAG = 0x790000
KFLAG = 0x791000
GOFF = 0x792000
STAMP = 0x7C0000
WS_SIZE = 0x800000
OOB = 0x40000000

F_START = [0, 6, 11, 17, 22, 28, 33, 38]
F_SIZE = [6, 5, 6, 5, 6, 5, 5, 5]
W_BASE = 65536
NSLOT = 12


def f2u(x):
    return struct.unpack('<I', struct.pack('<f', x))[0]


LOG2E = 1.4426950408889634
GC0 = -2.0 * 0.7978845608028654 * LOG2E
GC1 = GC0 * 0.044715

S_X, S_W, S_WS, S_W2, S_WO, S_OUT, S_DBG, S_M1, S_M2 = 4, 8, 12, 16, 20, 24, 28, 32, 36
P_X, P_WQKV, P_WO, P_W1, P_B1, P_W2, P_B2, P_GATE, P_OUT, P_DBG, P_WS = 40, 42, 44, 48, 50, 52, 54, 56, 58, 60, 62
sWV, sRB, sCG, sGRP, sRT, sCT, sXB, sWQ = 64, 65, 66, 67, 68, 69, 70, 71
sT0, sT1, sT2, sT3 = 72, 73, 74, 75
sUST = 76
sUA, sUB, sUA5, sUQ = 77, 78, 79, 80
sAA, sAB, sAA5, sAQ = 81, 82, 83, 84
sKV = 85
sSPIN = 86
sC1, sC0, sLOG, sONE = 88, 90, 92, 94
sINIT = 96
sSTAMP0 = 40


def srd(n):
    return 's[%d:%d]' % (n, n + 3)


class VAlloc:
    def __init__(self, start=2):
        self.n = start

    def get(self, cnt=1, align=1):
        self.n = (self.n + align - 1) // align * align
        r = self.n
        self.n += cnt
        assert self.n <= 256, 'out of VGPRs'
        return r


def vr(b, n):
    return 'v[%d:%d]' % (b, b + n - 1)


def ar(b, n):
    return 'a[%d:%d]' % (b, b + n - 1)


class Gen:
    def __init__(self, opt):
        self.o = opt
        self.a = Asm()
        self.lbl = 0
        va = VAlloc(2)
        g = va.get
        self.vL16 = g()
        self.vUd = g(2)
        self.vUr = g(6)
        self.vActLd = g(2)
        self.vFlagW = g()
        self.vFlagR = g()
        self.vPoll2 = g()
        self.vPoll = g(2, 2)
        self.vTmp = g(4, 2)
        self.vSel = g(6, 2)
        self.vThr = g()
        self.vG = g(2)
        self.vGm = g(2)
        self.vB2 = g(4, 2)
        self.acc = g(64, 4)
        self.pool = va.n
        self.npool = (256 - self.pool) // 16
        self.wf = g(24, 4)
        self.kvd = g(32, 4)
        self.vmod = g(16, 4)
        self.pk2 = g(16, 4)
        self.vBias = g(12, 2)
        self.vXd = g(4)
        self.vXr = g(4)
        self.vWd = g(2)
        self.vWr = g(4)
        self.vMisc = g(2)
        self.vC0 = g(2, 2)
        self.vActSt = g()
        self.et = g(12, 4)
        self.pk = g(16, 4)
        self.vtop = va.n

    def newlabel(self, s):
        self.lbl += 1
        return 'L%s_%d' % (s, self.lbl)

    def stamp(self, a, name):
        if not self.o.diag:
            return
        if not hasattr(a, 'stampn'):
            a.stampn = []
        i = len(a.stampn)
        a.stampn.append(name)
        assert i < 12
        a._put('s_memtime s[%d:%d]' % (40 + 2 * i, 41 + 2 * i))

    def prologue(self):
        a, o = self.a, self.o
        a.label(NAME + '_kernel')
        a('s_cmp_ge_u32 s2, 256')
        a('s_cbranch_scc1 L_end')
        a._put('s_load_dwordx16 s[40:55], s[0:1], 0')
        a._put('s_load_dwordx8 s[56:63], s[0:1], 64')
        if o.diag:
            a._put('s_memtime s[100:101]')
        a('v_lshrrev_b32 v1, 6, v0')
        a('s_and_b32 s%d, s2, 7' % sT0)
        a('v_readfirstlane_b32 s%d, v1' % sWV)
        a('s_lshr_b32 s%d, s2, 3' % sT1)
        a('v_and_b32 v1, 63, v0')
        a('s_and_b32 s%d, s%d, 1' % (sRB, sT0))
        a('s_lshl_b32 s%d, s%d, 3' % (sRB, sRB))
        a('s_and_b32 s%d, s%d, 7' % (sT2, sT1))
        a('s_add_u32 s%d, s%d, s%d' % (sRB, sRB, sT2))
        a('s_lshr_b32 s%d, s%d, 1' % (sCG, sT0))
        a('s_lshl_b32 s%d, s%d, 2' % (sCG, sCG))
        a('s_lshr_b32 s%d, s%d, 3' % (sT2, sT1))
        a('s_add_u32 s%d, s%d, s%d' % (sCG, sCG, sT2))
        a('s_and_b32 s%d, s%d, 7' % (sGRP, sCG))
        if o.p2map == 0:
            a('s_lshl_b32 s%d, s%d, 2' % (sRT, sT0))
            a('s_and_b32 s%d, s%d, 3' % (sT2, sT1))
            a('s_add_u32 s%d, s%d, s%d' % (sRT, sRT, sT2))
            a('s_lshr_b32 s%d, s%d, 2' % (sCT, sT1))
        else:
            a('s_lshr_b32 s%d, s%d, 1' % (sRT, sT0))
            a('s_lshl_b32 s%d, s%d, 3' % (sRT, sRT))
            a('s_and_b32 s%d, s%d, 7' % (sT2, sT1))
            a('s_add_u32 s%d, s%d, s%d' % (sRT, sRT, sT2))
            a('s_and_b32 s%d, s%d, 1' % (sCT, sT0))
            a('s_lshl_b32 s%d, s%d, 2' % (sCT, sCT))
            a('s_lshr_b32 s%d, s%d, 3' % (sT2, sT1))
            a('s_add_u32 s%d, s%d, s%d' % (sCT, sCT, sT2))
        a('s_lshl_b32 s%d, s%d, 14' % (sXB, sWV))
        a('s_lshl_b32 s%d, s%d, 11' % (sWQ, sWV))
        a('s_add_u32 s%d, s%d, %d' % (sWQ, sWQ, W_BASE))
        t0, t1, t2, t3 = [self.vTmp + i for i in range(4)]
        a('v_lshlrev_b32 v%d, 4, v1' % self.vL16)
        a('v_lshrrev_b32 v%d, 3, v1' % t0)
        a('v_and_b32 v%d, 7, v1' % t1)
        a('v_lshrrev_b32 v%d, 4, v1' % t2)
        a('v_xor_b32 v%d, v%d, v%d' % (t3, t1, t2))
        a('v_lshlrev_b32 v%d, 4, v%d' % (t3, t3))
        a('v_lshl_add_u32 v%d, v%d, 10, v%d' % (t3, t0, t3))
        a('s_lshl_b32 s%d, s%d, 2' % (sT2, sRB))
        a('s_add_u32 s%d, s%d, s%d' % (sT2, sT2, sWV))
        a('s_lshl_b32 s%d, s%d, 15' % (sT3, sT2))
        a('v_add_u32 v%d, s%d, v%d' % (self.vXd, sT3, t3))
        a('v_xor_b32 v%d, 64, v%d' % (self.vXd + 1, self.vXd))
        a('v_add_u32 v%d, %d, v%d' % (self.vXd + 2, 14336, self.vXd))
        a('v_add_u32 v%d, %d, v%d' % (self.vXd + 3, 21504, self.vXd + 1))
        a('v_add_u32 v%d, %d, v%d' % (self.vXd + 1, 7168, self.vXd + 1))
        a('v_and_b32 v%d, 1, v%d' % (t2, t2))
        a('v_lshlrev_b32 v%d, 2, v%d' % (t2, t2))
        a('v_xor_b32 v%d, v%d, v%d' % (t1, t1, t2))
        a('v_lshlrev_b32 v%d, 4, v%d' % (t1, t1))
        a('s_lshl_b32 s%d, s%d, 11' % (sT3, sT2))
        a('v_add_u32 v%d, s%d, v%d' % (self.vActSt, sT3, self.vL16))
        a('s_cmp_lt_u32 s%d, 8' % sCG)
        a._put('s_waitcnt lgkmcnt(0)')
        self.mksrd(S_X, P_X, 2048 * 1024)
        a('s_cbranch_scc1 L_varA')
        a('s_and_b32 s%d, s%d, 1' % (sT3, sGRP))
        a('s_cmp_eq_u32 s%d, 1' % sT3)
        a('s_cbranch_scc1 L_varG')
        a('s_cmp_eq_u32 s%d, 6' % sGRP)
        a('s_cbranch_scc1 L_varG')

    def mksrd(self, d, p, size, a=None):
        a = a or self.a
        a('s_mov_b32 s%d, s%d' % (d, p))
        a('s_mov_b32 s%d, s%d' % (d + 1, p + 1))
        a('s_mov_b32 s%d, 0x%x' % (d + 2, size))
        a('s_mov_b32 s%d, 0x20000' % (d + 3))

    def dma_x(self, a, c):
        a('s_add_u32 m0, s%d, %d' % (sXB, (c & 3) * 4096))
        if c:
            a('s_movk_i32 s%d, %d' % (sT0, c * 128))
        so = 's%d' % sT0 if c else '0'
        for i in range(4):
            a('buffer_load_dwordx4 v%d, %s, %s offen offset:%d lds' % (self.vXd + i, srd(S_X), so, 1024 * i), tag=('x', c))

    def dma_w(self, a, n):
        p, c = divmod(n, 8)
        a('s_add_u32 m0, s%d, %d' % (sWQ, (n % NSLOT) * 8192))
        off = 64 * c * self.stride + self.passcol[p]
        a('s_mov_b32 s%d, %d' % (sT1, off))
        for i in range(2):
            a('buffer_load_dwordx4 v%d, %s, s%d offen offset:%d lds' % (self.vWd + i, srd(S_W), sT1, 1024 * i), tag=('w', n))

    USLOT = [('A', 0), ('A', 1), ('B', 0), ('B', 1), ('A', 2), ('A', 3), ('B', 2), ('B', 3),
             ('A', 4), ('A5', 0), ('B', 4), ('Q', 0), ('Q', 1), ('Q', 2), ('Q', 3)]

    def dma_u(self, a, h, slot):
        m, g = divmod(h, 2)
        grp, idx = self.USLOT[m]
        sreg = {'A': sUA, 'B': sUB, 'A5': sUA5, 'Q': sUQ}[grp]
        fam, off = slot
        base = sXB if fam == 0 else sWQ
        a('s_add_u32 m0, s%d, %d' % (base, off + (49152 if fam == 2 else 0)))
        a('s_add_u32 s%d, s%d, %d' % (sT1, sreg, (idx * 32 + g * 16) * 1024))
        rs = S_WO if grp == 'Q' else S_W2
        for i in range(2):
            a('buffer_load_dwordx4 v%d, %s, s%d offen offset:%d lds' % (self.vUd + i, srd(rs), sT1, 1024 * i), tag=('u', h))

    def ufrag(self, m, g, t):
        return 16 * m + 8 * g + 4 * t

    def read_u(self, a, h, slot):
        m, g = divmod(h, 2)
        fam, off = slot
        items = []
        for t in range(2):
            for rd in range(2):
                d = self.ufrag(m, g, t) + 2 * rd
                items.append('ds_read_b64_tr_b16 %s, v%d offset:%d' % (ar(d, 2), self.vUr + fam * 2 + t, off + rd * 1024))
        return items

    def gelu_ops(self, accb, pkb, packed):
        et = self.et
        ops = []
        if packed:
            for q in range(0, 16, 4):
                xs = [accb + q, accb + q + 2]
                ts = [et, et + 2]
                for x, t in zip(xs, ts):
                    ops.append('v_pk_mul_f32 %s, %s, %s' % (vr(t, 2), vr(x, 2), vr(x, 2)))
                for x, t in zip(xs, ts):
                    ops.append('v_pk_fma_f32 %s, %s, s[%d:%d], %s' % (vr(t, 2), vr(t, 2), sC1, sC1 + 1, vr(self.vC0, 2)))
                for x, t in zip(xs, ts):
                    ops.append('v_pk_mul_f32 %s, %s, %s' % (vr(t, 2), vr(t, 2), vr(x, 2)))
                for i in range(4):
                    ops.append('v_exp_f32 v%d, v%d' % (et + i, et + i))
                for t in ts:
                    ops.append('v_pk_add_f32 %s, %s, s[%d:%d]' % (vr(t, 2), vr(t, 2), sONE, sONE + 1))
                for i in range(4):
                    ops.append('v_rcp_f32 v%d, v%d' % (et + i, et + i))
                for x, t in zip(xs, ts):
                    ops.append('v_pk_mul_f32 %s, %s, %s' % (vr(t, 2), vr(t, 2), vr(x, 2)))
                for j, t in enumerate(ts):
                    ops.append('v_cvt_pk_bf16_f32 v%d, v%d, v%d' % (pkb + q // 2 + j, t, t + 1))
        else:
            for q in range(0, 16, 4):
                R = range(4)
                ops += ['v_mul_f32 v%d, v%d, v%d' % (et + i, accb + q + i, accb + q + i) for i in R]
                ops += ['v_fma_f32 v%d, v%d, s%d, v%d' % (et + i, et + i, sC1, self.vC0) for i in R]
                ops += ['v_mul_f32 v%d, v%d, v%d' % (et + i, et + i, accb + q + i) for i in R]
                ops += ['v_exp_f32 v%d, v%d' % (et + i, et + i) for i in R]
                ops += ['v_add_f32 v%d, 1.0, v%d' % (et + i, et + i) for i in R]
                ops += ['v_rcp_f32 v%d, v%d' % (et + i, et + i) for i in R]
                ops += ['v_mul_f32 v%d, v%d, v%d' % (et + i, et + i, accb + q + i) for i in R]
                ops += ['v_cvt_pk_bf16_f32 v%d, v%d, v%d' % (pkb + q // 2 + j, et + 2 * j, et + 2 * j + 1) for j in range(2)]
        return ops

    def phi_ops(self, accb, pkb):
        et = self.et
        ops = []
        for q in range(0, 16, 4):
            R = range(4)
            ops += ['v_mul_f32 v%d, s%d, v%d' % (et + i, sLOG, accb + q + i) for i in R]
            ops += ['v_exp_f32 v%d, v%d clamp' % (et + i, et + i) for i in R]
            ops += ['v_max_f32 v%d, 0x%x, v%d' % (et + 4 + i, f2u(1e-6), accb + q + i) for i in R]
            ops += ['v_add_f32 v%d, v%d, v%d' % (et + i, et + i, et + 4 + i) for i in R]
            ops += ['v_cvt_pk_bf16_f32 v%d, v%d, v%d' % (pkb + q // 2 + j, et + 2 * j, et + 2 * j + 1) for j in range(2)]
        return ops

    def pack_ops(self, accb, pkb):
        return ['v_cvt_pk_bf16_f32 v%d, v%d, v%d' % (pkb + j, accb + 2 * j, accb + 2 * j + 1) for j in range(8)]

    def act_store_ops(self, pkb, unit_rel, tag):
        return [[('s_add_u32 s%d, s%d, %d' % (sT2, sUST, unit_rel * UNIT), None),
                 ('buffer_store_dwordx4 %s, v%d, %s, s%d offen sc1' % (vr(pkb, 4), self.vActSt, srd(S_WS), sT2), tag),
                 ('buffer_store_dwordx4 %s, v%d, %s, s%d offen offset:1024 sc1' % (vr(pkb + 4, 4), self.vActSt, srd(S_WS), sT2), tag)]]

    def check(self, a, load, cmps, extra_slow=None):
        ok = self.newlabel('ok')
        rt = self.newlabel('retry')
        cmps(a)
        a('s_cmp_eq_u64 vcc, -1')
        a('s_cbranch_scc1 ' + ok)
        s = a.fork()
        s('s_mov_b32 s%d, %d' % (sSPIN, self.o.spin))
        if extra_slow:
            s.force_wait('vmcnt(0)')
            extra_slow(s)
        s.label(rt)
        s('s_sleep 1')
        load(s)
        s.force_wait('vmcnt(0)')
        cmps(s)
        s('s_cmp_eq_u64 vcc, -1')
        s('s_cbranch_scc1 ' + ok)
        s('s_sub_u32 s%d, s%d, 1' % (sSPIN, sSPIN))
        s('s_cmp_lg_u32 s%d, 0' % sSPIN)
        s('s_cbranch_scc1 ' + rt)
        a.label(ok)

    def variant(self, var):
        o = self.o
        a = self.a.fork()
        a.label('L_var' + var)
        a.lgmax = 12 if o.diag else 15
        isA, isG = var == 'A', var == 'G'
        self.stride = 3072 if isA else 2752
        self.passcol = [1024, 2048, 0] if isA else [0, 128, 256]
        t0, t1, t2, t3 = [self.vTmp + i for i in range(4)]
        self.dma_x(a, 0)
        if isA:
            self.mksrd(S_W, P_WQKV, 512 * 3072, a)
            a('s_lshl_b32 s%d, s%d, 7' % (sT2, sGRP))
            a('s_lshl_b32 s%d, s%d, 18' % (sUST, sGRP))
        else:
            self.mksrd(S_W, P_W1, 512 * 2752, a)
            a('s_mul_i32 s%d, s%d, 5' % (sT2, sGRP))
            a('s_add_u32 s%d, s%d, 1' % (sT3, sGRP))
            a('s_lshr_b32 s%d, s%d, 1' % (sT3, sT3))
            a('s_min_u32 s%d, s%d, 3' % (sT3, sT3))
            a('s_add_u32 s%d, s%d, s%d' % (sT2, sT2, sT3))
            a('s_add_u32 s%d, s%d, 16' % (sUST, sT2))
            a('s_lshl_b32 s%d, s%d, 17' % (sUST, sUST))
            a('s_lshl_b32 s%d, s%d, 6' % (sT2, sT2))
        a('s_mul_i32 s%d, s%d, %d' % (sT3, sWV, 16 * self.stride))
        a('s_add_u32 s%d, s%d, s%d' % (sT3, sT3, sT2))
        a('v_mul_u32_u24 v%d, %d, v%d' % (self.vWd, self.stride, t0))
        a('v_add3_u32 v%d, v%d, v%d, s%d' % (self.vWd, self.vWd, t1, sT3))
        a('v_add_u32 v%d, %d, v%d' % (self.vWd + 1, 8 * self.stride - 1024, self.vWd))
        self.dma_w(a, 0)
        for c in range(1, 4):
            self.dma_x(a, c)
            self.dma_w(a, c)
        if not isA:
            self.mksrd(S_M1, P_B1, 1376 * 2, a)
            a('v_and_b32 v%d, 31, v1' % t2)
            a('v_lshlrev_b32 v%d, 1, v%d' % (t2, t2))
            for u in range(5 if isG else 6):
                r = self.vBias + (u // 2) * 4 + (u % 2) * 2
                a('buffer_load_ushort v%d, v%d, %s, s%d offen offset:%d' % (r, t2, srd(S_M1), sT2, 64 * u), tag='bias')
        self.mksrd(S_M1, P_B2, 1024, a)
        self.mksrd(S_WS, P_WS, WS_SIZE, a)
        self.mksrd(S_DBG, P_DBG, 256, a)
        a('s_lshl_b32 s%d, s%d, 7' % (sT3, sCT))
        a('v_lshl_add_u32 v%d, v%d, 10, v%d' % (self.vUd, t0, t1))
        a('v_add_u32 v%d, s%d, v%d' % (self.vUd, sT3, self.vUd))
        a('v_add_u32 v%d, 7168, v%d' % (self.vUd + 1, self.vUd))
        if isG:
            a('s_lshl_b32 s%d, s%d, 2' % (sINIT, sRB))
            a('s_add_u32 s%d, s%d, s%d' % (sINIT, sINIT, sWV))
            a('s_cmp_eq_u32 s%d, 6' % sGRP)
            a('s_cselect_b32 s%d, 0, 0x%x' % (sT3, OOB))
            z = self.et
            for i in range(4):
                a('v_mov_b32 v%d, 0' % (z + i))
            a('s_lshl_b32 s%d, s%d, 10' % (sT0, sINIT))
            a('s_add_u32 s%d, s%d, 0x%x' % (sT0, sT0, KVACC))
            a('s_add_u32 s%d, s%d, s%d' % (sT0, sT0, sT3))
            a('buffer_store_dwordx4 %s, v%d, %s, s%d offen sc1' % (vr(z, 4), self.vL16, srd(S_WS), sT0), tag='init')
            a('s_lshl_b32 s%d, s%d, 7' % (sT0, sINIT))
            a('s_add_u32 s%d, s%d, 0x%x' % (sT0, sT0, AFLAG))
            a('s_add_u32 s%d, s%d, s%d' % (sT0, sT0, sT3))
            a('v_lshlrev_b32 v%d, 1, v%d' % (t3, t2))
            a('buffer_store_dword v%d, v%d, %s, s%d offen sc1' % (z, t3, srd(S_WS), sT0), tag='init')
            a('s_lshl_b32 s%d, s%d, 2' % (sINIT, sINIT))
            a('s_add_u32 s%d, s%d, s%d' % (sINIT, sINIT, sT3))
        a('v_and_b32 v%d, 31, v1' % t0)
        a('v_lshrrev_b32 v%d, 5, v1' % t1)
        a('v_bfe_u32 v%d, v1, 1, 3' % t2)
        a('v_xor_b32 v%d, v%d, v%d' % (t2, t2, t1))
        a('v_lshlrev_b32 v%d, 4, v%d' % (t2, t2))
        a('v_lshl_add_u32 v%d, v%d, 7, v%d' % (t2, t0, t2))
        a('v_add_u32 v%d, s%d, v%d' % (self.vXr, sXB, t2))
        for s in range(1, 4):
            a('v_xor_b32 v%d, %d, v%d' % (self.vXr + s, 32 * s, self.vXr))
        for i in range(6):
            if i != 2:
                a('v_mov_b32 v%d, 0' % (self.vSel + i))
        a('v_xor_b32 v%d, 1, v%d' % (t3, t1))
        a('v_mul_u32_u24 v%d, 0x3f80, v%d' % (self.vSel + 2, t3))
        for i in range(6):
            if not isA:
                a('v_mov_b32 v%d, 0' % (self.vBias + 2 * i + 1))
        for i in range(2):
            a('v_mov_b32 v%d, 0' % (self.vB2 + 2 * i + 1))
        if isG:
            a('v_mov_b32 v%d, 0' % (self.vBias + 10))
            a('v_lshl_add_u32 v%d, v%d, 4, s%d' % (self.vMisc, t1, sXB))
            a('s_lshr_b32 s%d, s%d, 1' % (sT0, sGRP))
            a('s_lshl_b32 s%d, s%d, 13' % (sT0, sT0))
            a('s_lshl_b32 s%d, s%d, 2' % (sT1, sRB))
            a('s_add_u32 s%d, s%d, s%d' % (sT1, sT1, sWV))
            a('s_lshl_b32 s%d, s%d, 7' % (sT1, sT1))
            a('s_add_u32 s%d, s%d, s%d' % (sT0, sT0, sT1))
            a('s_add_u32 s%d, s%d, 0x%x' % (sT0, sT0, GOFF))
            a('v_lshl_add_u32 v%d, v%d, 2, s%d' % (self.vMisc + 1, t0, sT0))
        a('v_bfe_u32 v%d, v1, 2, 2' % t0)
        a('v_and_b32 v%d, 3, v1' % t2)
        a('v_lshlrev_b32 v%d, 3, v%d' % (t2, t2))
        a('v_bfe_u32 v%d, v1, 4, 1' % t3)
        a('v_lshl_add_u32 v%d, v%d, 5, v%d' % (t2, t3, t2))
        a('v_bfe_u32 v%d, v1, 3, 1' % t3)
        a('v_lshl_add_u32 v%d, v%d, 6, v%d' % (t2, t3, t2))
        a('v_lshl_add_u32 v%d, v%d, 7, v%d' % (t2, t0, t2))
        a('v_lshl_add_u32 v%d, v%d, 10, v%d' % (t3, t1, t2))
        a('v_add_u32 v%d, %d, v%d' % (self.vWr, W_BASE, t3))
        a('v_xor_b32 v%d, 64, v%d' % (self.vWr + 1, self.vWr))
        a('v_add_u32 v%d, 49152, v%d' % (self.vWr + 2, self.vWr))
        a('v_add_u32 v%d, 49152, v%d' % (self.vWr + 3, self.vWr + 1))
        a('v_lshl_add_u32 v%d, v%d, 9, v%d' % (t3, t1, t2))
        a('s_and_b32 s%d, s%d, 1' % (sT0, sWV))
        a('s_lshl_b32 s%d, s%d, 6' % (sT0, sT0))
        a('v_xor_b32 v%d, s%d, v%d' % (t3, sT0, t3))
        a('v_add_u32 v%d, s%d, v%d' % (self.vUr, sXB, t3))
        a('v_xor_b32 v%d, 64, v%d' % (self.vUr + 1, self.vUr))
        a('v_add_u32 v%d, s%d, v%d' % (self.vUr + 2, sWQ, t3))
        a('v_xor_b32 v%d, 64, v%d' % (self.vUr + 3, self.vUr + 2))
        a('v_add_u32 v%d, 49152, v%d' % (self.vUr + 4, self.vUr + 2))
        a('v_add_u32 v%d, 49152, v%d' % (self.vUr + 5, self.vUr + 3))
        for r, val in ((sC1, GC1), (sC0, GC0), (sLOG, LOG2E), (sONE, 1.0)):
            a('s_mov_b32 s%d, 0x%x' % (r, f2u(val)))
            a('s_mov_b32 s%d, 0x%x' % (r + 1, f2u(val)))
        a('v_mov_b32 v%d, s%d' % (self.vC0, sC0))
        a('v_mov_b32 v%d, s%d' % (self.vC0 + 1, sC0))
        self.mksrd(S_W2, P_W2, 1376 * 1024, a)
        self.mksrd(S_WO, P_WO, 512 * 1024, a)
        self.mksrd(S_OUT, P_OUT, 2048 * 1024, a)
        a('s_mul_i32 s%d, s%d, 11' % (sT0, sWV))
        a('s_cmp_eq_u32 s%d, 3' % sWV)
        a('s_cselect_b32 s%d, 5, 6' % sT1)
        a('s_cselect_b32 s%d, 0x%x, 0' % (sT2, OOB))
        a('s_add_u32 s%d, s%d, s%d' % (sT1, sT1, sT0))
        a('s_lshl_b32 s%d, s%d, 15' % (sUA, sT0))
        a('s_lshl_b32 s%d, s%d, 15' % (sUB, sT1))
        a('s_add_u32 s%d, s%d, %d' % (sUA5, sUA, 5 * 32768))
        a('s_add_u32 s%d, s%d, s%d' % (sUA5, sUA5, sT2))
        a('s_lshl_b32 s%d, s%d, 17' % (sUQ, sWV))
        a('s_add_u32 s%d, s%d, 16' % (sT0, sT0))
        a('s_add_u32 s%d, s%d, 16' % (sT1, sT1))
        a('s_lshl_b32 s%d, s%d, 17' % (sAA, sT0))
        a('s_lshl_b32 s%d, s%d, 17' % (sAB, sT1))
        a('s_add_u32 s%d, s%d, %d' % (sAA5, sAA, 5 * UNIT))
        a('s_add_u32 s%d, s%d, s%d' % (sAA5, sAA5, sT2))
        a('s_lshl_b32 s%d, s%d, 19' % (sAQ, sWV))
        a('s_add_u32 s%d, s%d, 0x%x' % (sKV, sXB, KVACC))
        a('s_lshl_b32 s%d, s%d, 1' % (sT0, sRT))
        a('s_lshr_b32 s%d, s%d, 1' % (sT1, sWV))
        a('s_add_u32 s%d, s%d, s%d' % (sT0, sT0, sT1))
        a('s_lshl_b32 s%d, s%d, 11' % (sT1, sT0))
        a('v_add_u32 v%d, s%d, v%d' % (self.vActLd, sT1, self.vL16))
        a('v_xor_b32 v%d, 2048, v%d' % (self.vActLd + 1, self.vActLd))
        a('s_lshl_b32 s%d, s%d, 1' % (sT0, sRB))
        a('s_lshr_b32 s%d, s%d, 1' % (sT1, sWV))
        a('s_add_u32 s%d, s%d, s%d' % (sT0, sT0, sT1))
        a('s_lshl_b32 s%d, s%d, 7' % (sT0, sT0))
        a('s_lshl_b32 s%d, s%d, 3' % (sT1, sCG))
        a('s_add_u32 s%d, s%d, s%d' % (sT0, sT0, sT1))
        a('s_and_b32 s%d, s%d, 1' % (sT1, sWV))
        a('s_lshl_b32 s%d, s%d, 2' % (sT1, sT1))
        a('s_add_u32 s%d, s%d, s%d' % (sT0, sT0, sT1))
        a('s_add_u32 s%d, s%d, 0x%x' % (sT0, sT0, AFLAG))
        a('v_mov_b32 v%d, s%d' % (self.vFlagW, sT0))
        a('s_lshl_b32 s%d, s%d, 7' % (sT0, sRT))
        a('s_lshl_b32 s%d, s%d, 4' % (sT1, sWV))
        a('s_add_u32 s%d, s%d, s%d' % (sT0, sT0, sT1))
        a('s_add_u32 s%d, s%d, 0x%x' % (sT0, sT0, AFLAG))
        a('v_and_b32 v%d, 3, v1' % t0)
        a('v_bfe_u32 v%d, v1, 2, 1' % self.vThr)
        a('v_lshlrev_b32 v%d, 6, v%d' % (t2, self.vThr))
        a('v_lshl_add_u32 v%d, v%d, 2, v%d' % (t2, t0, t2))
        a('v_add_u32 v%d, s%d, v%d' % (self.vFlagR, sT0, t2))
        if isA:
            a('s_lshl_b32 s%d, s%d, 13' % (sT0, sWV))
            a('s_add_u32 s%d, s%d, %d' % (sT0, sT0, W_BASE))
            a('v_add_u32 v%d, s%d, v%d' % (self.vMisc, sT0, self.vL16))
            a('v_lshl_add_u32 v%d, v1, 2, s%d' % (self.vMisc + 1, sWQ))
        if isG:
            self.mksrd(S_M2, P_GATE, 1024, a)
        self.stamp(a, 'setup')

        PF = 2
        XA = 128
        bar_chunks = list(range(8)) + list(range(8, 24, o.bgroup))

        def wbuf(n, t):
            return self.wf + (n % 3) * 8 + 4 * t

        def reads_for(n):
            c, s = divmod(n, 4)
            p = n // 32
            slot = c % NSLOT
            win, sl = divmod(slot, 6)
            out = []
            for t in range(2):
                if isG and p == 2 and t == 1:
                    out.append('ds_read_b128 %s, v%d offset:%d' % (vr(wbuf(n, t), 4), self.vMisc, 12288 + 32 * (n % 32)))
                    continue
                for rd in range(2):
                    out.append('ds_read_b64_tr_b16 %s, v%d offset:%d' % (
                        vr(wbuf(n, t) + 2 * rd, 2), self.vWr + win * 2 + t, sl * 8192 + (16 * s + 4 * rd) * 128))
            return out

        def barrier_for(c):
            nxt = [x for x in bar_chunks if x > c]
            last = (nxt[0] if nxt else 24) - 1
            tags = [('w', k) for k in range(c, last + 1)] + [('x', c)]
            a.wait_vm(*tags)
            a('s_barrier')
            if c < 8:
                for s in range(4):
                    a.ds('ds_read_b128 %s, v%d offset:%d' % (ar(XA + 16 * c + 4 * s, 4), self.vXr + s, (c & 3) * 4096), tag=('xr', c))

        NH = 30
        free = []
        xslots = [0, 1, 2] if isG else [0, 1, 2, 3]
        for sl in xslots:
            for hh in range(2):
                free.append((max(sl + 5, 7), 0, sl * 4096 + hh * 2048))
        for sl in range(NSLOT):
            lastc = sl + 12
            bs = [x for x in bar_chunks + [24, 26] if x - 2 >= lastc]
            st = bs[0]
            if isA and sl < 4:
                st = 24
            free.append((st, 1 + sl // 6, (sl % 6) * 8192))
        free.sort()
        u_issue = {}
        u_read = {}
        plan = {st: [] for st in range(0, 40)}
        nextw, nextu = 8, 0
        nextr = 0
        for st in range(4, 40):
            bud = o.bud0 if st < 8 else o.bud1
            k = 0
            while nextr < nextu and u_issue[nextr][0] + o.ulag <= st and k < o.urmax:
                m = nextr // 2
                if m >= 8 and st < 16 + (m - 8) + 1:
                    break
                plan[st].append(('ur', nextr, u_issue[nextr][1]))
                free.append((st + 1, u_issue[nextr][1][0], u_issue[nextr][1][1]))
                free.sort()
                nextr += 1
                k += 1
            while bud >= 2:
                okw = False
                if nextw < 24:
                    if nextw < 12:
                        okw = True
                    else:
                        passed = [x for x in bar_chunks if x <= st]
                        okw = passed and (passed[-1] - 2 >= nextw - 12)
                if okw:
                    plan[st].append(('w', nextw))
                    nextw += 1
                    bud -= 2
                elif nextu < NH and free and free[0][0] <= st:
                    f = free.pop(0)
                    u_issue[nextu] = (st, (f[1], f[2]))
                    plan[st].append(('u', nextu, (f[1], f[2])))
                    nextu += 1
                    bud -= 2
                else:
                    break
        assert nextu == NH and nextr == NH and nextw == 24
        last_issue_stage = max(v[0] for v in u_issue.values())
        if o.verbose:
            print(var, 'plan:', {k: [(x[0], x[1]) for x in v] for k, v in plan.items() if v})

        slot_tag = {}

        def plan_items(st):
            items = []
            if st < 4:
                def fx(c=st + 4):
                    a.wait_lg(('xr', c - 4))
                    self.dma_x(a, c)
                items.append(fx)
                items.append(lambda n=st + 4: self.dma_w(a, n))
            for it in plan[st]:
                if it[0] == 'w':
                    items.append(lambda n=it[1]: self.dma_w(a, n))
                elif it[0] == 'u':
                    def fu(h=it[1], sl=it[2]):
                        a.wait_lg(('ur', slot_tag.get(sl)), *[('xr', c) for c in range(8)])
                        self.dma_u(a, h, sl)
                    items.append(fu)
                else:
                    def fr(h=it[1], sl=it[2]):
                        a.wait_vm(('u', h))
                        slot_tag[sl] = h
                        for tx in self.read_u(a, h, sl):
                            a.ds(tx, tag=('ur', h))
                    items.append(fr)
            return items

        def emit(op):
            if callable(op):
                op()
            elif isinstance(op, list):
                for tx, tg in op:
                    a(tx, tag=tg)
            elif op.startswith('ds_'):
                a.ds(op)
            else:
                a(op)

        def cost(op):
            if callable(op):
                return 3
            if isinstance(op, list):
                return len(op)
            return 2 if op.startswith(('v_exp', 'v_rcp')) else (2 if op.startswith('v_mfma') else 1)

        def flag_store(aa, level):
            aa('v_mov_b32 v%d, %d' % (self.vPoll2, level))
            aa('buffer_store_dword v%d, v%d, %s, 0 offen sc1' % (self.vPoll2, self.vFlagW, srd(S_WS)), tag='flag')

        def dbg_load(aa):
            aa('buffer_load_dword v%d, v%d, %s, 0 offen sc1' % (self.vPoll, self.vTmp, srd(S_DBG)), tag='poll')

        def dbg_cmp(aa):
            aa('v_cmp_eq_u32 vcc, 1, v%d' % self.vPoll)

        a('v_lshlrev_b32 v%d, 2, v1' % self.vTmp)

        def acc(p, t):
            return self.acc + (p & 1) * 32 + 16 * t

        def kvres(hl):
            return acc(1, hl) if hl < 2 else self.kvd + 16 * (hl - 2)

        def epilogue_ops(p, packed):
            ops = []
            if isA:
                if p == 0:
                    for t in range(2):
                        ops += self.phi_ops(acc(0, t), self.pk + 8 * t)
                elif p == 1:
                    ones = self.et + 8
                    ops.append('v_mov_b32 v%d, 0x3f803f80' % ones)
                    ops.append('v_bfe_u32 v%d, v1, 4, 1' % (self.et + 9))
                    ops.append('v_cmp_eq_u32 vcc, 1, v%d' % (self.et + 9))
                    for t in range(2):
                        ops += self.pack_ops(acc(1, t), self.pk2 + 8 * t)
                    for t in range(2):
                        for j in range(8):
                            ops.append('v_cndmask_b32 v%d, v%d, v%d, vcc' % (self.vmod + j, self.pk2 + 8 * t + j, ones))
                            ops.append('v_cndmask_b32 v%d, v%d, v%d, vcc' % (self.vmod + 8 + j, ones, self.pk2 + 8 * t + j))
                        for hb in range(2):
                            d = kvres(2 * t + hb)
                            for g in range(2):
                                ops.append('v_mfma_f32_32x32x16_bf16 %s, %s, %s, %s' % (
                                    vr(d, 16), vr(self.pk + 8 * t + 4 * g, 4), vr(self.vmod + 8 * hb + 4 * g, 4), '0' if g == 0 else vr(d, 16)))
                else:
                    for t in range(2):
                        ops += self.phi_ops(acc(2, t), self.pk + 8 * t)
                        ops += self.act_store_ops(self.pk + 8 * t, t, 'st2')
            else:
                for t in range(2):
                    if isG and p == 2 and t == 1:
                        x = acc(2, 1)
                        e = self.et
                        ops.append('v_mul_f32 v%d, s%d, v%d' % (e, sLOG, x))
                        ops.append('v_exp_f32 v%d, -v%d' % (e, e))
                        ops.append('v_add_f32 v%d, 1.0, v%d' % (e, e))
                        ops.append('v_rcp_f32 v%d, v%d' % (e, e))
                        ops.append([('buffer_store_dword v%d, v%d, %s, 0 offen sc1' % (e, self.vMisc + 1, srd(S_WS)), 'st2')])
                        continue
                    pkb = (self.pk if p != 1 else self.pk2) + 8 * t
                    ops += self.gelu_ops(acc(p, t), pkb, packed)
                    ops += self.act_store_ops(pkb, 2 * p + t, 'st%d' % p)
            return ops

        def kv_write():
            for hl in range(4):
                src = kvres(hl) + (8 if hl & 1 else 0)
                for half in range(2):
                    a.ds('ds_write_b128 v%d, %s offset:%d' % (self.vMisc, vr(src + 4 * half, 4), hl * 2048 + half * 1024), tag='kvw')

        def kv_reduce():
            d = self.kvd
            for u in range(4):
                for k in range(0, 8, 2):
                    a.ds('ds_read2st64_b32 %s, v%d offset0:%d offset1:%d' % (vr(d + u * 8 + k, 2), self.vMisc + 1, u * 32 + k, u * 32 + k + 1), tag='kvr')
            for k in range(8):
                a('v_add_f32 v%d, v%d, v%d' % (d + k, d + k, d + 8 + k))
            for k in range(8):
                a('v_add_f32 v%d, v%d, v%d' % (d + 16 + k, d + 16 + k, d + 24 + k))
            for k in range(8):
                a('v_add_f32 v%d, v%d, v%d' % (d + k, d + k, d + 16 + k))
            a('s_lshl_b32 s%d, s%d, 2' % (sT2, sGRP))
            a('s_add_u32 s%d, s%d, s%d' % (sT2, sT2, sWV))
            a('s_lshl_b32 s%d, s%d, 11' % (sT2, sT2))
            a('s_add_u32 s%d, s%d, 0x%x' % (sT2, sT2, KVACC))
            for k in range(8):
                a('buffer_atomic_add_f32 v%d, v%d, %s, s%d offen offset:%d' % (d + k, self.vTmp, srd(S_WS), sT2, 256 * k), tag='kva')

        barrier_for(0)
        self.stamp(a, 'first')
        if isG:
            pass
        for n in range(PF):
            for tx in reads_for(n):
                a.ds(tx)

        vq = []
        for n in range(96):
            p, s32 = divmod(n, 32)
            c, s = divmod(n, 4)
            if s32 == 0:
                vq = epilogue_ops(p - 1, False) if p else []
                vtot = sum(cost(x) for x in vq)
                vdone = 0
                vspan = (o.vstart, o.vend if not (isA and p == 2) else o.vend_kv)
                if p:
                    self.stamp(a, 'pass%d' % (p - 1))
            if s == 0:
                items = plan_items(c)
                extra = []
                if isG and c == 4:
                    def finit():
                        a.wait_vm('init')
                        a('v_mov_b32 v%d, 1' % self.vPoll2)
                        a('v_mov_b32 v%d, s%d' % (self.vPoll, sINIT))
                        a('buffer_store_dword v%d, v%d, %s, 0 offen sc1' % (self.vPoll2, self.vPoll, srd(S_DBG)), tag='flag')
                    extra.append(finit)
                if isG and c == 9:
                    def fgate():
                        a.wait_lg(*[('xr', k) for k in range(8)])
                        a('s_add_u32 m0, s%d, %d' % (sXB, 12288))
                        a('buffer_load_dwordx4 v%d, %s, 0 offen lds' % (self.vL16, srd(S_M2)), tag='gate')
                    extra.append(fgate)
                if c == o.dbg_issue:
                    extra.append(lambda: dbg_load(a))
                if c == o.dbg_check:
                    extra.append(lambda: self.check(a, dbg_load, dbg_cmp))
                if not isA and c == o.l1_stage:
                    def fl1():
                        a.wait_vm('st0')
                        flag_store(a, 1)
                    extra.append(fl1)
                if isA and c == o.kvw_stage:
                    extra.append(kv_write)
                if isA and c == o.kvr_stage:
                    extra.append(kv_reduce)
                items = extra + items
                ngap = 8
                sched = [[] for _ in range(ngap)]
                for i, it in enumerate(items):
                    sched[min(ngap - 1, (i * ngap) // max(1, len(items)))].append(it)
            nn = n + PF
            if nn < 96 and nn % 4 == 0 and nn // 4 in bar_chunks:
                cb = nn // 4
                if isA and cb == o.kv_bar:
                    a.wait_lg('kvw')
                if isG and cb == 16:
                    a.wait_vm('gate')
                barrier_for(cb)
            if nn == 96:
                if isA:
                    a.wait_lg('kvr')
                a('s_barrier')
            rds = reads_for(nn) if nn < 96 else []
            for t in range(2):
                xf = ar(XA + 4 * s32, 4)
                wf = vr(wbuf(n, t), 4)
                d = vr(acc(p, t), 16)
                normal = isA and p < 2
                first = s32 == 0
                hasbias = (not isA) and not (isG and p == 2 and t == 1)
                if first and hasbias:
                    a('v_mfma_f32_32x32x16_bf16 %s, %s, %s, 0' % (d, vr(self.vBias + 4 * p, 4), vr(self.vSel + (2 if t == 0 else 0), 4)))
                    first = False
                A_, B_ = (xf, wf) if normal else (wf, xf)
                a('v_mfma_f32_32x32x16_bf16 %s, %s, %s, %s' % (d, A_, B_, '0' if first else d))
                half = (len(rds) + 1) // 2
                for tx in (rds[:half] if t == 0 else rds[half:]):
                    a.ds(tx)
                gi = 2 * s32 + t
                if vq and gi >= vspan[0]:
                    frac = min(1.0, (gi - vspan[0] + 1) / float(vspan[1] - vspan[0]))
                    while vq and vdone < frac * vtot:
                        op = vq.pop(0)
                        vdone += cost(op)
                        emit(op)
                for it in sched[2 * s + t]:
                    it()
            if s32 == 31:
                assert not vq
        self.stamp(a, 'pass2')

        vq = epilogue_ops(2, o.pk_final)
        nps = 4
        per = (len(vq) + nps - 1) // nps
        st = 24

        def act_poll(aa):
            aa('buffer_load_dword v%d, v%d, %s, 0 offen sc1' % (self.vPoll2, self.vFlagR, srd(S_WS)), tag='poll')

        for i in range(nps):
            if st == 26:
                a('s_barrier')
            items = plan_items(st)
            chunk = vq[i * per:(i + 1) * per]
            k = max(1, len(chunk) // (len(items) + 1))
            for j, op in enumerate(chunk):
                if items and j % k == k - 1:
                    items.pop(0)()
                emit(op)
            for it in items:
                it()
            if i == o.l2_ps:
                if isA:
                    a.wait_vm('kva')
                    a('s_lshl_b32 s%d, s%d, 8' % (sT2, sCG))
                    a('s_lshl_b32 s%d, s%d, 4' % (sT3, sRB))
                    a('s_add_u32 s%d, s%d, s%d' % (sT2, sT2, sT3))
                    a('s_lshl_b32 s%d, s%d, 2' % (sT3, sWV))
                    a('s_add_u32 s%d, s%d, s%d' % (sT2, sT2, sT3))
                    a('s_add_u32 s%d, s%d, 0x%x' % (sT2, sT2, KFLAG))
                    a('v_mov_b32 v%d, s%d' % (self.vPoll, sT2))
                    a('v_mov_b32 v%d, 1' % self.vPoll2)
                    a('buffer_store_dword v%d, v%d, %s, 0 offen sc1' % (self.vPoll2, self.vPoll, srd(S_WS)), tag='flag')
                else:
                    a.wait_vm('st1')
                    flag_store(a, 2)
            st += 1
        self.stamp(a, 'epi')
        a('s_cmp_eq_u32 s%d, 0' % sWV)
        a('s_cselect_b32 s%d, 0, 0x%x' % (sT2, OOB))
        a('s_lshl_b32 s%d, s%d, 7' % (sT3, sCT))
        a('s_add_u32 s%d, s%d, s%d' % (sT2, sT2, sT3))
        a('v_and_b32 v%d, 31, v1' % t1)
        a('v_lshlrev_b32 v%d, 1, v%d' % (t2, t1))
        act_poll(a)
        for t in range(2):
            a('buffer_load_ushort v%d, v%d, %s, s%d offen offset:%d' % (self.vB2 + 2 * t, t2, srd(S_M1), sT2, 64 * t), tag='bias')
        pend_reads = []
        while st < 40:
            for it_desc, it in zip([x for x in plan[st]], plan_items(st)):
                if it_desc[0] == 'ur' and st > last_issue_stage:
                    pend_reads.append(it)
                else:
                    it()
            st += 1

        def abuf(i):
            assert i < self.npool
            return self.pool + 16 * i

        def breg(buf, off, n):
            if isinstance(buf, tuple):
                return ar(16 * buf[1] + off, n)
            return vr(abuf(buf) + off, n)

        def load_unit(m, buf, tag):
            grp, idx = self.USLOT[m]
            sreg = {'A': sAA, 'B': sAB, 'A5': sAA5, 'Q': sAQ}[grp]
            if idx:
                a('s_add_u32 s%d, s%d, %d' % (sT1, sreg, idx * UNIT))
                so = sT1
            else:
                so = sreg
            for g in range(2):
                for rt in range(2):
                    a('buffer_load_dwordx4 %s, v%d, %s, s%d offen offset:%d sc1' % (
                        breg(buf, 8 * g + 4 * rt, 4), self.vActLd + rt, srd(S_WS), so, 1024 * g), tag=tag)

        def acc2(t, rt):
            return self.acc + 16 * (rt * 2 + t)

        def mfma_unit(m, buf, fill=()):
            fill = list(fill)
            for g in range(2):
                for rt in range(2):
                    for t in range(2):
                        d = vr(acc2(t, rt), 16)
                        a('v_mfma_f32_32x32x16_bf16 %s, %s, %s, %s' % (d, ar(self.ufrag(m, g, t), 4), breg(buf, 8 * g + 4 * rt, 4), d))
                        if fill:
                            fill.pop(0)()
            for f in fill:
                f()

        def lvl_cmp(level, alevel=0):
            def f(aa):
                aa('v_mul_u32_u24 v%d, %d, v%d' % (self.vTmp + 3, level - alevel, self.vThr))
                if alevel:
                    aa('v_add_u32 v%d, %d, v%d' % (self.vTmp + 3, alevel, self.vTmp + 3))
                aa('v_cmp_le_u32 vcc, v%d, v%d' % (self.vTmp + 3, self.vPoll2))
            return f

        def l3(aa):
            aa('v_mov_b32 v%d, 3' % (self.vTmp + 3))
            aa('buffer_store_dword v%d, v%d, %s, 0 offen sc1' % (self.vTmp + 3, self.vFlagW, srd(S_WS)), tag='flag')

        assert self.npool >= 8, self.npool
        self.check(a, act_poll, lvl_cmp(1), extra_slow=l3)
        self.stamp(a, 'P1')
        load_unit(0, 0, 'a0')
        load_unit(1, 1, 'a1')
        act_poll(a)
        load_unit(2, 2, 'a2')
        load_unit(3, 3, 'a3')
        a.wait_vm('st2')
        l3(a)
        for it in pend_reads:
            it()
        for rt in range(2):
            for t in range(2):
                a('v_mfma_f32_32x32x16_bf16 %s, %s, %s, 0' % (vr(acc2(t, rt), 16), vr(self.vB2, 4), vr(self.vSel + (2 if t == 0 else 0), 4)))
        mfma_unit(0, 0)
        self.check(a, act_poll, lvl_cmp(2))
        self.stamp(a, 'P2')
        load_unit(4, 4, 'a4')
        mfma_unit(1, 1, [lambda: load_unit(5, 5, 'a5')])

        def kv_poll(aa):
            act_poll(aa)
            aa('buffer_load_dwordx2 %s, v%d, %s, s%d offen sc1' % (vr(self.vPoll, 2), self.vTmp + 2, srd(S_WS), sT0), tag='poll')

        a('s_lshl_b32 s%d, s%d, 9' % (sT0, sWV))
        a('s_add_u32 s%d, s%d, 0x%x' % (sT0, sT0, KFLAG))
        a('v_lshlrev_b32 v%d, 3, v1' % (self.vTmp + 2))
        kv_poll(a)
        mfma_unit(2, 2, [lambda: load_unit(6, 6, 'a6')])
        mfma_unit(3, 3, [lambda: load_unit(7, 7, 'a7')])
        mfma_unit(4, 4)

        def all_cmp(aa):
            aa('v_and_b32 v%d, v%d, v%d' % (self.vTmp + 3, self.vPoll, self.vPoll + 1))
            aa('v_mul_u32_u24 v%d, 3, v%d' % (self.vTmp + 3, self.vTmp + 3))
            aa('v_min_u32 v%d, v%d, v%d' % (self.vTmp + 3, self.vTmp + 3, self.vPoll2))
            aa('v_cmp_eq_u32 vcc, 3, v%d' % (self.vTmp + 3))

        self.check(a, kv_poll, all_cmp)
        self.stamp(a, 'P3')
        load_unit(8, ('a', 0), 'a8')
        load_unit(9, ('a', 1), 'a9')
        a('s_lshl_b32 s%d, s%d, 13' % (sT0, sWV))
        a('s_add_u32 s%d, s%d, 0x%x' % (sT0, sT0, GOFF))
        for rt in range(2):
            a('v_lshrrev_b32 v%d, 11, v%d' % (t2, self.vActLd + rt))
            a('v_lshlrev_b32 v%d, 7, v%d' % (t2, t2))
            a('v_lshl_add_u32 v%d, v%d, 2, v%d' % (t2, t1, t2))
            a('buffer_load_dword v%d, v%d, %s, s%d offen sc1' % (self.vG + rt, t2, srd(S_WS), sT0), tag='g')

        def load_kv(j, buf):
            for hb in range(2):
                a('s_add_u32 s%d, s%d, %d' % (sT1, sKV, (2 * j + hb) * 2048))
                for half in range(2):
                    a('buffer_load_dwordx4 %s, v%d, %s, s%d offen offset:%d sc1' % (
                        vr(abuf(buf) + 8 * hb + 4 * half, 4), self.vL16, srd(S_WS), sT1, 1024 * half), tag='kv')

        nul = lambda: None
        mfma_unit(5, 5, [lambda: load_unit(10, ('a', 2), 'a10')])
        mfma_unit(6, 6, [lambda: load_kv(0, 0), nul, nul, nul, lambda: load_unit(11, ('a', 3), 'q0')])
        mfma_unit(7, 7, [lambda: load_kv(1, 1), nul, nul, nul, lambda: load_unit(12, ('a', 4), 'q1')])
        mfma_unit(8, ('a', 0), [lambda: load_kv(2, 2), nul, nul, nul, lambda: load_unit(13, ('a', 5), 'q2')])
        mfma_unit(9, ('a', 1), [lambda: load_kv(3, 3), nul, nul, nul, lambda: load_unit(14, ('a', 6), 'q3')])
        mfma_unit(10, ('a', 2))
        self.stamp(a, 'bpart')
        for rt in range(2):
            a('v_sub_f32 v%d, 1.0, v%d' % (self.vGm + rt, self.vG + rt))
        nd = [abuf(4), abuf(5)]
        of = abuf(6)

        def pack_kv(j):
            b = abuf(j)
            for hb in range(2):
                for k in range(4):
                    a('v_cvt_pk_bf16_f32 v%d, v%d, v%d' % (b + 8 * hb + k, b + 8 * hb + 2 * k, b + 8 * hb + 2 * k + 1))

        steps = [(j, hb, rt) for j in range(4) for hb in range(2) for rt in range(2)]

        def nd_mfma(i):
            j, hb, rt = steps[i]
            if hb == 0 and rt == 0:
                pack_kv(j)
            a('v_mfma_f32_32x32x16_bf16 %s, %s, %s, 0' % (
                vr(nd[i & 1], 16), vr(abuf(j) + 8 * hb, 4), breg(('a', 3 + j), 8 * hb + 4 * rt, 4)))

        nd_mfma(0)
        for rt in range(2):
            for t in range(2):
                for k in range(16):
                    r = acc2(t, rt) + k
                    a('v_mul_f32 v%d, v%d, v%d' % (r, r, self.vGm + rt))
        for i, (j, hb, rt) in enumerate(steps):
            if i + 1 < len(steps):
                nd_mfma(i + 1)
            b = nd[i & 1]
            num = b + (8 if hb else 0)
            den = b + (0 if hb else 8)
            a('v_add_f32 v%d, 0x%x, v%d' % (den, f2u(1e-6), den))
            a('v_rcp_f32 v%d, v%d' % (den, den))
            a('v_mul_f32 v%d, v%d, v%d' % (den, den, self.vG + rt))
            for k in range(8):
                a('v_mul_f32 v%d, v%d, v%d' % (num + k, num + k, den))
            ob = of + 4 * (i & 1)
            for k in range(4):
                a('v_cvt_pk_bf16_f32 v%d, v%d, v%d' % (ob + k, num + 2 * k, num + 2 * k + 1))
            for t in range(2):
                d = vr(acc2(t, rt), 16)
                a('v_mfma_f32_32x32x16_bf16 %s, %s, %s, %s' % (d, ar(self.ufrag(11 + j, hb, t), 4), vr(ob, 4), d))
        self.stamp(a, 'apart')
        a('v_add_u32 v%d, s%d, v%d' % (t2, sXB, self.vL16))
        for n in range(1, 4):
            for q in range(4):
                a.ds('ds_write_b128 v%d, %s offset:%d' % (t2, vr(self.acc + 16 * n + 4 * q, 4), (n - 1) * 4096 + q * 1024), tag='red')
        a('s_lshl_b32 s%d, s%d, 1' % (sT0, sRT))
        a('s_lshr_b32 s%d, s%d, 1' % (sT1, sWV))
        a('s_add_u32 s%d, s%d, s%d' % (sT0, sT0, sT1))
        a('s_lshl_b32 s%d, s%d, 15' % (sT0, sT0))
        a('s_lshl_b32 s%d, s%d, 7' % (sT1, sCT))
        a('s_add_u32 s%d, s%d, s%d' % (sT0, sT0, sT1))
        a('s_and_b32 s%d, s%d, 1' % (sT1, sWV))
        a('s_lshl_b32 s%d, s%d, 6' % (sT1, sT1))
        a('s_add_u32 s%d, s%d, s%d' % (sT0, sT0, sT1))
        a('v_lshrrev_b32 v%d, 5, v1' % t3)
        a('v_lshlrev_b32 v%d, 4, v%d' % (t3, t3))
        a('v_lshl_add_u32 v%d, v%d, 10, v%d' % (t3, t1, t3))
        for n in range(1, 4):
            a('v_xor_b32 v%d, %d, v%d' % (self.vUr + n, n << 14, t2))
        a.wait_lg('red')
        a('s_barrier')
        rb_ = self.pool
        for n in range(1, 4):
            for q in range(4):
                a.ds('ds_read_b128 %s, v%d offset:%d' % (vr(rb_ + 16 * (n - 1) + 4 * q, 4), self.vUr + n, (n - 1) * 4096 + q * 1024))
        for n in range(1, 4):
            for k in range(0, 16, 2):
                a('v_pk_add_f32 %s, %s, %s' % (vr(self.acc + k, 2), vr(self.acc + k, 2), vr(rb_ + 16 * (n - 1) + k, 2)))
        ob = self.pool + 48
        for k in range(8):
            a('v_cvt_pk_bf16_f32 v%d, v%d, v%d' % (ob + k, self.acc + 2 * k, self.acc + 2 * k + 1))
        for pr in range(2):
            a('v_permlane32_swap_b32 v%d, v%d' % (ob + 4 * pr, ob + 4 * pr + 2))
            a('v_permlane32_swap_b32 v%d, v%d' % (ob + 4 * pr + 1, ob + 4 * pr + 3))
            a('buffer_store_dwordx4 %s, v%d, %s, s%d offen offset:%d' % (vr(ob + 4 * pr, 4), t3, srd(S_OUT), sT0, 32 * pr))
        if o.diag:
            self.stamp(a, 'end')
            a._put('s_memrealtime s[98:99]')
            a.force_wait('lgkmcnt(0)')
            n = len(a.stampn)
            b = self.pool + 64
            for i in range(16):
                if i < n:
                    a('s_sub_u32 s%d, s%d, s100' % (40 + 2 * i, 40 + 2 * i))
                    a('v_mov_b32 v%d, s%d' % (b + i, 40 + 2 * i))
                else:
                    a('v_mov_b32 v%d, 0' % (b + i))
            a('v_mov_b32 v%d, s98' % (b + 15))
            a('v_mov_b32 v%d, %d' % (b + 14, 'FGA'.index(var)))
            a('s_lshl_b32 s%d, s2, 2' % sT0)
            a('s_add_u32 s%d, s%d, s%d' % (sT0, sT0, sWV))
            a('s_lshl_b32 s%d, s%d, 6' % (sT0, sT0))
            a('s_add_u32 s%d, s%d, 0x%x' % (sT0, sT0, STAMP))
            a('v_mov_b32 v%d, 0' % t2)
            for q in range(4):
                a('buffer_store_dwordx4 %s, v%d, %s, s%d offen offset:%d' % (vr(b + 4 * q, 4), t2, srd(S_WS), sT0, 16 * q))
            self.stampnames = a.stampn
        a('s_endpgm')
        if o.verbose:
            print(var, 'insts', a.ninst, 'nop states', a.nnop, a.stats)

    def build(self):
        self.prologue()
        for var in 'FGA':
            self.variant(var)
        self.a.label('L_end')
        self.a.raw('    s_endpgm')
        ref = open('cdna_kernels/%s.s.ref' % NAME).read().split('\n')
        head = [l for l in ref if l.startswith(';') and '@launch' not in l]
        out = '\n'.join(head) + '\n; generated by tools/gen.py\n'
        out += '; @launch grid=(256,1,1) block=(256,1,1) lds=163840\n'
        out += '.amdgcn_target "amdgcn-amd-amdhsa--gfx950"\n.text\n.globl %s_kernel\n.p2align 8\n.type %s_kernel,@function\n' % (NAME, NAME)
        out += self.a.text()
        out += '''.section .rodata,"a"
.p2align 6
.amdhsa_kernel %s_kernel
  .amdhsa_next_free_vgpr 512
  .amdhsa_next_free_sgpr 102
  .amdhsa_accum_offset 256
  .amdhsa_group_segment_fixed_size 0
  .amdhsa_kernarg_size 96
  .amdhsa_user_sgpr_count 2
  .amdhsa_user_sgpr_kernarg_segment_ptr 1
  .amdhsa_system_sgpr_workgroup_id_x 1
.end_amdhsa_kernel
''' % NAME
        return out


def parse(argv=None):
    ap = argparse.ArgumentParser()
    ap.add_argument('-o', default='cdna_kernels/%s.s' % NAME)
    ap.add_argument('--diag', action='store_true')
    ap.add_argument('--verbose', action='store_true')
    ap.add_argument('--p2map', type=int, default=0)
    ap.add_argument('--bgroup', type=int, default=2)
    ap.add_argument('--bud0', type=int, default=6)
    ap.add_argument('--bud1', type=int, default=4)
    ap.add_argument('--ulag', type=int, default=4)
    ap.add_argument('--urmax', type=int, default=2)
    ap.add_argument('--vstart', type=int, default=3)
    ap.add_argument('--vend', type=int, default=62)
    ap.add_argument('--vend_kv', type=int, default=20)
    ap.add_argument('--kvw_stage', type=int, default=19)
    ap.add_argument('--kv_bar', type=int, default=20)
    ap.add_argument('--kvr_stage', type=int, default=20)
    ap.add_argument('--dbg_issue', type=int, default=10)
    ap.add_argument('--dbg_check', type=int, default=14)
    ap.add_argument('--l1_stage', type=int, default=20)
    ap.add_argument('--l2_ps', type=int, default=3)
    ap.add_argument('--pk_final', type=int, default=1)
    ap.add_argument('--spin', type=int, default=100000)
    return ap.parse_args(argv)


if __name__ == '__main__':
    o = parse()
    g = Gen(o)
    txt = g.build()
    open(o.o, 'w').write(txt)
    if o.diag:
        print('stamps:', g.stampnames)
    print('wrote', o.o, len(txt), 'bytes')
```

```python
import sys, os, struct, argparse
sys.path.insert(0, os.path.dirname(os.path.abspath(__file__)))
from asmlib import Asm

NAME = "gated_mix__linear_attn_block__dense_activation_gelu__prompt"

UNIT = 131072
KVACC = 0x780000
HSTR, QSTR = 1152, 576
CNT = 0x78A000
GOFF = 0x792000
STAMP = 0x7C0000
FLAG = 0x800000
EOFF = 0x900000
WS_SIZE = 0x900080
OOB = 0x40000000

W_BASE = 65536
NSLOT = 12
REG = 16384
KVA = 7 * REG


def f2u(x):
    return struct.unpack('<I', struct.pack('<f', x))[0]


LOG2E = 1.4426950408889634
GC0 = -2.0 * 0.7978845608028654 * LOG2E
GC1 = GC0 * 0.044715

S_X, S_W, S_WS, S_U, S_OUT, S_DBG, S_M1, S_M2 = 4, 8, 12, 16, 20, 24, 28, 32
P_X, P_WQKV, P_WO, P_W1, P_B1, P_W2, P_B2, P_GATE, P_OUT, P_DBG, P_WS = 40, 42, 44, 48, 50, 52, 54, 56, 58, 60, 62
sWV, sJ, sRB, sCG, sGRP, sRT, sCT, sP, sWQ = 64, 65, 66, 67, 68, 69, 70, 71, 72
sT0, sT1, sT2, sT3 = 73, 74, 75, 76
sUST = 77
sUA, sUB, sUA5 = 78, 79, 80
sAA, sAB, sAA5 = 81, 82, 83
sE = 84
sSPIN = 85
sC1, sONE = 88, 90
sLOG = 92
sKVB = 93


def srd(n):
    return 's[%d:%d]' % (n, n + 3)


def vr(b, n):
    return 'v[%d:%d]' % (b, b + n - 1)


class VAlloc:
    def __init__(self, start):
        self.n = start

    def get(self, cnt=1, align=1):
        self.n = (self.n + align - 1) // align * align
        r = self.n
        self.n += cnt
        return r


MFMA = 'v_mfma_f32_32x32x16_bf16 %s, %s, %s, %s'


class Gen:
    def __init__(self, opt):
        self.o = opt
        self.a = Asm()
        self.lbl = 0
        self.no = set(opt.no.split(','))
        va = VAlloc(2)
        g = va.get
        self.vL16 = g()
        self.vStamp = g()
        self.vUd = g(2)
        self.vUr = g(4)
        self.vActLd = g(2)
        self.vFlagW = g()
        self.vFlagR = g()
        self.vExp = g()
        self.vPoll = g()
        self.vEpoch = g()
        self.vG = g()
        self.vTmp = g(4, 2)
        self.vSel = g(6, 2)
        self.vB2 = g(4, 2)
        assert va.n <= 36, va.n
        va.n = 36
        self.acc2 = 36
        self.acc0 = g(16)
        self.wf = g(12)
        self.et = g(8)
        self.pk = g(8)
        self.vBias = g(6)
        self.vC0 = g(2)
        self.vXd = g(2)
        self.vXr = g(4)
        self.vWr = g(2)
        self.vMisc = g(2)
        self.vWd = g()
        self.vActSt = g()
        assert va.n == 100, va.n
        self.acc1 = g(16)
        self.pk2 = g(8)
        self.ubuf = 100
        self.vSp = g(4)
        assert va.n == 128
        self.XA = 128

    def blk(self, k):
        return self.XA + 16 * k

    def newlabel(self, s):
        self.lbl += 1
        return 'L%s_%d' % (s, self.lbl)

    def stamp(self, a, name, early=False):
        if not self.o.diag or name not in self.o.stamps.split(','):
            return
        if early:
            i = len(a.stampe)
            a.stampe.append(name)
            assert i < 6
            a._put('s_memtime s[%d:%d]' % (16 + 2 * i, 17 + 2 * i))
            return
        i = len(a.stampn)
        a.stampn.append(name)
        assert i < 12
        a._put('s_memtime s[%d:%d]' % (40 + 2 * i, 41 + 2 * i))

    def save_early(self, a):
        if not self.o.diag:
            return
        a.force_wait('lgkmcnt(0)')
        a('v_mov_b32 v%d, 0' % self.vStamp)
        for i in range(len(a.stampe)):
            a('s_sub_u32 s%d, s%d, s100' % (16 + 2 * i, 16 + 2 * i))
            a('v_writelane_b32 v%d, s%d, %d' % (self.vStamp, 16 + 2 * i, i))

    def mksrd(self, a, d, p, size):
        a('s_mov_b32 s%d, s%d' % (d, p))
        a('s_mov_b32 s%d, s%d' % (d + 1, p + 1))
        a('s_mov_b32 s%d, 0x%x' % (d + 2, size))
        a('s_mov_b32 s%d, 0x20000' % (d + 3))

    def prologue(self):
        a, o = self.a, self.o
        a.stampn, a.stampe = [], []
        a.label(NAME + '_kernel')
        a('s_cmp_ge_u32 s2, 256')
        a('s_cbranch_scc1 L_end')
        a._put('s_load_dwordx16 s[40:55], s[0:1], 0')
        a._put('s_load_dwordx8 s[56:63], s[0:1], 64')
        if o.diag:
            a._put('s_memtime s[100:101]')
            a._put('s_memrealtime s[98:99]')
        a('v_lshrrev_b32 v1, 6, v0')
        a('s_and_b32 s%d, s2, 7' % sT0)
        a('v_readfirstlane_b32 s%d, v1' % sWV)
        a('s_lshr_b32 s%d, s2, 3' % sT1)
        a('v_and_b32 v1, 63, v0')
        a('s_and_b32 s%d, s%d, 1' % (sRB, sT0))
        a('s_lshl_b32 s%d, s%d, 3' % (sRB, sRB))
        a('s_and_b32 s%d, s%d, 7' % (sT2, sT1))
        a('s_add_u32 s%d, s%d, s%d' % (sRB, sRB, sT2))
        a('s_lshr_b32 s%d, s%d, 1' % (sCG, sT0))
        a('s_lshl_b32 s%d, s%d, 2' % (sCG, sCG))
        a('s_lshr_b32 s%d, s%d, 3' % (sT2, sT1))
        a('s_add_u32 s%d, s%d, s%d' % (sCG, sCG, sT2))
        a('s_and_b32 s%d, s%d, 7' % (sGRP, sCG))
        if o.p2map == 0:
            a('s_lshl_b32 s%d, s%d, 2' % (sRT, sT0))
            a('s_and_b32 s%d, s%d, 3' % (sT2, sT1))
            a('s_add_u32 s%d, s%d, s%d' % (sRT, sRT, sT2))
            a('s_lshr_b32 s%d, s%d, 2' % (sCT, sT1))
        else:
            a('s_lshr_b32 s%d, s%d, 1' % (sRT, sT0))
            a('s_lshl_b32 s%d, s%d, 3' % (sRT, sRT))
            a('s_and_b32 s%d, s%d, 7' % (sT2, sT1))
            a('s_add_u32 s%d, s%d, s%d' % (sRT, sRT, sT2))
            a('s_and_b32 s%d, s%d, 1' % (sCT, sT0))
            a('s_lshl_b32 s%d, s%d, 2' % (sCT, sCT))
            a('s_lshr_b32 s%d, s%d, 3' % (sT2, sT1))
            a('s_add_u32 s%d, s%d, s%d' % (sCT, sCT, sT2))
        a('s_and_b32 s%d, s%d, 3' % (sJ, sWV))
        a('s_lshl_b32 s%d, s%d, 11' % (sP, sWV))
        a('s_lshl_b32 s%d, s%d, 10' % (sWQ, sWV))
        a('s_add_u32 s%d, s%d, %d' % (sWQ, sWQ, W_BASE))
        t0, t1, t2, t3 = [self.vTmp + i for i in range(4)]
        a('v_lshrrev_b32 v%d, 3, v1' % t0)
        a('v_and_b32 v%d, 7, v1' % t1)
        a('v_lshrrev_b32 v%d, 4, v1' % t2)
        a('v_xor_b32 v%d, v%d, v%d' % (t3, t1, t2))
        a('v_lshlrev_b32 v%d, 4, v%d' % (t3, t3))
        a('v_lshl_add_u32 v%d, v%d, 10, v%d' % (t3, t0, t3))
        a('s_lshl_b32 s%d, s%d, 3' % (sT2, sRB))
        a('s_add_u32 s%d, s%d, s%d' % (sT2, sT2, sWV))
        a('s_lshl_b32 s%d, s%d, 14' % (sT3, sT2))
        a('v_add_u32 v%d, s%d, v%d' % (self.vXd, sT3, t3))
        a('v_xor_b32 v%d, 64, v%d' % (self.vXd + 1, self.vXd))
        a('v_add_u32 v%d, %d, v%d' % (self.vXd + 1, 7168, self.vXd + 1))
        a('v_and_b32 v%d, 1, v%d' % (t2, t2))
        a('v_lshlrev_b32 v%d, 2, v%d' % (t2, t2))
        a('v_xor_b32 v%d, v%d, v%d' % (t1, t1, t2))
        a('v_lshlrev_b32 v%d, 4, v%d' % (t1, t1))
        a('v_lshlrev_b32 v%d, 4, v1' % self.vL16)
        a('s_and_b32 s%d, s%d, 1' % (sT3, sGRP))
        a('s_cmp_eq_u32 s%d, 6' % sGRP)
        a('s_cselect_b32 s%d, 1, s%d' % (sT3, sT3))
        a('s_cmp_lt_u32 s%d, 8' % sCG)
        a('s_cselect_b32 s%d, 2, s%d' % (sT3, sT3))
        a('s_lshl_b32 s%d, s%d, 1' % (sT3, sT3))
        a('s_lshr_b32 s%d, s%d, 2' % (sT2, sWV))
        a('s_add_u32 s%d, s%d, s%d' % (sT3, sT3, sT2))
        a('s_add_u32 m0, s%d, 0' % sP)
        for i, nm in enumerate(['Fa', 'Fb', 'Ga', 'Gb', 'Aa']):
            a('s_cmp_eq_u32 s%d, %d' % (sT3, i))
            a('s_cbranch_scc1 L_path' + nm)

    def dma_x(self, a, c):
        if c:
            a('s_add_u32 m0, s%d, %d' % (sP, (c & 3) * REG))
            a('s_movk_i32 s%d, %d' % (sT0, c * 128))
        so = 's%d' % sT0 if c else '0'
        for i in range(2):
            a('buffer_load_dwordx4 v%d, %s, %s offen offset:%d lds' % (self.vXd + i, srd(S_X), so, 1024 * i), tag=('x', c))

    def dma_w(self, a, n):
        if 'w' in self.no and n >= 4:
            return
        p, c = divmod(n, 8)
        a('s_add_u32 m0, s%d, %d' % (sWQ, (n % NSLOT) * 8192))
        off = 64 * c * self.stride + self.passcol[p]
        a('s_mov_b32 s%d, %d' % (sT1, off))
        a('buffer_load_dwordx4 v%d, %s, s%d offen lds' % (self.vWd, srd(S_W), sT1), tag=('w', n))

    BUNITS = [('A', 0), ('A', 1), ('B', 0), ('B', 1), ('A', 2), ('A', 3), ('B', 2), ('B', 3),
              ('A', 4), ('B', 4), ('A5', 0)]
    AUNITS = [('A', 0), ('A', 1), ('A', 2), ('A', 3)]

    def dma_u(self, a, h, piece):
        if 'u' in self.no:
            return
        m, g = divmod(h, 2)
        grp, idx = self.units[m]
        sreg = {'A': sUA, 'B': sUB, 'A5': sUA5}[grp]
        a('s_add_u32 m0, s%d, %d' % (sP, piece * REG))
        a('s_add_u32 s%d, s%d, %d' % (sT1, sreg, (idx * 32 + g * 16) * 1024))
        for i in range(2):
            a('buffer_load_dwordx4 v%d, %s, s%d offen offset:%d lds' % (self.vUd + i, srd(S_U), sT1, 1024 * i), tag=('u', h))

    def ufrag(self, h, t):
        return self.ubuf + 8 * (h % 3) + 4 * t

    def read_u(self, a, h, piece):
        a.wait_vm(('u', h))
        win, pp = divmod(piece, 4)
        for t in range(2):
            for rd in range(2):
                a.ds('ds_read_b64_tr_b16 %s, v%d offset:%d' % (vr(self.ufrag(h, t) + 2 * rd, 2), self.vUr + win * 2 + t, pp * REG + rd * 1024),
                     tag=('ur', h))

    def load_act(self, a, m, g, blk):
        grp, idx = self.units[m]
        sreg = {'A': sAA, 'B': sAB, 'A5': sAA5}[grp]
        if idx:
            a('s_add_u32 s%d, s%d, %d' % (sT1, sreg, idx * UNIT))
            so = sT1
        else:
            so = sreg
        for rt in range(2):
            a('buffer_load_dwordx4 %s, v%d, %s, s%d offen offset:%d sc1' % (
                vr(self.blk(blk) + 8 * g + 4 * rt, 4), self.vActLd + rt, srd(S_WS), so, 1024 * g), tag=('act', m))

    def gelu_ops(self, accb, pkb, packed):
        et = self.et
        ops = []
        if 'epi' in self.no:
            return ops
        if packed:
            for q in range(0, 16, 8):
                xs = [accb + q + 2 * i for i in range(4)]
                ts = [et + 2 * i for i in range(4)]
                for x, t in zip(xs, ts):
                    ops.append('v_pk_mul_f32 %s, %s, %s' % (vr(t, 2), vr(x, 2), vr(x, 2)))
                for x, t in zip(xs, ts):
                    ops.append('v_pk_fma_f32 %s, %s, s[%d:%d], %s' % (vr(t, 2), vr(t, 2), sC1, sC1 + 1, vr(self.vC0, 2)))
                for x, t in zip(xs, ts):
                    ops.append('v_pk_mul_f32 %s, %s, %s' % (vr(t, 2), vr(t, 2), vr(x, 2)))
                for i in range(8):
                    ops.append('v_exp_f32 v%d, v%d' % (et + i, et + i))
                for t in ts:
                    ops.append('v_pk_add_f32 %s, %s, s[%d:%d]' % (vr(t, 2), vr(t, 2), sONE, sONE + 1))
                for i in range(8):
                    ops.append('v_rcp_f32 v%d, v%d' % (et + i, et + i))
                for x, t in zip(xs, ts):
                    ops.append('v_pk_mul_f32 %s, %s, %s' % (vr(t, 2), vr(t, 2), vr(x, 2)))
                for j, t in enumerate(ts):
                    ops.append('v_cvt_pk_bf16_f32 v%d, v%d, v%d' % (pkb + q // 2 + j, t, t + 1))
        else:
            for q in range(0, 16, 4):
                R = range(4)
                e = et + (q & 4)
                ops += ['v_mul_f32 v%d, v%d, v%d' % (e + i, accb + q + i, accb + q + i) for i in R]
                ops += ['v_fma_f32 v%d, v%d, s%d, v%d' % (e + i, e + i, sC1, self.vC0) for i in R]
                ops += ['v_mul_f32 v%d, v%d, v%d' % (e + i, e + i, accb + q + i) for i in R]
                ops += ['v_exp_f32 v%d, v%d' % (e + i, e + i) for i in R]
                ops += ['v_add_f32 v%d, 1.0, v%d' % (e + i, e + i) for i in R]
                ops += ['v_rcp_f32 v%d, v%d' % (e + i, e + i) for i in R]
                ops += ['v_mul_f32 v%d, v%d, v%d' % (e + i, e + i, accb + q + i) for i in R]
                ops += ['v_cvt_pk_bf16_f32 v%d, v%d, v%d' % (pkb + q // 2 + j, e + 2 * j, e + 2 * j + 1) for j in range(2)]
        return ops

    def phi_ops(self, accb, pkb):
        et = self.et
        ops = []
        if 'epi' in self.no:
            return ops
        for q in range(0, 16, 4):
            R = range(4)
            ops += ['v_mul_f32 v%d, s%d, v%d' % (et + i, sLOG, accb + q + i) for i in R]
            ops += ['v_exp_f32 v%d, v%d clamp' % (et + i, et + i) for i in R]
            ops += ['v_max_f32 v%d, 0x%x, v%d' % (et + 4 + i, f2u(1e-6), accb + q + i) for i in R]
            ops += ['v_add_f32 v%d, v%d, v%d' % (et + i, et + i, et + 4 + i) for i in R]
            ops += ['v_cvt_pk_bf16_f32 v%d, v%d, v%d' % (pkb + q // 2 + j, et + 2 * j, et + 2 * j + 1) for j in range(2)]
        return ops

    def with_stores(self, ops, pkb, unit_rel, tag):
        if 'st' in self.no:
            return ops
        st = []
        for g in range(2):
            st.append([('s_add_u32 s%d, s%d, %d' % (sT2, sUST, unit_rel * UNIT), None),
                       ('buffer_store_dwordx4 %s, v%d, %s, s%d offen offset:%d sc1' % (vr(pkb + 4 * g, 4), self.vActSt, srd(S_WS), sT2, 1024 * g), tag)])
        out = []
        done = False
        for i, op in enumerate(ops):
            out.append(op)
            if not done and i >= 2 and ops[i - 2].startswith('v_cvt_pk_bf16_f32 v%d,' % (pkb + 3)):
                out.append(st[0])
                done = True
        if not done:
            out.append(st[0])
        out.append(st[1])
        return out

    def check(self, a, load, cmps):
        ok = self.newlabel('ok')
        rt = self.newlabel('retry')
        cmps(a)
        a('s_cmp_eq_u64 vcc, -1')
        a('s_cbranch_scc1 ' + ok)
        s = a.fork()
        s('s_mov_b32 s%d, %d' % (sSPIN, self.o.spin))
        s.label(rt)
        if self.o.sleep:
            s('s_sleep %d' % self.o.sleep)
        load(s)
        s.force_wait('vmcnt(0)')
        cmps(s)
        s('s_cmp_eq_u64 vcc, -1')
        s('s_cbranch_scc1 ' + ok)
        s('s_sub_u32 s%d, s%d, 1' % (sSPIN, sSPIN))
        s('s_cmp_lg_u32 s%d, 0' % sSPIN)
        s('s_cbranch_scc1 ' + rt)
        a.label(ok)

    def path(self, var, role):
        o = self.o
        a = self.a.fork()
        a.stampn, a.stampe = list(self.a.stampn), list(self.a.stampe)
        a.label('L_path' + var + role)
        a.lgmax = 12 if o.diag else 15
        isA, isG = var == 'A', var == 'G'
        isb = role == 'b'
        ch = 1 if isb else 0
        gate = isG and isb
        self.units = self.BUNITS if isb else self.AUNITS
        NU = len(self.units)
        NH = 2 * NU
        self.stride = 3072 if isA else 2752
        self.passcol = [1024, 2048, 0] if isA else [0, 128, 256]
        t0, t1, t2, t3 = [self.vTmp + i for i in range(4)]
        if isA:
            a('s_lshl_b32 s%d, s%d, 7' % (sT2, sGRP))
            a('s_lshl_b32 s%d, s%d, 18' % (sUST, sGRP))
        else:
            a('s_mul_i32 s%d, s%d, 5' % (sT2, sGRP))
            a('s_add_u32 s%d, s%d, 1' % (sT3, sGRP))
            a('s_lshr_b32 s%d, s%d, 1' % (sT3, sT3))
            a('s_min_u32 s%d, s%d, 3' % (sT3, sT3))
            a('s_add_u32 s%d, s%d, s%d' % (sT2, sT2, sT3))
            a('s_add_u32 s%d, s%d, 16' % (sUST, sT2))
            a('s_lshl_b32 s%d, s%d, 17' % (sUST, sUST))
            a('s_lshl_b32 s%d, s%d, 6' % (sT2, sT2))
        a('s_mul_i32 s%d, s%d, %d' % (sT3, sWV, 8 * self.stride))
        a('s_add_u32 s%d, s%d, s%d' % (sT3, sT3, sT2))
        a('v_mul_u32_u24 v%d, %d, v%d' % (self.vWd, self.stride, t0))
        a('v_add3_u32 v%d, v%d, v%d, s%d' % (self.vWd, self.vWd, t1, sT3))
        a._put('s_waitcnt lgkmcnt(0)')
        self.stamp(a, 'karg', True)
        self.mksrd(a, S_X, P_X, 2048 * 1024)
        self.dma_x(a, 0)
        if isA:
            self.mksrd(a, S_W, P_WQKV, 512 * 3072)
        else:
            self.mksrd(a, S_W, P_W1, 512 * 2752)
        self.dma_w(a, 0)
        if isA and not isb:
            skip = self.newlabel('nopub')
            a('s_or_b32 s%d, s2, s%d' % (sT3, sWV))
            a('s_cbranch_scc1 ' + skip)
            a('s_mov_b32 s%d, 0x%x' % (sT3, EOFF))
            a._put('s_load_dword s%d, s[%d:%d], s%d' % (sE, P_WS, P_WS + 1, sT3))
            a.label(skip)
            a.lgmax -= 1
        self.stamp(a, 'd0', True)
        for c in range(1, o.pre):
            self.dma_x(a, c)
            if c == o.pre - 1:
                self.mksrd(a, S_WS, P_WS, WS_SIZE)
                if isA and isb:
                    skip = self.newlabel('noinit')
                    a('s_or_b32 s%d, s%d, s%d' % (sT3, sRB, sJ))
                    a('s_cbranch_scc1 ' + skip)
                    z = self.et
                    for i in range(4):
                        a('v_mov_b32 v%d, 0' % (z + i))
                    a('s_mul_i32 s%d, s%d, %d' % (sT0, sGRP, 4 * HSTR))
                    a('s_add_u32 s%d, s%d, 0x%x' % (sT0, sT0, KVACC))
                    for i in range(4):
                        a('buffer_store_dwordx4 %s, v%d, %s, s%d offen offset:%d sc1' % (vr(z, 4), self.vL16, srd(S_WS), sT0, 1024 * i), count=False)
                    a('s_add_u32 s%d, s%d, 4096' % (sT0, sT0))
                    a('v_add_u32 v%d, s%d, v%d' % (t2, sT0, self.vL16))
                    a('s_lshl_b32 s%d, s%d, 9' % (sT0, sGRP))
                    a('s_add_u32 s%d, s%d, 0x%x' % (sT0, sT0, CNT - 32 * 128))
                    a('v_lshl_add_u32 v%d, v1, 7, s%d' % (t3, sT0))
                    a('v_cmp_gt_u32 vcc, 32, v1')
                    a('v_cndmask_b32 v%d, v%d, v%d, vcc' % (t2, t3, t2))
                    a('v_mov_b32 v%d, 0x%x' % (t3, OOB))
                    a('v_cmp_gt_u32 vcc, 36, v1')
                    a('v_cndmask_b32 v%d, v%d, v%d, vcc' % (t2, t3, t2))
                    a('buffer_store_dwordx4 %s, v%d, %s, 0 offen sc1' % (vr(z, 4), t2, srd(S_WS)), count=False)
                    a.label(skip)
                    a.nop(2)
            self.dma_w(a, c)
            self.stamp(a, 'd%d' % c, True)
        if not isA:
            self.mksrd(a, S_M1, P_B1, 1376 * 2)
            a('v_and_b32 v%d, 31, v1' % t2)
            a('v_lshlrev_b32 v%d, 1, v%d' % (t2, t2))
            for p in range(2 if gate else 3):
                a('buffer_load_ushort v%d, v%d, %s, s%d offen offset:%d' % (self.vBias + 2 * p, t2, srd(S_M1), sT2, 128 * p + 64 * ch), tag='bias')
        a('s_lshl_b32 s%d, s%d, 7' % (sT3, sCT))
        a('v_lshl_add_u32 v%d, v%d, 10, v%d' % (self.vUd, t0, t1))
        a('v_add_u32 v%d, s%d, v%d' % (self.vUd, sT3, self.vUd))
        a('v_add_u32 v%d, 7168, v%d' % (self.vUd + 1, self.vUd))
        a('v_and_b32 v%d, 31, v1' % t0)
        a('v_lshrrev_b32 v%d, 5, v1' % t1)
        a('v_bfe_u32 v%d, v1, 1, 3' % t2)
        a('v_xor_b32 v%d, v%d, v%d' % (t2, t2, t1))
        a('v_lshlrev_b32 v%d, 4, v%d' % (t2, t2))
        a('v_lshl_add_u32 v%d, v%d, 7, v%d' % (t2, t0, t2))
        a('s_lshl_b32 s%d, s%d, 12' % (sT0, sJ))
        a('v_add_u32 v%d, s%d, v%d' % (self.vXr, sT0, t2))
        for s in range(1, 4):
            a('v_xor_b32 v%d, %d, v%d' % (self.vXr + s, 32 * s, self.vXr))
        for i in range(6):
            if i != 2:
                a('v_mov_b32 v%d, 0' % (self.vSel + i))
        a('v_xor_b32 v%d, 1, v%d' % (t3, t1))
        a('v_mul_u32_u24 v%d, 0x3f80, v%d' % (self.vSel + 2, t3))
        if not isA:
            for i in range(3):
                a('v_mov_b32 v%d, 0' % (self.vBias + 2 * i + 1))
        a('s_lshl_b32 s%d, s%d, 2' % (sT1, sRB))
        a('s_add_u32 s%d, s%d, s%d' % (sT1, sT1, sJ))
        a('s_lshl_b32 s%d, s%d, 11' % (sT0, sT1))
        a('v_add_u32 v%d, s%d, v%d' % (self.vActSt, sT0, self.vL16))
        if gate:
            a('v_lshl_add_u32 v%d, v%d, 4, s%d' % (self.vMisc, t1, sP))
            a('s_lshr_b32 s%d, s%d, 1' % (sT0, sGRP))
            a('s_lshl_b32 s%d, s%d, 13' % (sT0, sT0))
            a('s_lshl_b32 s%d, s%d, 7' % (sT1, sT1))
            a('s_add_u32 s%d, s%d, s%d' % (sT0, sT0, sT1))
            a('s_add_u32 s%d, s%d, 0x%x' % (sT0, sT0, GOFF))
            a('v_lshl_add_u32 v%d, v%d, 2, s%d' % (self.vMisc + 1, t0, sT0))
            self.mksrd(a, S_M2, P_GATE, 1024)
        a('v_bfe_u32 v%d, v1, 2, 2' % t0)
        a('v_and_b32 v%d, 3, v1' % t2)
        a('v_lshlrev_b32 v%d, 3, v%d' % (t2, t2))
        a('v_bfe_u32 v%d, v1, 4, 1' % t3)
        a('v_lshl_add_u32 v%d, v%d, 5, v%d' % (t2, t3, t2))
        a('v_bfe_u32 v%d, v1, 3, 1' % t3)
        a('v_lshl_add_u32 v%d, v%d, 6, v%d' % (t2, t3, t2))
        a('v_lshl_add_u32 v%d, v%d, 7, v%d' % (t2, t0, t2))
        a('v_lshl_add_u32 v%d, v%d, 10, v%d' % (t3, t1, t2))
        if ch:
            a('v_xor_b32 v%d, 64, v%d' % (t3, t3))
        a('v_add_u32 v%d, %d, v%d' % (self.vWr, W_BASE, t3))
        a('v_add_u32 v%d, 49152, v%d' % (self.vWr + 1, self.vWr))
        a('v_lshl_add_u32 v%d, v%d, 9, v%d' % (t3, t1, t2))
        a('s_and_b32 s%d, s%d, 1' % (sT0, sWV))
        a('s_lshl_b32 s%d, s%d, 6' % (sT0, sT0))
        a('v_xor_b32 v%d, s%d, v%d' % (t3, sT0, t3))
        a('v_add_u32 v%d, s%d, v%d' % (self.vUr, sP, t3))
        a('v_xor_b32 v%d, 64, v%d' % (self.vUr + 1, self.vUr))
        a('v_add_u32 v%d, 0x10000, v%d' % (self.vUr + 2, self.vUr))
        a('v_add_u32 v%d, 0x10000, v%d' % (self.vUr + 3, self.vUr + 1))
        for r, val in ((sC1, GC1), (sC1 + 1, GC1), (sLOG, LOG2E), (sONE, 1.0), (sONE + 1, 1.0)):
            a('s_mov_b32 s%d, 0x%x' % (r, f2u(val)))
        if not isA:
            a('v_mov_b32 v%d, 0x%x' % (self.vC0, f2u(GC0)))
            a('v_mov_b32 v%d, 0x%x' % (self.vC0 + 1, f2u(GC0)))
        self.stamp(a, 's1', True)
        self.save_early(a)
        self.mksrd(a, S_DBG, P_DBG, 256)
        if isb:
            self.mksrd(a, S_U, P_W2, 1376 * 1024)
            self.mksrd(a, S_M1, P_B2, 1024)
        else:
            self.mksrd(a, S_U, P_WO, 512 * 1024)
        self.mksrd(a, S_OUT, P_OUT, 2048 * 1024)
        if isb:
            a('s_mul_i32 s%d, s%d, 11' % (sT0, sJ))
            a('s_cmp_eq_u32 s%d, 3' % sJ)
            a('s_cselect_b32 s%d, 5, 6' % sT1)
            a('s_cselect_b32 s%d, 0x%x, 0' % (sT2, OOB))
            a('s_add_u32 s%d, s%d, s%d' % (sT1, sT1, sT0))
            a('s_lshl_b32 s%d, s%d, 15' % (sUA, sT0))
            a('s_lshl_b32 s%d, s%d, 15' % (sUB, sT1))
            a('s_add_u32 s%d, s%d, %d' % (sUA5, sUA, 5 * 32768))
            a('s_add_u32 s%d, s%d, s%d' % (sUA5, sUA5, sT2))
            a('s_add_u32 s%d, s%d, 16' % (sT0, sT0))
            a('s_add_u32 s%d, s%d, 16' % (sT1, sT1))
            a('s_lshl_b32 s%d, s%d, 17' % (sAA, sT0))
            a('s_lshl_b32 s%d, s%d, 17' % (sAB, sT1))
            a('s_add_u32 s%d, s%d, %d' % (sAA5, sAA, 5 * UNIT))
            a('s_add_u32 s%d, s%d, s%d' % (sAA5, sAA5, sT2))
        else:
            a('s_lshl_b32 s%d, s%d, 17' % (sUA, sJ))
            a('s_lshl_b32 s%d, s%d, 19' % (sAA, sJ))
        a('s_lshl_b32 s%d, s%d, 1' % (sT0, sRT))
        a('s_lshr_b32 s%d, s%d, 1' % (sT1, sJ))
        a('s_add_u32 s%d, s%d, s%d' % (sT0, sT0, sT1))
        a('s_lshl_b32 s%d, s%d, 11' % (sT1, sT0))
        a('v_add_u32 v%d, s%d, v%d' % (self.vActLd, sT1, self.vL16))
        a('v_xor_b32 v%d, 2048, v%d' % (self.vActLd + 1, self.vActLd))
        a('s_lshl_b32 s%d, s%d, 4' % (sT0, sRB))
        a('s_add_u32 s%d, s%d, s%d' % (sT0, sT0, sCG))
        a('s_lshl_b32 s%d, s%d, 3' % (sT0, sT0))
        a('s_add_u32 s%d, s%d, s%d' % (sT0, sT0, sWV))
        a('s_lshl_b32 s%d, s%d, 9' % (sT0, sT0))
        a('s_add_u32 s%d, s%d, 0x%x' % (sT0, sT0, FLAG))
        a('v_mov_b32 v%d, s%d' % (self.vFlagW, sT0))
        a('s_lshr_b32 s%d, s%d, 1' % (sT0, sRT))
        a('s_lshl_b32 s%d, s%d, 3' % (sT0, sT0))
        a('s_add_u32 s%d, s%d, s%d' % (sT0, sT0, sJ))
        a('s_lshl_b32 s%d, s%d, 3' % (sT0, sT0))
        a('s_and_b32 s%d, s%d, 1' % (sT1, sRT))
        a('s_add_u32 s%d, s%d, s%d' % (sT0, sT0, sT1))
        a('s_lshl_b32 s%d, s%d, 10' % (sT0, sT0))
        a('s_add_u32 s%d, s%d, 0x%x' % (sT0, sT0, FLAG + (8 * 4096 if isb else 0)))
        a('v_and_b32 v%d, 1, v1' % t0)
        a('v_bfe_u32 v%d, v1, 1, 1' % t2)
        a('v_lshlrev_b32 v%d, 12, v%d' % (t0, t0))
        a('v_lshl_add_u32 v%d, v%d, 9, v%d' % (t0, t2, t0))
        a('v_bfe_u32 v%d, v1, 2, 1' % t2)
        a('v_lshl_add_u32 v%d, v%d, 11, v%d' % (t0, t2, t0))
        if not isb:
            a('v_bfe_u32 v%d, v1, 3, 1' % t2)
            a('v_lshl_add_u32 v%d, v%d, 15, v%d' % (t0, t2, t0))
        a('v_add_u32 v%d, s%d, v%d' % (self.vFlagR, sT0, t0))
        if isA:
            a('s_lshl_b32 s%d, s%d, 12' % (sT0, sWV))
            a('s_add_u32 s%d, s%d, %d' % (sT0, sT0, W_BASE))
            a('v_add_u32 v%d, s%d, v%d' % (self.vMisc, sT0, self.vL16))
        a('v_mov_b32 v%d, 0' % self.vTmp)
        self.stamp(a, 'setup')

        PF = 2
        bar_chunks = list(range(o.bfine)) + list(range(o.bfine, 24, o.bgroup))

        def bar_n(c):
            return max(0, 4 * c - PF)

        def wbuf(n):
            return self.wf + (n % 3) * 4

        def reads_for(n):
            c, s = divmod(n, 4)
            win, sl = divmod(c % NSLOT, 6)
            if gate and n >= 64:
                return ['ds_read_b128 %s, v%d offset:%d' % (vr(wbuf(n), 4), self.vMisc, 3 * REG + 32 * (n % 32))]
            return ['ds_read_b64_tr_b16 %s, v%d offset:%d' % (vr(wbuf(n) + 2 * rd, 2), self.vWr + win, sl * 8192 + (16 * s + 4 * rd) * 128)
                    for rd in range(2)]

        def barrier_for(c):
            nxt = [x for x in bar_chunks if x > c]
            last = (nxt[0] if nxt else 24) - 1
            tags = [('w', k) for k in range(c, last + 1)] + [('x', k) for k in range(c, last + 1)]
            a.wait_both(tags, [('xr', k) for k in range(c)])
            a('s_barrier')

        def xreads(c):
            for s in range(4):
                a.ds('ds_read_b128 %s, v%d offset:%d' % (vr(self.blk(c) + 4 * s, 4), self.vXr + s, (c & 3) * REG), tag=('xr', c))

        allbars = bar_chunks + [24]

        def first_bar(cmin):
            return bar_n([x for x in allbars if x >= cmin][0])
        piece_free = {}
        for s in range(4):
            piece_free[s] = first_bar(5 + s)
        for s in range(3):
            piece_free[4 + s] = first_bar(15 + 2 * s)
        if isA:
            piece_free[4] = piece_free[5] = first_bar(24)
        if gate:
            piece_free[3] = 96
        free = sorted((t, p) for p, t in piece_free.items())
        plan = {n: [] for n in range(96)}
        nx, nw, nu = o.pre, o.pre, 0
        upiece = {}
        credit = 0.0
        rates = [float(x) for x in (o.rateb if isb else o.ratea).split(',')]
        for n in range(96):
            credit = min(credit + rates[n // 32], 3.0)
            while True:
                if nx < 8 and (nx < 4 or first_bar(nx - 3) <= n) and nx <= nw + o.xlead:
                    if credit < 2:
                        break
                    plan[n].append(('x', nx))
                    nx += 1
                    credit -= 2
                elif nw < 24 and (nw < 12 or first_bar(nw - 10) <= n):
                    if credit < 1:
                        break
                    plan[n].append(('w', nw))
                    nw += 1
                    credit -= 1
                elif nu < NH and free and free[0][0] <= n and n >= o.ustart:
                    if credit < 2:
                        break
                    upiece[nu] = free.pop(0)[1]
                    plan[n].append(('u', nu))
                    nu += 1
                    credit -= 2
                else:
                    break
        assert nx == 8 and nw == 24
        for n in range(96):
            for k, c in plan[n]:
                if k in 'xw':
                    pub = [x for x in bar_chunks if x <= c][-1]
                    assert n < bar_n(pub), (var, role, k, c, n)
        if o.verbose:
            print(var + role, 'plan:', {k: v for k, v in plan.items() if v})

        def emit(op):
            if callable(op):
                op()
            elif isinstance(op, list):
                for tx, tg in op:
                    a(tx, tag=tg)
            elif op.startswith('ds_'):
                a.ds(op)
            else:
                a(op)

        def cost(op):
            if callable(op):
                return 3
            if isinstance(op, list):
                return 3
            return 2 if op.startswith(('v_exp', 'v_rcp', 'v_mfma')) else 1

        def flag_store(level, tag):
            a.wait_vm(tag)
            a('buffer_store_dword v%d, v%d, %s, 0 offen offset:%d sc1' % (self.vEpoch, self.vFlagW, srd(S_WS), 128 * level), tag='flag')

        def ep_load(aa):
            aa('buffer_load_dword v%d, v%d, %s, 0 offen sc1' % (self.vEpoch, self.vTmp, srd(S_DBG)), tag='poll')

        def ep_cmp(aa):
            aa('v_cmp_ne_u32 vcc, 0, v%d' % self.vEpoch)

        def in_load(aa):
            aa('s_lshl_b32 s%d, s%d, 2' % (sT2, sGRP))
            aa('buffer_load_dword v%d, v%d, %s, s%d offen offset:128 sc1' % (self.vPoll, self.vTmp, srd(S_DBG), sT2), tag='poll')

        def in_cmp(aa):
            aa('v_cmp_eq_u32 vcc, 1, v%d' % self.vPoll)

        def lvl_load(level):
            def f(aa):
                aa('buffer_load_dword v%d, v%d, %s, 0 offen offset:%d sc1' % (self.vPoll, self.vFlagR, srd(S_WS), 128 * level), tag='poll')
            return f

        def lvl_cmp(aa):
            aa('v_cmp_eq_u32 vcc, v%d, v%d' % (self.vEpoch, self.vPoll))

        def acc(p):
            return self.acc1 if p & 1 else self.acc0

        def kvres(hb):
            return self.blk(0) if hb else self.acc1

        def epilogue_ops(p, packed):
            if isA:
                if p == 0:
                    return self.phi_ops(acc(0), self.pk)
                if p == 1:
                    ones, vmod = self.vBias, self.et
                    ops = ['v_mov_b32 v%d, 0x3f803f80' % ones,
                           'v_bfe_u32 v%d, v1, 4, 1' % (ones + 1),
                           'v_cmp_eq_u32 vcc, 1, v%d' % (ones + 1)]
                    ops += ['v_cvt_pk_bf16_f32 v%d, v%d, v%d' % (self.pk2 + j, acc(1) + 2 * j, acc(1) + 2 * j + 1) for j in range(8)]
                    ops += ['v_cndmask_b32 v%d, v%d, v%d, vcc' % (vmod + j, self.pk2 + j, ones) for j in range(8)]
                    ops += ['v_cndmask_b32 v%d, v%d, v%d, vcc' % (self.pk2 + j, ones, self.pk2 + j) for j in range(8)]
                    for hb in range(2):
                        d = vr(kvres(hb), 16)
                        for g in range(2):
                            ops.append(MFMA % (d, vr(self.pk + 4 * g, 4), vr((self.pk2 if hb else vmod) + 4 * g, 4), '0' if g == 0 else d))
                    return ops
                return self.with_stores(self.phi_ops(acc(2), self.pk), self.pk, ch, 'st2')
            if gate and p == 2:
                x, e = acc(2), self.et
                return ['v_mul_f32 v%d, s%d, v%d' % (e, sLOG, x),
                        'v_exp_f32 v%d, -v%d' % (e, e),
                        'v_add_f32 v%d, 1.0, v%d' % (e, e),
                        'v_rcp_f32 v%d, v%d' % (e, e),
                        [('buffer_store_dword v%d, v%d, %s, 0 offen sc1' % (e, self.vMisc + 1, srd(S_WS)), 'st2')]]
            pkb = self.pk2 if p == 1 else self.pk
            return self.with_stores(self.gelu_ops(acc(p), pkb, packed), pkb, 2 * p + ch, 'st%d' % p)

        def kv_write():
            for hb in range(2):
                src = kvres(hb) + 8 * hb
                for q in range(2):
                    a.ds('ds_write_b128 v%d, %s offset:%d' % (self.vMisc, vr(src + 4 * q, 4), hb * 2048 + q * 1024), tag='kvw')

        def kv_reduce():
            d = self.acc1
            ad, az = self.vSp, self.vSp + 1
            a('s_lshr_b32 s%d, s%d, 1' % (sT2, sJ))
            a('s_lshl_b32 s%d, s%d, 14' % (sT2, sT2))
            a('s_and_b32 s%d, s%d, 1' % (sT3, sJ))
            a('s_mul_i32 s%d, s%d, %d' % (sT0, sT3, 2048 + 256))
            a('s_add_u32 s%d, s%d, s%d' % (sT0, sT0, sT2))
            a('s_add_u32 s%d, s%d, %d' % (sT0, sT0, W_BASE))
            a('v_lshl_add_u32 v%d, v1, 2, s%d' % (ad, sT0))
            for r in range(4):
                for q in range(2):
                    a.ds('ds_read2st64_b32 %s, v%d offset0:%d offset1:%d' % (vr(d + r * 4 + 2 * q, 2), ad, r * 16 + q * 4, r * 16 + q * 4 + 2), tag='kvr')
            a('s_xor_b32 s%d, s%d, 256' % (sT0, sT0))
            a('v_bfe_u32 v%d, v1, 2, 2' % az)
            a('v_and_b32 v%d, 3, v1' % (az + 1))
            a('v_lshlrev_b32 v%d, 2, v%d' % (az + 1, az + 1))
            a('v_lshl_add_u32 v%d, v%d, 9, v%d' % (az + 2, az, az + 1))
            a('v_add_u32 v%d, s%d, v%d' % (az + 2, sT0, az + 2))
            for r in range(0, 4, 2):
                a.ds('ds_read2st64_b32 %s, v%d offset0:%d offset1:%d' % (vr(d + 16 + r, 2), az + 2, r * 16, r * 16 + 16), tag='kvr')
            a('v_bfe_u32 v%d, v1, 3, 1' % az)
            a('v_mul_u32_u24 v%d, %d, v%d' % (az, QSTR - 32, az))
            a('v_lshl_add_u32 v%d, v1, 2, v%d' % (az, az))
            a('v_mov_b32 v%d, 0x%x' % (az + 1, OOB))
            a('v_cmp_gt_u32 vcc, 16, v1')
            a('v_cndmask_b32 v%d, v%d, v%d, vcc' % (az, az + 1, az))
            a('v_lshlrev_b32 v%d, 2, v1' % (az + 1))
            a('s_lshl_b32 s%d, s%d, 2' % (sT2, sGRP))
            a('s_add_u32 s%d, s%d, s%d' % (sT2, sT2, sJ))
            a('s_mul_i32 s%d, s%d, %d' % (sKVB, sT2, HSTR))
            a('s_add_u32 s%d, s%d, 0x%x' % (sKVB, sKVB, KVACC))

        def kv_atomics():
            d = self.acc1
            az = self.vSp + 1
            for k in range(4):
                a('v_add_f32 v%d, v%d, v%d' % (d + k, d + k, d + 4 + k))
                a('v_add_f32 v%d, v%d, v%d' % (d + 8 + k, d + 8 + k, d + 12 + k))
            a('v_add_f32 v%d, v%d, v%d' % (d + 16, d + 16, d + 17))
            a('v_add_f32 v%d, v%d, v%d' % (d + 18, d + 18, d + 19))
            for k in range(4):
                a('v_add_f32 v%d, v%d, v%d' % (d + k, d + k, d + 8 + k))
            a('v_add_f32 v%d, v%d, v%d' % (d + 16, d + 16, d + 18))
            self.check(a, in_load, in_cmp)
            for k in range(4):
                a('buffer_atomic_add_f32 v%d, v%d, %s, s%d offen offset:%d' % (d + k, az + 1, srd(S_WS), sKVB, (k >> 1) * QSTR + (k & 1) * 256), tag='kva')
            a('buffer_atomic_add_f32 v%d, v%d, %s, s%d offen offset:512' % (d + 16, az, srd(S_WS), sKVB), tag='kva')

        def kv_count():
            az = self.vSp + 1
            a('v_mov_b32 v%d, 0x%x' % (az, OOB))
            a('v_cmp_eq_u32 vcc, 0, v1')
            a('v_cndmask_b32 v%d, v%d, v1, vcc' % (az, az))
            a('v_mov_b32 v%d, 1' % (az + 1))
            a('s_lshl_b32 s%d, s%d, 2' % (sT2, sGRP))
            a('s_add_u32 s%d, s%d, s%d' % (sT2, sT2, sJ))
            a('s_lshl_b32 s%d, s%d, 7' % (sT2, sT2))
            a('s_add_u32 s%d, s%d, 0x%x' % (sT2, sT2, CNT))
            a.wait_vm('kva')
            a('buffer_atomic_add v%d, v%d, %s, s%d offen' % (az + 1, az, srd(S_WS), sT2), tag='flag')

        def init_pub():
            skip = self.newlabel('nopub')
            a('s_or_b32 s%d, s%d, s%d' % (sT3, sRB, sJ))
            a('s_cbranch_scc1 ' + skip)
            a('v_mov_b32 v%d, 1' % self.vPoll)
            a('s_lshl_b32 s%d, s%d, 2' % (sT2, sGRP))
            a('buffer_store_dword v%d, v%d, %s, s%d offen offset:128 sc1' % (self.vPoll, self.vTmp, srd(S_DBG), sT2), count=False)
            a.label(skip)

        def epoch_pub():
            skip = self.newlabel('nopub')
            a('s_or_b32 s%d, s2, s%d' % (sT3, sWV))
            a('s_cbranch_scc1 ' + skip)
            a._put('s_waitcnt lgkmcnt(0)')
            a('s_or_b32 s%d, s%d, 1' % (sE, sE))
            a('s_add_u32 s%d, s%d, 2' % (sE, sE))
            a('v_mov_b32 v%d, s%d' % (self.vPoll, sE))
            a('s_mov_b32 s%d, 0x%x' % (sT3, EOFF))
            a('buffer_store_dword v%d, v%d, %s, 0 offen sc1' % (self.vPoll, self.vTmp, srd(S_DBG)), count=False)
            a('buffer_store_dword v%d, v%d, %s, s%d offen sc1' % (self.vPoll, self.vTmp, srd(S_WS), sT3), count=False)
            a.label(skip)
            a.lgmax += 1

        def gate_dma():
            a('s_add_u32 m0, s%d, %d' % (sP, 3 * REG))
            a('buffer_load_dwordx4 v%d, %s, 0 offen lds' % (self.vL16, srd(S_M2)), tag='gate')

        extra = {n: [] for n in range(97)}
        extra[o.ep_issue].append(lambda: ep_load(a))
        extra[o.ep_check].append(lambda: self.check(a, ep_load, ep_cmp))
        if isA and isb:
            extra[bar_n(o.pre - 1) + 1].append(init_pub)
        if isA and not isb:
            extra[o.pub_n].append(epoch_pub)
        if gate:
            extra[36].append(gate_dma)
        if not isA:
            extra[o.l1_n].append(lambda: flag_store(0, 'st0'))
        if isA:
            extra[o.kvw_n].append(kv_write)
            assert o.kvw_n < bar_n(o.kv_bar) and o.kv_bar in bar_chunks
            if not isb:
                extra[o.kvw_n - 4].append(lambda: in_load(a))
                extra[bar_n(o.kv_bar)].append(kv_reduce)
                extra[bar_n(o.kv_bar) + 2].append(kv_atomics)
        nact = 0
        if isb and o.p1_issue < 96:
            extra[o.p1_issue].append(lambda: lvl_load(0)(a))
            extra[o.p1_check].append(lambda: self.check(a, lvl_load(0), lvl_cmp))
            n = o.p1_check
            while n < 96 and nact < 8:
                m, g = divmod(nact, 2)
                assert n >= 68 + 4 * m
                extra[n].append(lambda m=m, g=g: self.load_act(a, m, g, m))
                nact += 1
                n += o.act_gap

        barrier_for(0)
        self.stamp(a, 'first')
        xreads(0)
        for n in range(PF):
            for tx in reads_for(n):
                a.ds(tx)

        vq = []
        for n in range(96):
            p, s32 = divmod(n, 32)
            if s32 == 0:
                vq = epilogue_ops(p - 1, False) if p else []
                vtot = sum(cost(x) for x in vq)
                vdone = 0
                vspan = (o.vstart, o.vend)
                if isA and p == 2:
                    vspan = (max(o.vstart, 1), o.vend_kv)
                if p:
                    self.stamp(a, 'pass%d' % (p - 1))
            if n % 4 == 0:
                self.stamp(a, 'c%d' % (n // 4))
            nn = n + PF
            if nn < 96 and nn % 4 == 0:
                cb = nn // 4
                if cb in bar_chunks:
                    if isA and cb == o.kv_bar:
                        a.wait_lg('kvw')
                    barrier_for(cb)
                if gate and cb == 16:
                    a.wait_vm('gate')
                if cb < 8:
                    xreads(cb)
            if nn == 96:
                if isA:
                    a.wait_lg('kvr')
                a('s_barrier')
            xf = vr(self.XA + 4 * s32, 4)
            wf = vr(wbuf(n), 4)
            d = vr(acc(p), 16)
            first = s32 == 0
            if first and not isA and not (gate and p == 2):
                bb, sel = [(0, 2), (0, 0), (2, 0)][p]
                a(MFMA % (d, vr(self.vBias + bb, 4), vr(self.vSel + sel, 4), '0'))
                first = False
            A_, B_ = (xf, wf) if (isA and p < 2) else (wf, xf)
            a(MFMA % (d, A_, B_, '0' if first else d))
            if nn < 96:
                for tx in reads_for(nn):
                    a.ds(tx)
            if vq and s32 >= vspan[0]:
                frac = min(1.0, (s32 - vspan[0] + 1) / float(vspan[1] - vspan[0]))
                while vq and vdone < frac * vtot:
                    op = vq.pop(0)
                    if isinstance(op, str) and op.startswith('v_mfma') and ('v[%d:' % self.blk(0)) in op.split(',')[0]:
                        assert n >= 68
                    vdone += cost(op)
                    emit(op)
            for it in extra[n]:
                it()
            for k, c in plan[n]:
                if k == 'x':
                    self.dma_x(a, c)
                elif k == 'w':
                    self.dma_w(a, c)
                else:
                    self.dma_u(a, c, upiece[c])
            if s32 == 31:
                assert not vq
        self.stamp(a, 'pass2')

        vq = epilogue_ops(2, o.pk_final)
        side = []
        freep = [p for t, p in free]
        state = dict(nu=nu, nr=0, nact=nact)

        def issue_u():
            if state['nu'] < NH and freep:
                h = state['nu']
                pc, prev = freep.pop(0) if isinstance(freep[0], tuple) else (freep.pop(0), None)
                if prev is not None:
                    a.wait_lg(('ur', prev))
                upiece[h] = pc
                self.dma_u(a, h, pc)
                state['nu'] += 1

        def read_next():
            h = state['nr']
            assert h < state['nu']
            self.read_u(a, h, upiece[h])
            freep.append((upiece[h], h))
            state['nr'] += 1

        def act_next(limit):
            if state['nact'] < limit:
                m, g = divmod(state['nact'], 2)
                self.load_act(a, m, g, m % 8)
                state['nact'] += 1

        if gate:
            side.append(lambda: a.wait_all(vm=False))
        for i in range(len(freep)):
            side.append(issue_u)
        if isb:
            if o.p1_issue >= 96:
                side.insert(0, lambda: lvl_load(0)(a))
            else:
                for i in range(8 - nact):
                    side.append(lambda: act_next(8))
        if not isA:
            side.insert(min(len(side), o.l2_pos), lambda: flag_store(1, 'st1'))
        elif not isb:
            side.append(kv_count)
        k = max(1, len(vq) // (len(side) + 1))
        for j, op in enumerate(vq):
            if side and j % k == k - 1:
                side.pop(0)()
            emit(op)
        for it in side:
            it()
        self.stamp(a, 'epi')

        def acc2(t, rt):
            return self.acc2 + 16 * (rt * 2 + t)

        a('v_and_b32 v%d, 31, v1' % t1)

        def g_load():
            a('s_lshl_b32 s%d, s%d, 13' % (sT0, sJ))
            a('s_add_u32 s%d, s%d, 0x%x' % (sT0, sT0, GOFF))
            a('v_lshrrev_b32 v%d, 11, v%d' % (t2, self.vActLd))
            a('v_lshlrev_b32 v%d, 7, v%d' % (t2, t2))
            a('v_lshl_add_u32 v%d, v%d, 2, v%d' % (t2, t1, t2))
            a('buffer_load_dword v%d, v%d, %s, s%d offen sc1' % (self.vG, t2, srd(S_WS), sT0), tag='g')

        if isb:
            a('s_cmp_eq_u32 s%d, 0' % sJ)
            a('s_cselect_b32 s%d, 0, 0x%x' % (sT2, OOB))
            a('s_lshl_b32 s%d, s%d, 7' % (sT3, sCT))
            a('s_add_u32 s%d, s%d, s%d' % (sT2, sT2, sT3))
            a('v_lshlrev_b32 v%d, 1, v%d' % (t2, t1))
            for t in range(2):
                a('v_mov_b32 v%d, 0' % (self.vB2 + 2 * t + 1))
                a('buffer_load_ushort v%d, v%d, %s, s%d offen offset:%d' % (self.vB2 + 2 * t, t2, srd(S_M1), sT2, 64 * t), tag='bias')
            if o.p1_issue >= 96:
                self.check(a, lvl_load(0), lvl_cmp)
                for i in range(8):
                    act_next(8)
            self.stamp(a, 'P1')
            read_next()
            read_next()
            ev = {h: [] for h in range(NH)}

            def chk(level, name):
                def f():
                    self.check(a, lvl_load(level), lvl_cmp)
                    self.stamp(a, name)
                return f
            ev[o.b_l3].append(lambda: flag_store(2, 'st2'))
            ev[o.b_p2i].append(lambda: lvl_load(1)(a))
            ev[o.b_p2c].append(chk(1, 'P2'))
            ev[o.b_p3i].append(lambda: lvl_load(2)(a))
            ev[o.b_p3c].append(chk(2, 'P3'))
            ev[o.b_p3c].append(g_load)
            assert o.b_p2c <= o.b_p3i and o.b_l3 <= o.b_p3c
            for h in range(NH):
                m, g = divmod(h, 2)
                for f in ev[h]:
                    f()
                lim = 8 if h < o.b_p2c else (16 if h < o.b_p3c else NH)
                lim = min(lim, 2 * (m + 8))
                fill = [issue_u]
                if state['nr'] < NH:
                    fill.append(read_next)
                fill += [lambda: act_next(lim) for _ in range(o.b_actper)]
                assert state['nact'] > h
                for rt in range(2):
                    for t in range(2):
                        dd = vr(acc2(t, rt), 16)
                        a(MFMA % (dd, vr(self.ufrag(h, t), 4), vr(self.blk(m % 8) + 8 * g + 4 * rt, 4), '0' if h == 0 else dd))
                        if fill:
                            fill.pop(0)()
                for f in fill:
                    f()
                if h == 3:
                    for rt in range(2):
                        for t in range(2):
                            dd = vr(acc2(t, rt), 16)
                            a(MFMA % (dd, vr(self.vB2, 4), vr(self.vSel + (2 if t == 0 else 0), 4), dd))
        else:
            def cnt_load(aa):
                aa('buffer_load_dword v%d, v%d, %s, s%d offen sc1' % (self.vExp, t3, srd(S_WS), sT0), tag='poll')

            def cnt_cmp(aa):
                aa('v_cmp_eq_u32 vcc, 16, v%d' % self.vExp)
            a('s_lshl_b32 s%d, s%d, 10' % (sT0, sJ))
            a('s_add_u32 s%d, s%d, 0x%x' % (sT0, sT0, CNT))
            a('v_and_b32 v%d, 7, v1' % t3)
            a('v_lshlrev_b32 v%d, 7, v%d' % (t3, t3))
            read_next()
            read_next()
            for i in range(3):
                issue_u()
            flag_store(2, 'st2')
            cnt_load(a)
            lvl_load(2)(a)
            vkv = self.vB2
            a('v_lshrrev_b32 v%d, 5, v1' % t2)
            a('v_lshlrev_b32 v%d, 4, v%d' % (vkv, t1))
            a('v_lshl_add_u32 v%d, v%d, 8, v%d' % (vkv, t2, vkv))
            a('v_lshlrev_b32 v%d, 4, v%d' % (t2, t2))
            a('v_add_u32 v%d, 512, v%d' % (t2, t2))
            a('v_cmp_gt_u32 vcc, 16, v%d' % t1)
            a('v_cndmask_b32 v%d, v%d, v%d, vcc' % (vkv, t2, vkv))
            a('s_mul_i32 s%d, s%d, %d' % (sT2, sJ, 8 * HSTR))
            a('s_add_u32 s%d, s%d, %d' % (sT2, sT2, KVA))
            a('v_add_u32 v%d, s%d, v%d' % (vkv, sT2, vkv))
            a('s_mul_i32 s%d, s%d, %d' % (sKVB, sJ, 8 * HSTR))
            a('s_add_u32 s%d, s%d, 0x%x' % (sKVB, sKVB, KVACC))
            self.check(a, cnt_load, cnt_cmp)
            self.stamp(a, 'P1')
            for i in range(9):
                if i % 4 == 0:
                    a('s_add_u32 m0, s%d, %d' % (sT2, 1024 * i))
                    a('s_add_u32 s%d, s%d, %d' % (sT1, sKVB, 1024 * i))
                a('buffer_load_dwordx4 v%d, %s, s%d offen offset:%d sc1 lds' % (self.vL16, srd(S_WS), sT1, 1024 * (i % 4)), tag=('kv', i))
            self.check(a, lvl_load(2), lvl_cmp)
            self.stamp(a, 'P3')
            for i in range(8):
                act_next(8)
            g_load()
            nd = [self.blk(4), self.blk(5)]
            kraw = self.blk(6)
            kpk = self.blk(7)
            of = self.blk(7) + 8

            def kv_read(h):
                a.wait_vm(*[('kv', i) for i in range(((h + 1) * HSTR - 1) // 1024 + 1)])
                for q in range(2):
                    a.ds('ds_read_b128 %s, v%d offset:%d' % (vr(kraw + 8 * (h & 1) + 4 * q, 4), vkv, h * HSTR + q * QSTR))

            def kv_pack(h):
                for k in range(4):
                    a('v_cvt_pk_bf16_f32 v%d, v%d, v%d' % (kpk + 4 * (h & 1) + k, kraw + 8 * (h & 1) + 2 * k, kraw + 8 * (h & 1) + 2 * k + 1))

            def nd_mfma(i):
                h, rt = divmod(i, 2)
                a(MFMA % (vr(nd[i & 1], 16), vr(kpk + 4 * (h & 1), 4), vr(self.blk(h // 2) + 8 * (h & 1) + 4 * rt, 4), '0'))

            kv_read(0)
            kv_read(1)
            kv_pack(0)
            nd_mfma(0)
            for i in range(16):
                h, rt = divmod(i, 2)
                if rt == 1 and h + 1 < 8:
                    kv_pack(h + 1)
                    if h + 2 < 8:
                        kv_read(h + 2)
                if i + 1 < 16:
                    nd_mfma(i + 1)
                if rt == 0:
                    issue_u()
                    if state['nr'] < NH:
                        read_next()
                b = nd[i & 1]
                den = b + 8
                a('v_add_f32 v%d, 0x%x, v%d' % (den, f2u(1e-6), den))
                a('v_rcp_f32 v%d, v%d' % (den, den))
                for k in range(8):
                    a('v_mul_f32 v%d, v%d, v%d' % (b + k, b + k, den))
                ob = of + 4 * (i & 1)
                for k in range(4):
                    a('v_cvt_pk_bf16_f32 v%d, v%d, v%d' % (ob + k, b + 2 * k, b + 2 * k + 1))
                for t in range(2):
                    dd = vr(acc2(t, rt), 16)
                    a(MFMA % (dd, vr(self.ufrag(h, t), 4), vr(ob, 4), '0' if h == 0 else dd))
        self.stamp(a, 'mm')
        rho = ch

        def kidx(n, hh):
            return max(2 * n + hh - 1, 0)
        a('v_add_u32 v%d, s%d, v%d' % (t2, sP, self.vL16))
        a('v_add_u32 v%d, 0x10000, v%d' % (t3, t2))
        a.wait_all(vm=False)
        for n in (1, 0, 2, 3):
            for hh in range(2):
                if n == 0 and hh == rho:
                    continue
                k = kidx(n, hh)
                for q in range(2):
                    a.ds('ds_write_b128 v%d, %s offset:%d' % (t3 if k >= 4 else t2, vr(self.acc2 + 16 * n + 8 * hh + 4 * q, 4), (k & 3) * REG + q * 1024), tag='red')
        a('s_lshl_b32 s%d, s%d, 11' % (sT0, sJ))
        a('v_add_u32 v%d, s%d, v%d' % (t2, sT0, self.vL16))
        for n in range(4):
            a('v_xor_b32 v%d, 0x%x, v%d' % (self.vUr + n, kidx(n, rho) * REG + n * 2048, t2))
        a('s_lshl_b32 s%d, s%d, 1' % (sT0, sRT))
        a('s_lshr_b32 s%d, s%d, 1' % (sT1, sJ))
        a('s_add_u32 s%d, s%d, s%d' % (sT0, sT0, sT1))
        a('s_lshl_b32 s%d, s%d, 15' % (sT0, sT0))
        a('s_lshl_b32 s%d, s%d, 7' % (sT1, sCT))
        a('s_add_u32 s%d, s%d, s%d' % (sT0, sT0, sT1))
        a('s_and_b32 s%d, s%d, 1' % (sT1, sJ))
        a('s_lshl_b32 s%d, s%d, 6' % (sT1, sT1))
        a('s_add_u32 s%d, s%d, s%d' % (sT0, sT0, sT1))
        a('v_lshrrev_b32 v%d, 5, v1' % t3)
        a('v_lshlrev_b32 v%d, 4, v%d' % (t3, t3))
        a('v_lshl_add_u32 v%d, v%d, 10, v%d' % (t3, t1, t3))
        a.wait_lg('red')
        self.stamp(a, 'wr')
        a('s_barrier')
        self.stamp(a, 'bar')
        own = self.acc2 + 8 * rho
        rb_ = self.XA
        srcs = [(rs, n) for rs in range(2) for n in range(4) if not (rs == rho and n == 0)]
        for i, (rs, n) in enumerate(srcs):
            for q in range(2):
                a.ds('ds_read_b128 %s, v%d offset:%d' % (vr(rb_ + 8 * i + 4 * q, 4), self.vUr + n, rs * 8192 + q * 1024))
        sums = {rho: own}
        for i, (rs, n) in enumerate(srcs):
            if rs not in sums:
                sums[rs] = rb_ + 8 * i
                continue
            for k in range(0, 8, 2):
                a('v_pk_add_f32 %s, %s, %s' % (vr(sums[rs] + k, 2), vr(sums[rs] + k, 2), vr(rb_ + 8 * i + k, 2)))
        for k in range(8):
            a('v_sub_f32 v%d, v%d, v%d' % (sums[0] + k, sums[0] + k, sums[1] + k))
        for k in range(8):
            a('v_fma_f32 v%d, v%d, v%d, v%d' % (sums[0] + k, sums[0] + k, self.vG, sums[1] + k))
        ob = self.XA + 64
        for k in range(4):
            a('v_cvt_pk_bf16_f32 v%d, v%d, v%d' % (ob + k, sums[0] + 2 * k, sums[0] + 2 * k + 1))
        a('v_permlane32_swap_b32 v%d, v%d' % (ob, ob + 2))
        a('v_permlane32_swap_b32 v%d, v%d' % (ob + 1, ob + 3))
        a('buffer_store_dwordx4 %s, v%d, %s, s%d offen offset:%d' % (vr(ob, 4), t3, srd(S_OUT), sT0, 32 * rho))
        if o.diag:
            self.stamp(a, 'end')
            a._put('s_memrealtime s[86:87]')
            a.force_wait('lgkmcnt(0)')
            names = o.stamps.split(',')
            late = [x for x in names if x not in ('karg', 'd0', 'd1', 'd2', 'd3', 's1')]
            for i, nm in enumerate(a.stampn):
                a('s_sub_u32 s%d, s%d, s100' % (40 + 2 * i, 40 + 2 * i))
                a('v_writelane_b32 v%d, s%d, %d' % (self.vStamp, 40 + 2 * i, 6 + late.index(nm)))
            a('v_writelane_b32 v%d, s86, 31' % self.vStamp)
            a('v_writelane_b32 v%d, s98, 29' % self.vStamp)
            a('s_mov_b32 s%d, %d' % (sT0, 'FGA'.index(var) * 2 + ch))
            a('v_writelane_b32 v%d, s%d, 30' % (self.vStamp, sT0))
            a('s_getreg_b32 s%d, hwreg(HW_REG_XCC_ID)' % sT0)
            a('v_writelane_b32 v%d, s%d, 28' % (self.vStamp, sT0))
            a('s_getreg_b32 s%d, hwreg(HW_REG_HW_ID)' % sT0)
            a('v_writelane_b32 v%d, s%d, 27' % (self.vStamp, sT0))
            a('s_lshl_b32 s%d, s2, 3' % sT0)
            a('s_add_u32 s%d, s%d, s%d' % (sT0, sT0, sWV))
            a('s_lshl_b32 s%d, s%d, 7' % (sT0, sT0))
            a('s_add_u32 s%d, s%d, 0x%x' % (sT0, sT0, STAMP))
            a('v_lshlrev_b32 v%d, 2, v1' % t2)
            a('v_cmp_gt_u32 vcc, 32, v1')
            a('v_mov_b32 v%d, 0x40000000' % t3)
            a('v_cndmask_b32 v%d, v%d, v%d, vcc' % (t2, t3, t2))
            a('buffer_store_dword v%d, v%d, %s, s%d offen' % (self.vStamp, t2, srd(S_WS), sT0))
            self.stampnames = a.stampe + ['-'] * (6 - len(a.stampe)) + late
        a('s_endpgm')
        if o.verbose:
            print(var + role, 'insts', a.ninst, 'nop states', a.nnop, a.stats)

    def build(self):
        self.prologue()
        for pth in ['Ab', 'Aa', 'Fa', 'Fb', 'Ga', 'Gb']:
            self.path(pth[0], pth[1])
        self.a.label('L_end')
        self.a.raw('    s_endpgm')
        ref = open('cdna_kernels/%s.s.ref' % NAME).read().split('\n')
        head = [l for l in ref if l.startswith(';') and '@launch' not in l]
        out = '\n'.join(head) + '\n; generated by tools/gen2.py\n'
        out += '; @launch grid=(256,1,1) block=(512,1,1) lds=163840\n'
        out += '.amdgcn_target "amdgcn-amd-amdhsa--gfx950"\n.text\n.globl %s_kernel\n.p2align 8\n.type %s_kernel,@function\n' % (NAME, NAME)
        out += self.a.text()
        out += '''.section .rodata,"a"
.p2align 6
.amdhsa_kernel %s_kernel
  .amdhsa_next_free_vgpr 256
  .amdhsa_next_free_sgpr 102
  .amdhsa_accum_offset 256
  .amdhsa_group_segment_fixed_size 0
  .amdhsa_kernarg_size 96
  .amdhsa_user_sgpr_count 2
  .amdhsa_user_sgpr_kernarg_segment_ptr 1
  .amdhsa_system_sgpr_workgroup_id_x 1
.end_amdhsa_kernel
''' % NAME
        return out


def parse(argv=None):
    ap = argparse.ArgumentParser()
    ap.add_argument('-o', default='cdna_kernels/%s.s' % NAME)
    ap.add_argument('--diag', action='store_true')
    ap.add_argument('--verbose', action='store_true')
    ap.add_argument('--p2map', type=int, default=0)
    ap.add_argument('--pre', type=int, default=3)
    ap.add_argument('--xlead', type=int, default=0)
    ap.add_argument('--bfine', type=int, default=8)
    ap.add_argument('--bgroup', type=int, default=2)
    ap.add_argument('--ratea', default='1.0,0.5,0.5')
    ap.add_argument('--rateb', default='1.0,0.5,0.5')
    ap.add_argument('--ustart', type=int, default=0)
    ap.add_argument('--vstart', type=int, default=2)
    ap.add_argument('--vend', type=int, default=26)
    ap.add_argument('--vend_kv', type=int, default=10)
    ap.add_argument('--kvw_n', type=int, default=76)
    ap.add_argument('--kv_bar', type=int, default=20)
    ap.add_argument('--pub_n', type=int, default=0)
    ap.add_argument('--ep_issue', type=int, default=40)
    ap.add_argument('--ep_check', type=int, default=56)
    ap.add_argument('--l1_n', type=int, default=72)
    ap.add_argument('--p1_issue', type=int, default=82)
    ap.add_argument('--p1_check', type=int, default=92)
    ap.add_argument('--act_gap', type=int, default=1)
    ap.add_argument('--l2_pos', type=int, default=99)
    ap.add_argument('--b_l3', type=int, default=3)
    ap.add_argument('--b_p2i', type=int, default=2)
    ap.add_argument('--b_p2c', type=int, default=4)
    ap.add_argument('--b_p3i', type=int, default=8)
    ap.add_argument('--b_p3c', type=int, default=11)
    ap.add_argument('--b_actper', type=int, default=2)
    ap.add_argument('--pk_final', type=int, default=1)
    ap.add_argument('--spin', type=int, default=20000)
    ap.add_argument('--sleep', type=int, default=1)
    ap.add_argument('--stamps', default='karg,d0,d1,d2,s1,first,pass0,pass1,pass2,epi,P1,P2,P3,mm,wr,bar,end')
    ap.add_argument('--no', default='')
    return ap.parse_args(argv)


if __name__ == '__main__':
    o = parse()
    g = Gen(o)
    txt = g.build()
    open(o.o, 'w').write(txt)
    if o.diag:
        print('stamps:', g.stampnames)
        open(o.o[:-2] + '.stamps', 'w').write(' '.join(g.stampnames))
    print('wrote', o.o, len(txt), 'bytes')
```

```python
import sys, os, struct, argparse
sys.path.insert(0, os.path.dirname(os.path.abspath(__file__)))
from asmlib import Asm

NAME = "gated_mix__linear_attn_block__dense_activation_gelu__prompt"

UNIT = 131072
KVACC = 0x780000
HSTR, QSTR = 1152, 576
CNT = 0x78A000
GOFF = 0x792000
STAMP = 0x7C0000
FLAG = 0x800000
EOFF = 0x900000
WS_SIZE = 0x900080
OOB = 0x40000000

W_BASE = 65536
NSLOT = 12
REG = 16384
KVA = 7 * REG


def f2u(x):
    return struct.unpack('<I', struct.pack('<f', x))[0]


LOG2E = 1.4426950408889634
GC0 = -2.0 * 0.7978845608028654 * LOG2E
GC1 = GC0 * 0.044715

S_X, S_W, S_WS, S_U, S_OUT, S_DBG, S_M1, S_M2 = 4, 8, 12, 16, 20, 24, 28, 32
P_X, P_WQKV, P_WO, P_W1, P_B1, P_W2, P_B2, P_GATE, P_OUT, P_DBG, P_WS = 40, 42, 44, 48, 50, 52, 54, 56, 58, 60, 62
sWV, sJ, sRB, sCG, sGRP, sRT, sCT, sP, sWQ = 64, 65, 66, 67, 68, 69, 70, 71, 72
sT0, sT1, sT2, sT3 = 73, 74, 75, 76
sUST = 77
sUA, sUB, sUA5 = 78, 79, 80
sAA, sAB, sAA5 = 81, 82, 83
sE = 84
sSPIN = 85
sC1, sONE = 88, 90
sLOG = 92
sKVB = 93
sROT = 3
sXCD, sIDX = 86, 87
ESTAMP = [32, 34, 36, 38, 94, 96]


def srd(n):
    return 's[%d:%d]' % (n, n + 3)


def vr(b, n):
    return 'v[%d:%d]' % (b, b + n - 1)


class VAlloc:
    def __init__(self, start):
        self.n = start

    def get(self, cnt=1, align=1):
        self.n = (self.n + align - 1) // align * align
        r = self.n
        self.n += cnt
        return r


MFMA = 'v_mfma_f32_32x32x16_bf16 %s, %s, %s, %s'


class Gen:
    def __init__(self, opt):
        self.o = opt
        self.a = Asm()
        self.lbl = 0
        self.no = set(opt.no.split(','))
        va = VAlloc(2)
        g = va.get
        self.vL16 = g()
        self.vStamp = g()
        self.vUd = g(2)
        self.vUr = g(4)
        self.vActLd = g(2)
        self.vFlagW = g()
        self.vFlagR = g()
        self.vExp = g()
        self.vPoll = g()
        self.vEpoch = g()
        self.vG = g()
        self.vTmp = g(4, 2)
        self.vSel = g(6, 2)
        self.vB2 = g(4, 2)
        assert va.n <= 36, va.n
        va.n = 36
        self.acc2 = 36
        self.acc0 = g(16)
        self.wf = g(12)
        self.et = g(8)
        self.pk = g(8)
        self.vBias = g(6)
        self.vC0 = g(2)
        self.vXd = g(2)
        self.vXr = g(4)
        self.vWr = g(2)
        self.vMisc = g(2)
        self.vWd = g()
        self.vActSt = g()
        assert va.n == 100, va.n
        self.acc1 = g(16)
        self.pk2 = g(8)
        self.ubuf = 100
        self.vSp = g(4)
        assert va.n == 128
        self.XA = 128

    def blk(self, k):
        return self.XA + 16 * k

    def newlabel(self, s):
        self.lbl += 1
        return 'L%s_%d' % (s, self.lbl)

    def stamp(self, a, name, early=False):
        if not self.o.diag or name not in self.o.stamps.split(','):
            return
        if early:
            i = len(a.stampe)
            a.stampe.append(name)
            assert i < 6
            a._put('s_memtime s[%d:%d]' % (ESTAMP[i], ESTAMP[i] + 1))
            return
        i = len(a.stampn)
        a.stampn.append(name)
        assert i < 12
        a._put('s_memtime s[%d:%d]' % (40 + 2 * i, 41 + 2 * i))

    def save_early(self, a):
        if not self.o.diag:
            return
        a.force_wait('lgkmcnt(0)')
        a('v_mov_b32 v%d, 0' % self.vStamp)
        for i in range(len(a.stampe)):
            a('s_sub_u32 s%d, s%d, s100' % (ESTAMP[i], ESTAMP[i]))
            a('v_writelane_b32 v%d, s%d, %d' % (self.vStamp, ESTAMP[i], i))

    def mksrd(self, a, d, p, size):
        a('s_mov_b32 s%d, s%d' % (d, p))
        a('s_mov_b32 s%d, s%d' % (d + 1, p + 1))
        a('s_mov_b32 s%d, 0x%x' % (d + 2, size))
        a('s_mov_b32 s%d, 0x20000' % (d + 3))

    def prologue(self):
        a, o = self.a, self.o
        a.stampn, a.stampe = [], []
        a.label(NAME + '_kernel')
        a('s_cmp_ge_u32 s2, 256')
        a('s_cbranch_scc1 L_end')
        a._put('s_load_dwordx16 s[40:55], s[0:1], 0')
        a._put('s_load_dwordx8 s[56:63], s[0:1], 64')
        if o.diag:
            a._put('s_memtime s[100:101]')
            a._put('s_memrealtime s[98:99]')
        a('v_lshrrev_b32 v1, 6, v0')
        a('s_and_b32 s%d, s2, 7' % sT0)
        a('v_readfirstlane_b32 s%d, v1' % sWV)
        a('s_lshr_b32 s%d, s2, 3' % sT1)
        a('v_and_b32 v1, 63, v0')
        a('s_and_b32 s%d, s%d, 1' % (sRB, sT0))
        a('s_lshl_b32 s%d, s%d, 3' % (sRB, sRB))
        a('s_and_b32 s%d, s%d, 7' % (sT2, sT1))
        a('s_add_u32 s%d, s%d, s%d' % (sRB, sRB, sT2))
        a('s_lshr_b32 s%d, s%d, 1' % (sCG, sT0))
        a('s_lshl_b32 s%d, s%d, 2' % (sCG, sCG))
        a('s_lshr_b32 s%d, s%d, 3' % (sT2, sT1))
        a('s_add_u32 s%d, s%d, s%d' % (sCG, sCG, sT2))
        a('s_and_b32 s%d, s%d, 7' % (sGRP, sCG))
        if o.p2map == 0:
            a('s_lshl_b32 s%d, s%d, 2' % (sRT, sT0))
            a('s_and_b32 s%d, s%d, 3' % (sT2, sT1))
            a('s_add_u32 s%d, s%d, s%d' % (sRT, sRT, sT2))
            a('s_lshr_b32 s%d, s%d, 2' % (sCT, sT1))
        else:
            a('s_lshr_b32 s%d, s%d, 1' % (sRT, sT0))
            a('s_lshl_b32 s%d, s%d, 3' % (sRT, sRT))
            a('s_and_b32 s%d, s%d, 7' % (sT2, sT1))
            a('s_add_u32 s%d, s%d, s%d' % (sRT, sRT, sT2))
            a('s_and_b32 s%d, s%d, 1' % (sCT, sT0))
            a('s_lshl_b32 s%d, s%d, 2' % (sCT, sCT))
            a('s_lshr_b32 s%d, s%d, 3' % (sT2, sT1))
            a('s_add_u32 s%d, s%d, s%d' % (sCT, sCT, sT2))
        a('s_and_b32 s%d, s%d, 3' % (sJ, sWV))
        a('s_mov_b32 s%d, s%d' % (sXCD, sT0))
        a('s_mov_b32 s%d, s%d' % (sIDX, sT1))
        if o.rot == 1:
            a('s_lshr_b32 s%d, s%d, 3' % (sT2, sT1))
            a('s_lshl_b32 s%d, s%d, 1' % (sT2, sT2))
            a('s_add_u32 s%d, s%d, s%d' % (sROT, sT1, sT2))
            a('s_bfe_u32 s%d, s%d, 0x10001' % (sT2, sT0))
            a('s_add_u32 s%d, s%d, s%d' % (sROT, sROT, sT2))
            a('s_and_b32 s%d, s%d, 7' % (sROT, sROT))
        a('s_lshl_b32 s%d, s%d, 11' % (sP, sWV))
        a('s_lshl_b32 s%d, s%d, 10' % (sWQ, sWV))
        a('s_add_u32 s%d, s%d, %d' % (sWQ, sWQ, W_BASE))
        t0, t1, t2, t3 = [self.vTmp + i for i in range(4)]
        a('v_lshrrev_b32 v%d, 3, v1' % t0)
        a('v_and_b32 v%d, 7, v1' % t1)
        a('v_lshrrev_b32 v%d, 4, v1' % t2)
        a('v_xor_b32 v%d, v%d, v%d' % (t3, t1, t2))
        a('v_lshlrev_b32 v%d, 4, v%d' % (t3, t3))
        a('v_lshl_add_u32 v%d, v%d, 10, v%d' % (t3, t0, t3))
        a('s_lshl_b32 s%d, s%d, 3' % (sT2, sRB))
        a('s_add_u32 s%d, s%d, s%d' % (sT2, sT2, sWV))
        a('s_lshl_b32 s%d, s%d, 14' % (sT3, sT2))
        a('v_add_u32 v%d, s%d, v%d' % (self.vXd, sT3, t3))
        a('v_xor_b32 v%d, 64, v%d' % (self.vXd + 1, self.vXd))
        a('v_add_u32 v%d, %d, v%d' % (self.vXd + 1, 7168, self.vXd + 1))
        a('v_and_b32 v%d, 1, v%d' % (t2, t2))
        a('v_lshlrev_b32 v%d, 2, v%d' % (t2, t2))
        a('v_xor_b32 v%d, v%d, v%d' % (t1, t1, t2))
        a('v_lshlrev_b32 v%d, 4, v%d' % (t1, t1))
        a('v_lshlrev_b32 v%d, 4, v1' % self.vL16)
        a('s_and_b32 s%d, s%d, 1' % (sT3, sGRP))
        a('s_cmp_eq_u32 s%d, 6' % sGRP)
        a('s_cselect_b32 s%d, 1, s%d' % (sT3, sT3))
        a('s_cmp_lt_u32 s%d, 8' % sCG)
        a('s_cselect_b32 s%d, 2, s%d' % (sT3, sT3))
        a('s_lshl_b32 s%d, s%d, 1' % (sT3, sT3))
        a('s_lshr_b32 s%d, s%d, 2' % (sT2, sWV))
        a('s_add_u32 s%d, s%d, s%d' % (sT3, sT3, sT2))
        a('s_add_u32 m0, s%d, 0' % sP)
        for i, nm in enumerate(['Fa', 'Fb', 'Ga', 'Gb', 'Aa']):
            a('s_cmp_eq_u32 s%d, %d' % (sT3, i))
            a('s_cbranch_scc1 L_path' + nm)

    def rotc(self, a, dst, c):
        if c:
            a('s_add_u32 s%d, s%d, %d' % (dst, sROT, c))
            a('s_and_b32 s%d, s%d, 7' % (dst, dst))
            return dst
        return sROT

    def dma_x(self, a, c):
        if c:
            a('s_add_u32 m0, s%d, %d' % (sP, (c & 3) * REG))
        so = 's%d' % sT0
        if self.o.rot:
            a('s_lshl_b32 s%d, s%d, 7' % (sT0, self.rotc(a, sT0, c)))
        elif c:
            a('s_movk_i32 s%d, %d' % (sT0, c * 128))
        else:
            so = '0'
        for i in range(2):
            a('buffer_load_dwordx4 v%d, %s, %s offen offset:%d lds' % (self.vXd + i, srd(S_X), so, 1024 * i), tag=('x', c))

    def dma_w(self, a, n):
        if 'w' in self.no and n >= 4:
            return
        p, c = divmod(n, 8)
        a('s_add_u32 m0, s%d, %d' % (sWQ, (n % NSLOT) * 8192))
        if self.o.rot:
            a('s_mul_i32 s%d, s%d, %d' % (sT1, self.rotc(a, sT1, c), 64 * self.stride))
            if self.passcol[p]:
                a('s_add_u32 s%d, s%d, %d' % (sT1, sT1, self.passcol[p]))
        else:
            a('s_mov_b32 s%d, %d' % (sT1, 64 * c * self.stride + self.passcol[p]))
        a('buffer_load_dwordx4 v%d, %s, s%d offen lds' % (self.vWd, srd(S_W), sT1), tag=('w', n))

    def touch_addr(self, a, var, isb):
        e = self.et
        s0, s1 = sUA, sUB
        st = self.stride
        if not isb:
            a('s_and_b32 s%d, s%d, 1' % (s0, sXCD))
            a('s_lshl_b32 s%d, s%d, 5' % (s0, s0))
            a('s_add_u32 s%d, s%d, s%d' % (s0, s0, sIDX))
            a('s_lshl_b32 s%d, s%d, 2' % (s0, s0))
            a('s_add_u32 s%d, s%d, s%d' % (s0, s0, sJ))
            a('s_lshl_b32 s%d, s%d, 13' % (s0, s0))
            a('s_lshr_b32 s%d, s%d, 1' % (sT0, sXCD))
            a('s_lshl_b32 s%d, s%d, 8' % (sT0, sT0))
            a('s_add_u32 s%d, s%d, s%d' % (s0, s0, sT0))
            a('v_bfe_u32 v%d, v1, 1, 3' % e)
            a('v_lshlrev_b32 v%d, 10, v%d' % (e, e))
            a('v_and_b32 v%d, 1, v1' % (e + 2))
            a('v_lshl_add_u32 v%d, v%d, 7, v%d' % (e, e + 2, e))
            a('s_lshl_b32 s%d, s%d, 2' % (s1, sIDX))
            a('s_add_u32 s%d, s%d, s%d' % (s1, s1, sJ))
            a('s_lshl_b32 s%d, s%d, 12' % (s1, s1))
            a('v_and_b32 v%d, 3, v1' % (e + 1))
        else:
            a('s_lshl_b32 s%d, s%d, 2' % (s0, sIDX))
            a('s_add_u32 s%d, s%d, s%d' % (s0, s0, sJ))
            a('s_mul_i32 s%d, s%d, %d' % (s1, s0, 11 * 1024))
            a('s_mul_i32 s%d, s%d, %d' % (s0, s0, 4 * st))
            a('v_bfe_u32 v%d, v1, 3, 2' % e)
            a('v_mul_u32_u24 v%d, %d, v%d' % (e, st, e))
            a('v_and_b32 v%d, 7, v1' % (e + 2))
            a('v_min_u32 v%d, 5, v%d' % (e + 2, e + 2))
            a('s_bfe_u32 s%d, s%d, 0x10001' % (sT0, sXCD))
            a('s_and_b32 s%d, s%d, 1' % (sT1, sXCD))
            if var == 'A':
                a('s_lshl_b32 s%d, s%d, 9' % (sT0, sT0))
                a('s_lshl_b32 s%d, s%d, 8' % (sT1, sT1))
                a('v_lshrrev_b32 v%d, 1, v%d' % (e + 3, e + 2))
                a('v_lshl_add_u32 v%d, v%d, 10, v%d' % (e, e + 3, e))
                a('v_and_b32 v%d, 1, v%d' % (e + 2, e + 2))
                a('v_lshl_add_u32 v%d, v%d, 7, v%d' % (e, e + 2, e))
            else:
                a('s_mul_i32 s%d, s%d, %d' % (sT0, sT0, 22 * 64))
                a('s_lshl_b32 s%d, s%d, 7' % (sT1, sT1))
                a('v_lshl_add_u32 v%d, v%d, 8, v%d' % (e, e + 2, e))
            a('s_add_u32 s%d, s%d, s%d' % (s0, s0, sT0))
            a('s_add_u32 s%d, s%d, s%d' % (s0, s0, sT1))
            a('v_and_b32 v%d, 15, v1' % (e + 1))
            a('v_min_u32 v%d, 10, v%d' % (e + 1, e + 1))
        a('v_lshlrev_b32 v%d, 10, v%d' % (e + 1, e + 1))
        a('s_lshl_b32 s%d, s%d, 7' % (sT0, sXCD))
        a('s_add_u32 s%d, s%d, s%d' % (s1, s1, sT0))

    def touch(self, a, isb, which):
        e = self.et
        if which == 0:
            a('buffer_load_dword v%d, v%d, %s, s%d offen' % (e + 4, e, srd(S_W if isb else S_X), sUA), tag='touch')
        else:
            a('buffer_load_dword v%d, v%d, %s, s%d offen' % (e + 5, e + 1, srd(S_U), sUB), tag='touch')

    BUNITS = [('A', 0), ('A', 1), ('B', 0), ('B', 1), ('A', 2), ('A', 3), ('B', 2), ('B', 3),
              ('A', 4), ('B', 4), ('A5', 0)]
    AUNITS = [('A', 0), ('A', 1), ('A', 2), ('A', 3)]

    def dma_u(self, a, h, piece):
        if 'u' in self.no:
            return
        m, g = divmod(h, 2)
        grp, idx = self.units[m]
        sreg = {'A': sUA, 'B': sUB, 'A5': sUA5}[grp]
        a('s_add_u32 m0, s%d, %d' % (sP, piece * REG))
        a('s_add_u32 s%d, s%d, %d' % (sT1, sreg, (idx * 32 + g * 16) * 1024))
        for i in range(2):
            a('buffer_load_dwordx4 v%d, %s, s%d offen offset:%d lds' % (self.vUd + i, srd(S_U), sT1, 1024 * i), tag=('u', h))

    def ufrag(self, h, t):
        return self.ubuf + 8 * (h % 3) + 4 * t

    def read_u(self, a, h, piece):
        a.wait_vm(('u', h))
        win, pp = divmod(piece, 4)
        for t in range(2):
            for rd in range(2):
                a.ds('ds_read_b64_tr_b16 %s, v%d offset:%d' % (vr(self.ufrag(h, t) + 2 * rd, 2), self.vUr + win * 2 + t, pp * REG + rd * 1024),
                     tag=('ur', h))

    def load_act(self, a, m, g, blk):
        grp, idx = self.units[m]
        sreg = {'A': sAA, 'B': sAB, 'A5': sAA5}[grp]
        if idx:
            a('s_add_u32 s%d, s%d, %d' % (sT1, sreg, idx * UNIT))
            so = sT1
        else:
            so = sreg
        for rt in range(2):
            a('buffer_load_dwordx4 %s, v%d, %s, s%d offen offset:%d sc1' % (
                vr(self.blk(blk) + 8 * g + 4 * rt, 4), self.vActLd + rt, srd(S_WS), so, 1024 * g), tag=('act', m))

    def gelu_ops(self, accb, pkb, packed):
        et = self.et
        ops = []
        if 'epi' in self.no:
            return ops
        if packed:
            for q in range(0, 16, 8):
                xs = [accb + q + 2 * i for i in range(4)]
                ts = [et + 2 * i for i in range(4)]
                for x, t in zip(xs, ts):
                    ops.append('v_pk_mul_f32 %s, %s, %s' % (vr(t, 2), vr(x, 2), vr(x, 2)))
                for x, t in zip(xs, ts):
                    ops.append('v_pk_fma_f32 %s, %s, s[%d:%d], %s' % (vr(t, 2), vr(t, 2), sC1, sC1 + 1, vr(self.vC0, 2)))
                for x, t in zip(xs, ts):
                    ops.append('v_pk_mul_f32 %s, %s, %s' % (vr(t, 2), vr(t, 2), vr(x, 2)))
                for i in range(8):
                    ops.append('v_exp_f32 v%d, v%d' % (et + i, et + i))
                for t in ts:
                    ops.append('v_pk_add_f32 %s, %s, s[%d:%d]' % (vr(t, 2), vr(t, 2), sONE, sONE + 1))
                for i in range(8):
                    ops.append('v_rcp_f32 v%d, v%d' % (et + i, et + i))
                for x, t in zip(xs, ts):
                    ops.append('v_pk_mul_f32 %s, %s, %s' % (vr(t, 2), vr(t, 2), vr(x, 2)))
                for j, t in enumerate(ts):
                    ops.append('v_cvt_pk_bf16_f32 v%d, v%d, v%d' % (pkb + q // 2 + j, t, t + 1))
        else:
            for q in range(0, 16, 4):
                R = range(4)
                e = et + (q & 4)
                ops += ['v_mul_f32 v%d, v%d, v%d' % (e + i, accb + q + i, accb + q + i) for i in R]
                ops += ['v_fma_f32 v%d, v%d, s%d, v%d' % (e + i, e + i, sC1, self.vC0) for i in R]
                ops += ['v_mul_f32 v%d, v%d, v%d' % (e + i, e + i, accb + q + i) for i in R]
                ops += ['v_exp_f32 v%d, v%d' % (e + i, e + i) for i in R]
                ops += ['v_add_f32 v%d, 1.0, v%d' % (e + i, e + i) for i in R]
                ops += ['v_rcp_f32 v%d, v%d' % (e + i, e + i) for i in R]
                ops += ['v_mul_f32 v%d, v%d, v%d' % (e + i, e + i, accb + q + i) for i in R]
                ops += ['v_cvt_pk_bf16_f32 v%d, v%d, v%d' % (pkb + q // 2 + j, e + 2 * j, e + 2 * j + 1) for j in range(2)]
        return ops

    def phi_ops(self, accb, pkb):
        et = self.et
        ops = []
        if 'epi' in self.no:
            return ops
        for q in range(0, 16, 4):
            R = range(4)
            ops += ['v_mul_f32 v%d, s%d, v%d' % (et + i, sLOG, accb + q + i) for i in R]
            ops += ['v_exp_f32 v%d, v%d clamp' % (et + i, et + i) for i in R]
            ops += ['v_max_f32 v%d, 0x%x, v%d' % (et + 4 + i, f2u(1e-6), accb + q + i) for i in R]
            ops += ['v_add_f32 v%d, v%d, v%d' % (et + i, et + i, et + 4 + i) for i in R]
            ops += ['v_cvt_pk_bf16_f32 v%d, v%d, v%d' % (pkb + q // 2 + j, et + 2 * j, et + 2 * j + 1) for j in range(2)]
        return ops

    def with_stores(self, ops, pkb, unit_rel, tag):
        if 'st' in self.no:
            return ops
        st = []
        for g in range(2):
            st.append([('s_add_u32 s%d, s%d, %d' % (sT2, sUST, unit_rel * UNIT), None),
                       ('buffer_store_dwordx4 %s, v%d, %s, s%d offen offset:%d sc1' % (vr(pkb + 4 * g, 4), self.vActSt, srd(S_WS), sT2, 1024 * g), tag)])
        out = []
        done = False
        for i, op in enumerate(ops):
            out.append(op)
            if not done and i >= 2 and ops[i - 2].startswith('v_cvt_pk_bf16_f32 v%d,' % (pkb + 3)):
                out.append(st[0])
                done = True
        if not done:
            out.append(st[0])
        out.append(st[1])
        return out

    def check(self, a, load, cmps):
        ok = self.newlabel('ok')
        rt = self.newlabel('retry')
        cmps(a)
        a('s_cmp_eq_u64 vcc, -1')
        a('s_cbranch_scc1 ' + ok)
        s = a.fork()
        s('s_mov_b32 s%d, %d' % (sSPIN, self.o.spin))
        s.label(rt)
        if self.o.diag:
            a.nchk = getattr(a, 'nchk', 0) + 1
            s('s_add_u32 s38, s38, %d' % (1 << (6 * (a.nchk - 1))))
        if self.o.sleep:
            s('s_sleep %d' % self.o.sleep)
        load(s)
        s.force_wait('vmcnt(0)')
        cmps(s)
        s('s_cmp_eq_u64 vcc, -1')
        s('s_cbranch_scc1 ' + ok)
        s('s_sub_u32 s%d, s%d, 1' % (sSPIN, sSPIN))
        s('s_cmp_lg_u32 s%d, 0' % sSPIN)
        s('s_cbranch_scc1 ' + rt)
        a.label(ok)

    def path(self, var, role):
        o = self.o
        a = self.a.fork()
        a.stampn, a.stampe = list(self.a.stampn), list(self.a.stampe)
        a.label('L_path' + var + role)
        a.lgmax = 12 if o.diag else 15
        isA, isG = var == 'A', var == 'G'
        isb = role == 'b'
        ch = 1 if isb else 0
        gate = isG and isb
        self.units = self.BUNITS if isb else self.AUNITS
        NU = len(self.units)
        NH = 2 * NU
        self.stride = 3072 if isA else 2752
        self.passcol = [1024, 2048, 0] if isA else [0, 128, 256]
        t0, t1, t2, t3 = [self.vTmp + i for i in range(4)]
        if isA:
            a('s_lshl_b32 s%d, s%d, 7' % (sT2, sGRP))
            a('s_lshl_b32 s%d, s%d, 18' % (sUST, sGRP))
        else:
            a('s_mul_i32 s%d, s%d, 5' % (sT2, sGRP))
            a('s_add_u32 s%d, s%d, 1' % (sT3, sGRP))
            a('s_lshr_b32 s%d, s%d, 1' % (sT3, sT3))
            a('s_min_u32 s%d, s%d, 3' % (sT3, sT3))
            a('s_add_u32 s%d, s%d, s%d' % (sT2, sT2, sT3))
            a('s_add_u32 s%d, s%d, 16' % (sUST, sT2))
            a('s_lshl_b32 s%d, s%d, 17' % (sUST, sUST))
            a('s_lshl_b32 s%d, s%d, 6' % (sT2, sT2))
        a('s_mul_i32 s%d, s%d, %d' % (sT3, sWV, 8 * self.stride))
        a('s_add_u32 s%d, s%d, s%d' % (sT3, sT3, sT2))
        a('v_mul_u32_u24 v%d, %d, v%d' % (self.vWd, self.stride, t0))
        a('v_add3_u32 v%d, v%d, v%d, s%d' % (self.vWd, self.vWd, t1, sT3))
        tpos = [int(x) for x in o.touch.split(',')]
        if max(tpos) >= 0:
            self.touch_addr(a, var, isb)
        a._put('s_waitcnt lgkmcnt(0)')
        self.stamp(a, 'karg', True)
        self.mksrd(a, S_X, P_X, 2048 * 1024)
        if isA:
            self.mksrd(a, S_W, P_WQKV, 512 * 3072)
        else:
            self.mksrd(a, S_W, P_W1, 512 * 2752)
        if tpos[0] == 0:
            self.touch(a, isb, 0)
        if isb:
            self.mksrd(a, S_U, P_W2, 1376 * 1024)
        else:
            self.mksrd(a, S_U, P_WO, 512 * 1024)
        if tpos[1] == 0:
            self.touch(a, isb, 1)
        self.dma_x(a, 0)
        self.dma_w(a, 0)
        if isA and not isb:
            skip = self.newlabel('nopub')
            a('s_or_b32 s%d, s2, s%d' % (sT3, sWV))
            a('s_cbranch_scc1 ' + skip)
            a('s_mov_b32 s%d, 0x%x' % (sT3, EOFF))
            a._put('s_load_dword s%d, s[%d:%d], s%d' % (sE, P_WS, P_WS + 1, sT3))
            a.label(skip)
            a.lgmax -= 1
        self.stamp(a, 'd0', True)
        for c in range(1, o.pre):
            for w in range(2):
                if tpos[w] == c:
                    self.touch(a, isb, w)
            self.dma_x(a, c)
            if c == o.pre - 1:
                self.mksrd(a, S_WS, P_WS, WS_SIZE)
                if isA and isb:
                    skip = self.newlabel('noinit')
                    a('s_or_b32 s%d, s%d, s%d' % (sT3, sRB, sJ))
                    a('s_cbranch_scc1 ' + skip)
                    z = self.pk
                    for i in range(4):
                        a('v_mov_b32 v%d, 0' % (z + i))
                    a('s_mul_i32 s%d, s%d, %d' % (sT0, sGRP, 4 * HSTR))
                    a('s_add_u32 s%d, s%d, 0x%x' % (sT0, sT0, KVACC))
                    for i in range(4):
                        a('buffer_store_dwordx4 %s, v%d, %s, s%d offen offset:%d sc1' % (vr(z, 4), self.vL16, srd(S_WS), sT0, 1024 * i), count=False)
                    a('s_add_u32 s%d, s%d, 4096' % (sT0, sT0))
                    a('v_add_u32 v%d, s%d, v%d' % (t2, sT0, self.vL16))
                    a('s_lshl_b32 s%d, s%d, 9' % (sT0, sGRP))
                    a('s_add_u32 s%d, s%d, 0x%x' % (sT0, sT0, CNT - 32 * 128))
                    a('v_lshl_add_u32 v%d, v1, 7, s%d' % (t3, sT0))
                    a('v_cmp_gt_u32 vcc, 32, v1')
                    a('v_cndmask_b32 v%d, v%d, v%d, vcc' % (t2, t3, t2))
                    a('v_mov_b32 v%d, 0x%x' % (t3, OOB))
                    a('v_cmp_gt_u32 vcc, 36, v1')
                    a('v_cndmask_b32 v%d, v%d, v%d, vcc' % (t2, t3, t2))
                    a('buffer_store_dwordx4 %s, v%d, %s, 0 offen sc1' % (vr(z, 4), t2, srd(S_WS)), count=False)
                    a.label(skip)
                    a.nop(2)
            self.dma_w(a, c)
            self.stamp(a, 'd%d' % c, True)
        if not isA:
            self.mksrd(a, S_M1, P_B1, 1376 * 2)
            a('v_and_b32 v%d, 31, v1' % t2)
            a('v_lshlrev_b32 v%d, 1, v%d' % (t2, t2))
            for p in range(2 if gate else 3):
                a('buffer_load_ushort v%d, v%d, %s, s%d offen offset:%d' % (self.vBias + 2 * p, t2, srd(S_M1), sT2, 128 * p + 64 * ch), tag='bias')
        a('s_lshl_b32 s%d, s%d, 7' % (sT3, sCT))
        a('v_lshl_add_u32 v%d, v%d, 10, v%d' % (self.vUd, t0, t1))
        a('v_add_u32 v%d, s%d, v%d' % (self.vUd, sT3, self.vUd))
        a('v_add_u32 v%d, 7168, v%d' % (self.vUd + 1, self.vUd))
        a('v_and_b32 v%d, 31, v1' % t0)
        a('v_lshrrev_b32 v%d, 5, v1' % t1)
        a('v_bfe_u32 v%d, v1, 1, 3' % t2)
        a('v_xor_b32 v%d, v%d, v%d' % (t2, t2, t1))
        a('v_lshlrev_b32 v%d, 4, v%d' % (t2, t2))
        a('v_lshl_add_u32 v%d, v%d, 7, v%d' % (t2, t0, t2))
        a('s_lshl_b32 s%d, s%d, 12' % (sT0, sJ))
        a('v_add_u32 v%d, s%d, v%d' % (self.vXr, sT0, t2))
        for s in range(1, 4):
            a('v_xor_b32 v%d, %d, v%d' % (self.vXr + s, 32 * s, self.vXr))
        for i in range(6):
            if i != 2:
                a('v_mov_b32 v%d, 0' % (self.vSel + i))
        a('v_xor_b32 v%d, 1, v%d' % (t3, t1))
        a('v_mul_u32_u24 v%d, 0x3f80, v%d' % (self.vSel + 2, t3))
        if not isA:
            for i in range(3):
                a('v_mov_b32 v%d, 0' % (self.vBias + 2 * i + 1))
        a('s_lshl_b32 s%d, s%d, 2' % (sT1, sRB))
        a('s_add_u32 s%d, s%d, s%d' % (sT1, sT1, sJ))
        a('s_lshl_b32 s%d, s%d, 11' % (sT0, sT1))
        a('v_add_u32 v%d, s%d, v%d' % (self.vActSt, sT0, self.vL16))
        if gate:
            a('v_lshl_add_u32 v%d, v%d, 4, s%d' % (self.vMisc, t1, sP))
            a('s_lshr_b32 s%d, s%d, 1' % (sT0, sGRP))
            a('s_lshl_b32 s%d, s%d, 13' % (sT0, sT0))
            a('s_lshl_b32 s%d, s%d, 7' % (sT1, sT1))
            a('s_add_u32 s%d, s%d, s%d' % (sT0, sT0, sT1))
            a('s_add_u32 s%d, s%d, 0x%x' % (sT0, sT0, GOFF))
            a('v_lshl_add_u32 v%d, v%d, 2, s%d' % (self.vMisc + 1, t0, sT0))
        a('v_bfe_u32 v%d, v1, 2, 2' % t0)
        a('v_and_b32 v%d, 3, v1' % t2)
        a('v_lshlrev_b32 v%d, 3, v%d' % (t2, t2))
        a('v_bfe_u32 v%d, v1, 4, 1' % t3)
        a('v_lshl_add_u32 v%d, v%d, 5, v%d' % (t2, t3, t2))
        a('v_bfe_u32 v%d, v1, 3, 1' % t3)
        a('v_lshl_add_u32 v%d, v%d, 6, v%d' % (t2, t3, t2))
        a('v_lshl_add_u32 v%d, v%d, 7, v%d' % (t2, t0, t2))
        a('v_lshl_add_u32 v%d, v%d, 10, v%d' % (t3, t1, t2))
        if ch:
            a('v_xor_b32 v%d, 64, v%d' % (t3, t3))
        a('v_add_u32 v%d, %d, v%d' % (self.vWr, W_BASE, t3))
        a('v_add_u32 v%d, 49152, v%d' % (self.vWr + 1, self.vWr))
        a('v_lshl_add_u32 v%d, v%d, 9, v%d' % (t3, t1, t2))
        a('s_and_b32 s%d, s%d, 1' % (sT0, sWV))
        a('s_lshl_b32 s%d, s%d, 6' % (sT0, sT0))
        a('v_xor_b32 v%d, s%d, v%d' % (t3, sT0, t3))
        a('v_add_u32 v%d, s%d, v%d' % (self.vUr, sP, t3))
        a('v_xor_b32 v%d, 64, v%d' % (self.vUr + 1, self.vUr))
        a('v_add_u32 v%d, 0x10000, v%d' % (self.vUr + 2, self.vUr))
        a('v_add_u32 v%d, 0x10000, v%d' % (self.vUr + 3, self.vUr + 1))
        for r, val in ((sC1, GC1), (sC1 + 1, GC1), (sLOG, LOG2E), (sONE, 1.0), (sONE + 1, 1.0)):
            a('s_mov_b32 s%d, 0x%x' % (r, f2u(val)))
        if not isA:
            a('v_mov_b32 v%d, 0x%x' % (self.vC0, f2u(GC0)))
            a('v_mov_b32 v%d, 0x%x' % (self.vC0 + 1, f2u(GC0)))
        self.stamp(a, 's1', True)
        self.save_early(a)
        self.mksrd(a, S_DBG, P_DBG, 256)
        if o.diag:
            a('s_mov_b32 s38, 0')
        if gate:
            self.mksrd(a, S_M2, P_GATE, 1024)
        if isb:
            self.mksrd(a, S_M1, P_B2, 1024)
        self.mksrd(a, S_OUT, P_OUT, 2048 * 1024)
        if isb:
            a('s_mul_i32 s%d, s%d, 11' % (sT0, sJ))
            a('s_cmp_eq_u32 s%d, 3' % sJ)
            a('s_cselect_b32 s%d, 5, 6' % sT1)
            a('s_cselect_b32 s%d, 0x%x, 0' % (sT2, OOB))
            a('s_add_u32 s%d, s%d, s%d' % (sT1, sT1, sT0))
            a('s_lshl_b32 s%d, s%d, 15' % (sUA, sT0))
            a('s_lshl_b32 s%d, s%d, 15' % (sUB, sT1))
            a('s_add_u32 s%d, s%d, %d' % (sUA5, sUA, 5 * 32768))
            a('s_add_u32 s%d, s%d, s%d' % (sUA5, sUA5, sT2))
            a('s_add_u32 s%d, s%d, 16' % (sT0, sT0))
            a('s_add_u32 s%d, s%d, 16' % (sT1, sT1))
            a('s_lshl_b32 s%d, s%d, 17' % (sAA, sT0))
            a('s_lshl_b32 s%d, s%d, 17' % (sAB, sT1))
            a('s_add_u32 s%d, s%d, %d' % (sAA5, sAA, 5 * UNIT))
            a('s_add_u32 s%d, s%d, s%d' % (sAA5, sAA5, sT2))
        else:
            a('s_lshl_b32 s%d, s%d, 17' % (sUA, sJ))
            a('s_lshl_b32 s%d, s%d, 19' % (sAA, sJ))
        a('s_lshl_b32 s%d, s%d, 1' % (sT0, sRT))
        a('s_lshr_b32 s%d, s%d, 1' % (sT1, sJ))
        a('s_add_u32 s%d, s%d, s%d' % (sT0, sT0, sT1))
        a('s_lshl_b32 s%d, s%d, 11' % (sT1, sT0))
        a('v_add_u32 v%d, s%d, v%d' % (self.vActLd, sT1, self.vL16))
        a('v_xor_b32 v%d, 2048, v%d' % (self.vActLd + 1, self.vActLd))
        a('s_lshl_b32 s%d, s%d, 4' % (sT0, sRB))
        a('s_add_u32 s%d, s%d, s%d' % (sT0, sT0, sCG))
        a('s_lshl_b32 s%d, s%d, 3' % (sT0, sT0))
        a('s_add_u32 s%d, s%d, s%d' % (sT0, sT0, sWV))
        a('s_lshl_b32 s%d, s%d, 9' % (sT0, sT0))
        a('s_add_u32 s%d, s%d, 0x%x' % (sT0, sT0, FLAG))
        a('v_mov_b32 v%d, s%d' % (self.vFlagW, sT0))
        a('s_lshr_b32 s%d, s%d, 1' % (sT0, sRT))
        a('s_lshl_b32 s%d, s%d, 3' % (sT0, sT0))
        a('s_add_u32 s%d, s%d, s%d' % (sT0, sT0, sJ))
        a('s_lshl_b32 s%d, s%d, 3' % (sT0, sT0))
        a('s_and_b32 s%d, s%d, 1' % (sT1, sRT))
        a('s_add_u32 s%d, s%d, s%d' % (sT0, sT0, sT1))
        a('s_lshl_b32 s%d, s%d, 10' % (sT0, sT0))
        a('s_add_u32 s%d, s%d, 0x%x' % (sT0, sT0, FLAG + (8 * 4096 if isb else 0)))
        a('v_and_b32 v%d, 1, v1' % t0)
        a('v_bfe_u32 v%d, v1, 1, 1' % t2)
        a('v_lshlrev_b32 v%d, 12, v%d' % (t0, t0))
        a('v_lshl_add_u32 v%d, v%d, 9, v%d' % (t0, t2, t0))
        a('v_bfe_u32 v%d, v1, 2, 1' % t2)
        a('v_lshl_add_u32 v%d, v%d, 11, v%d' % (t0, t2, t0))
        if not isb:
            a('v_bfe_u32 v%d, v1, 3, 1' % t2)
            a('v_lshl_add_u32 v%d, v%d, 15, v%d' % (t0, t2, t0))
        a('v_add_u32 v%d, s%d, v%d' % (self.vFlagR, sT0, t0))
        if isA:
            a('s_lshl_b32 s%d, s%d, 12' % (sT0, sWV))
            a('s_add_u32 s%d, s%d, %d' % (sT0, sT0, W_BASE))
            a('v_add_u32 v%d, s%d, v%d' % (self.vMisc, sT0, self.vL16))
        a('v_mov_b32 v%d, 0' % self.vTmp)
        self.stamp(a, 'setup')

        PF = 2
        bar_chunks = list(range(o.bfine)) + list(range(o.bfine, 24, o.bgroup))

        def bar_n(c):
            return max(0, 4 * c - PF)

        def wbuf(n):
            return self.wf + (n % 3) * 4

        def reads_for(n):
            c, s = divmod(n, 4)
            win, sl = divmod(c % NSLOT, 6)
            if gate and n >= 64:
                return ['ds_read_b128 %s, v%d offset:%d' % (vr(wbuf(n), 4), self.vMisc, 3 * REG + 32 * (n % 32))]
            return ['ds_read_b64_tr_b16 %s, v%d offset:%d' % (vr(wbuf(n) + 2 * rd, 2), self.vWr + win, sl * 8192 + (16 * s + 4 * rd) * 128)
                    for rd in range(2)]

        def barrier_for(c):
            nxt = [x for x in bar_chunks if x > c]
            last = (nxt[0] if nxt else 24) - 1
            tags = [('w', k) for k in range(c, last + 1)] + [('x', k) for k in range(c, last + 1)]
            a.wait_both(tags, [('xr', k) for k in range(c)])
            a('s_barrier')

        def xreads(c):
            for s in range(4):
                a.ds('ds_read_b128 %s, v%d offset:%d' % (vr(self.blk(c) + 4 * s, 4), self.vXr + s, (c & 3) * REG), tag=('xr', c))

        allbars = bar_chunks + [24]

        def first_bar(cmin):
            return bar_n([x for x in allbars if x >= cmin][0])
        piece_free = {}
        for s in range(4):
            piece_free[s] = first_bar(5 + s)
        for s in range(3):
            piece_free[4 + s] = first_bar(15 + 2 * s)
        if isA:
            piece_free[4] = piece_free[5] = first_bar(24)
        if gate:
            piece_free[3] = 96
        free = sorted((t, p) for p, t in piece_free.items())
        plan = {n: [] for n in range(96)}
        nx, nw, nu = o.pre, o.pre, 0
        upiece = {}
        credit = 0.0
        rates = [float(x) for x in (o.rateb if isb else o.ratea).split(',')]
        for n in range(96):
            credit = min(credit + rates[n // 32], 3.0)
            while True:
                if nx < 8 and (nx < 4 or first_bar(nx - 3) <= n) and nx <= nw + o.xlead:
                    if credit < 2:
                        break
                    plan[n].append(('x', nx))
                    nx += 1
                    credit -= 2
                elif nw < 24 and (nw < 12 or first_bar(nw - 10) <= n):
                    if credit < 1:
                        break
                    plan[n].append(('w', nw))
                    nw += 1
                    credit -= 1
                elif nu < NH and free and free[0][0] <= n and n >= o.ustart:
                    if credit < 2:
                        break
                    upiece[nu] = free.pop(0)[1]
                    plan[n].append(('u', nu))
                    nu += 1
                    credit -= 2
                else:
                    break
        assert nx == 8 and nw == 24
        for n in range(96):
            for k, c in plan[n]:
                if k in 'xw':
                    pub = [x for x in bar_chunks if x <= c][-1]
                    assert n < bar_n(pub), (var, role, k, c, n)
        if o.verbose:
            print(var + role, 'plan:', {k: v for k, v in plan.items() if v})

        def emit(op):
            if callable(op):
                op()
            elif isinstance(op, list):
                for tx, tg in op:
                    a(tx, tag=tg)
            elif op.startswith('ds_'):
                a.ds(op)
            else:
                a(op)

        def cost(op):
            if callable(op):
                return 3
            if isinstance(op, list):
                return 3
            return 2 if op.startswith(('v_exp', 'v_rcp', 'v_mfma')) else 1

        def flag_store(level, tag):
            self.stamp(a, 'fw%d' % level)
            a.wait_vm(tag)
            self.stamp(a, 'fa%d' % level)
            a('buffer_store_dword v%d, v%d, %s, 0 offen offset:%d sc1' % (self.vEpoch, self.vFlagW, srd(S_WS), 128 * level), tag='flag')

        def ep_load(aa):
            aa('buffer_load_dword v%d, v%d, %s, 0 offen sc1' % (self.vEpoch, self.vTmp, srd(S_DBG)), tag='poll')

        def ep_cmp(aa):
            aa('v_cmp_ne_u32 vcc, 0, v%d' % self.vEpoch)

        def in_load(aa):
            aa('s_lshl_b32 s%d, s%d, 2' % (sT2, sGRP))
            aa('buffer_load_dword v%d, v%d, %s, s%d offen offset:128 sc1' % (self.vPoll, self.vTmp, srd(S_DBG), sT2), tag='poll')

        def in_cmp(aa):
            aa('v_cmp_eq_u32 vcc, 1, v%d' % self.vPoll)

        def lvl_load(level):
            def f(aa):
                aa('buffer_load_dword v%d, v%d, %s, 0 offen offset:%d sc1' % (self.vPoll, self.vFlagR, srd(S_WS), 128 * level), tag='poll')
            return f

        def lvl_cmp(aa):
            aa('v_cmp_eq_u32 vcc, v%d, v%d' % (self.vEpoch, self.vPoll))

        def acc(p):
            return self.acc1 if p & 1 else self.acc0

        def kvres(hb):
            return self.blk(0) if hb else self.acc1

        def epilogue_ops(p, packed):
            if isA:
                if p == 0:
                    return self.phi_ops(acc(0), self.pk)
                if p == 1:
                    ones, vmod = self.vBias, self.et
                    ops = ['v_mov_b32 v%d, 0x3f803f80' % ones,
                           'v_bfe_u32 v%d, v1, 4, 1' % (ones + 1),
                           'v_cmp_eq_u32 vcc, 1, v%d' % (ones + 1)]
                    ops += ['v_cvt_pk_bf16_f32 v%d, v%d, v%d' % (self.pk2 + j, acc(1) + 2 * j, acc(1) + 2 * j + 1) for j in range(8)]
                    ops += ['v_cndmask_b32 v%d, v%d, v%d, vcc' % (vmod + j, self.pk2 + j, ones) for j in range(8)]
                    ops += ['v_cndmask_b32 v%d, v%d, v%d, vcc' % (self.pk2 + j, ones, self.pk2 + j) for j in range(8)]
                    for hb in range(2):
                        d = vr(kvres(hb), 16)
                        for g in range(2):
                            ops.append(MFMA % (d, vr(self.pk + 4 * g, 4), vr((self.pk2 if hb else vmod) + 4 * g, 4), '0' if g == 0 else d))
                    return ops
                return self.with_stores(self.phi_ops(acc(2), self.pk), self.pk, ch, 'st2')
            if gate and p == 2:
                x, e = acc(2), self.et
                return ['v_mul_f32 v%d, s%d, v%d' % (e, sLOG, x),
                        'v_exp_f32 v%d, -v%d' % (e, e),
                        'v_add_f32 v%d, 1.0, v%d' % (e, e),
                        'v_rcp_f32 v%d, v%d' % (e, e),
                        [('buffer_store_dword v%d, v%d, %s, 0 offen sc1' % (e, self.vMisc + 1, srd(S_WS)), 'st2')]]
            pkb = self.pk2 if p == 1 else self.pk
            return self.with_stores(self.gelu_ops(acc(p), pkb, packed), pkb, 2 * p + ch, 'st%d' % p)

        def kv_write():
            for hb in range(2):
                src = kvres(hb) + 8 * hb
                for q in range(2):
                    a.ds('ds_write_b128 v%d, %s offset:%d' % (self.vMisc, vr(src + 4 * q, 4), hb * 2048 + q * 1024), tag='kvw')

        def kv_reduce():
            d = self.acc1
            ad, az = self.vSp, self.vSp + 1
            a('s_lshr_b32 s%d, s%d, 1' % (sT2, sJ))
            a('s_lshl_b32 s%d, s%d, 14' % (sT2, sT2))
            a('s_and_b32 s%d, s%d, 1' % (sT3, sJ))
            a('s_mul_i32 s%d, s%d, %d' % (sT0, sT3, 2048 + 256))
            a('s_add_u32 s%d, s%d, s%d' % (sT0, sT0, sT2))
            a('s_add_u32 s%d, s%d, %d' % (sT0, sT0, W_BASE))
            a('v_lshl_add_u32 v%d, v1, 2, s%d' % (ad, sT0))
            for r in range(4):
                for q in range(2):
                    a.ds('ds_read2st64_b32 %s, v%d offset0:%d offset1:%d' % (vr(d + r * 4 + 2 * q, 2), ad, r * 16 + q * 4, r * 16 + q * 4 + 2), tag='kvr')
            a('s_xor_b32 s%d, s%d, 256' % (sT0, sT0))
            a('v_bfe_u32 v%d, v1, 2, 2' % az)
            a('v_and_b32 v%d, 3, v1' % (az + 1))
            a('v_lshlrev_b32 v%d, 2, v%d' % (az + 1, az + 1))
            a('v_lshl_add_u32 v%d, v%d, 9, v%d' % (az + 2, az, az + 1))
            a('v_add_u32 v%d, s%d, v%d' % (az + 2, sT0, az + 2))
            for r in range(0, 4, 2):
                a.ds('ds_read2st64_b32 %s, v%d offset0:%d offset1:%d' % (vr(d + 16 + r, 2), az + 2, r * 16, r * 16 + 16), tag='kvr')
            a('v_bfe_u32 v%d, v1, 3, 1' % az)
            a('v_mul_u32_u24 v%d, %d, v%d' % (az, QSTR - 32, az))
            a('v_lshl_add_u32 v%d, v1, 2, v%d' % (az, az))
            a('v_mov_b32 v%d, 0x%x' % (az + 1, OOB))
            a('v_cmp_gt_u32 vcc, 16, v1')
            a('v_cndmask_b32 v%d, v%d, v%d, vcc' % (az, az + 1, az))
            a('v_lshlrev_b32 v%d, 2, v1' % (az + 1))
            a('s_lshl_b32 s%d, s%d, 2' % (sT2, sGRP))
            a('s_add_u32 s%d, s%d, s%d' % (sT2, sT2, sJ))
            a('s_mul_i32 s%d, s%d, %d' % (sKVB, sT2, HSTR))
            a('s_add_u32 s%d, s%d, 0x%x' % (sKVB, sKVB, KVACC))

        def kv_atomics():
            d = self.acc1
            az = self.vSp + 1
            for k in range(4):
                a('v_add_f32 v%d, v%d, v%d' % (d + k, d + k, d + 4 + k))
                a('v_add_f32 v%d, v%d, v%d' % (d + 8 + k, d + 8 + k, d + 12 + k))
            a('v_add_f32 v%d, v%d, v%d' % (d + 16, d + 16, d + 17))
            a('v_add_f32 v%d, v%d, v%d' % (d + 18, d + 18, d + 19))
            for k in range(4):
                a('v_add_f32 v%d, v%d, v%d' % (d + k, d + k, d + 8 + k))
            a('v_add_f32 v%d, v%d, v%d' % (d + 16, d + 16, d + 18))
            self.check(a, in_load, in_cmp)
            for k in range(4):
                a('buffer_atomic_add_f32 v%d, v%d, %s, s%d offen offset:%d' % (d + k, az + 1, srd(S_WS), sKVB, (k >> 1) * QSTR + (k & 1) * 256), tag='kva')
            a('buffer_atomic_add_f32 v%d, v%d, %s, s%d offen offset:512' % (d + 16, az, srd(S_WS), sKVB), tag='kva')

        def kv_count():
            az = self.vSp + 1
            a('v_mov_b32 v%d, 0x%x' % (az, OOB))
            a('v_cmp_eq_u32 vcc, 0, v1')
            a('v_cndmask_b32 v%d, v%d, v1, vcc' % (az, az))
            a('v_mov_b32 v%d, 1' % (az + 1))
            a('s_lshl_b32 s%d, s%d, 2' % (sT2, sGRP))
            a('s_add_u32 s%d, s%d, s%d' % (sT2, sT2, sJ))
            a('s_lshl_b32 s%d, s%d, 7' % (sT2, sT2))
            a('s_add_u32 s%d, s%d, 0x%x' % (sT2, sT2, CNT))
            self.stamp(a, 'fw1')
            a.wait_vm('kva')
            self.stamp(a, 'fa1')
            a('buffer_atomic_add v%d, v%d, %s, s%d offen' % (az + 1, az, srd(S_WS), sT2), tag='flag')

        def init_pub():
            skip = self.newlabel('nopub')
            a('s_or_b32 s%d, s%d, s%d' % (sT3, sRB, sJ))
            a('s_cbranch_scc1 ' + skip)
            a('v_mov_b32 v%d, 1' % self.vPoll)
            a('s_lshl_b32 s%d, s%d, 2' % (sT2, sGRP))
            a('buffer_store_dword v%d, v%d, %s, s%d offen offset:128 sc1' % (self.vPoll, self.vTmp, srd(S_DBG), sT2), count=False)
            a.label(skip)

        def epoch_pub():
            skip = self.newlabel('nopub')
            a('s_or_b32 s%d, s2, s%d' % (sT3, sWV))
            a('s_cbranch_scc1 ' + skip)
            a._put('s_waitcnt lgkmcnt(0)')
            a('s_or_b32 s%d, s%d, 1' % (sE, sE))
            a('s_add_u32 s%d, s%d, 2' % (sE, sE))
            a('v_mov_b32 v%d, s%d' % (self.vPoll, sE))
            a('s_mov_b32 s%d, 0x%x' % (sT3, EOFF))
            a('buffer_store_dword v%d, v%d, %s, 0 offen sc1' % (self.vPoll, self.vTmp, srd(S_DBG)), count=False)
            a('buffer_store_dword v%d, v%d, %s, s%d offen sc1' % (self.vPoll, self.vTmp, srd(S_WS), sT3), count=False)
            a.label(skip)
            a.lgmax += 1

        def gate_dma():
            a('s_add_u32 m0, s%d, %d' % (sP, 3 * REG))
            ga = self.vL16
            if o.rot:
                ga = self.vSp
                a('s_lshl_b32 s%d, s%d, 7' % (sT0, sROT))
                a('v_add_u32 v%d, s%d, v%d' % (ga, sT0, self.vL16))
                a('v_and_b32 v%d, 1023, v%d' % (ga, ga))
            a('buffer_load_dwordx4 v%d, %s, 0 offen lds' % (ga, srd(S_M2)), tag='gate')

        extra = {n: [] for n in range(97)}
        extra[o.ep_issue].append(lambda: ep_load(a))
        extra[o.ep_check].append(lambda: self.check(a, ep_load, ep_cmp))
        if isA and isb:
            extra[bar_n(o.pre - 1) + 1].append(init_pub)
        if isA and not isb:
            extra[o.pub_n].append(epoch_pub)
        if gate:
            extra[36].append(gate_dma)
        if not isA:
            extra[o.l1_n].append(lambda: flag_store(0, 'st0'))
        if isA:
            extra[o.kvw_n].append(kv_write)
            assert o.kvw_n < bar_n(o.kv_bar) and o.kv_bar in bar_chunks
            if not isb:
                extra[o.kvw_n - 4].append(lambda: in_load(a))
                extra[bar_n(o.kv_bar)].append(kv_reduce)
                extra[bar_n(o.kv_bar) + 2].append(kv_atomics)
                if o.kvc_n < 96:
                    extra[o.kvc_n].append(kv_count)
        nact = 0
        if isb and o.p1_issue < 96:
            extra[o.p1_issue].append(lambda: lvl_load(0)(a))
            extra[o.p1_check].append(lambda: self.check(a, lvl_load(0), lvl_cmp))
            n = o.p1_check
            while n < 96 and nact < 8:
                m, g = divmod(nact, 2)
                assert n >= 68 + 4 * m
                extra[n].append(lambda m=m, g=g: self.load_act(a, m, g, m))
                nact += 1
                n += o.act_gap

        barrier_for(0)
        self.stamp(a, 'first')
        xreads(0)
        for n in range(PF):
            for tx in reads_for(n):
                a.ds(tx)

        vq = []
        for n in range(96):
            p, s32 = divmod(n, 32)
            if s32 == 0:
                vq = epilogue_ops(p - 1, False) if p else []
                vtot = sum(cost(x) for x in vq)
                vdone = 0
                vspan = (o.vstart, o.vend)
                if isA and p == 2:
                    vspan = (max(o.vstart, 1), o.vend_kv)
                if p:
                    self.stamp(a, 'pass%d' % (p - 1))
            if n % 4 == 0:
                self.stamp(a, 'c%d' % (n // 4))
            nn = n + PF
            if nn < 96 and nn % 4 == 0:
                cb = nn // 4
                if cb in bar_chunks:
                    if isA and cb == o.kv_bar:
                        a.wait_lg('kvw')
                    barrier_for(cb)
                if gate and cb == 16:
                    a.wait_vm('gate')
                if cb < 8:
                    xreads(cb)
            if nn == 96:
                if isA:
                    a.wait_lg('kvr')
                a('s_barrier')
            xf = vr(self.XA + 4 * s32, 4)
            wf = vr(wbuf(n), 4)
            d = vr(acc(p), 16)
            first = s32 == 0
            if first and not isA and not (gate and p == 2):
                bb, sel = [(0, 2), (0, 0), (2, 0)][p]
                a(MFMA % (d, vr(self.vBias + bb, 4), vr(self.vSel + sel, 4), '0'))
                first = False
            A_, B_ = (xf, wf) if (isA and p < 2) else (wf, xf)
            a(MFMA % (d, A_, B_, '0' if first else d))
            if nn < 96:
                for tx in reads_for(nn):
                    a.ds(tx)
            if vq and s32 >= vspan[0]:
                frac = min(1.0, (s32 - vspan[0] + 1) / float(vspan[1] - vspan[0]))
                while vq and vdone < frac * vtot:
                    op = vq.pop(0)
                    if isinstance(op, str) and op.startswith('v_mfma') and ('v[%d:' % self.blk(0)) in op.split(',')[0]:
                        assert n >= 68
                    vdone += cost(op)
                    emit(op)
            for it in extra[n]:
                it()
            for k, c in plan[n]:
                if k == 'x':
                    self.dma_x(a, c)
                elif k == 'w':
                    self.dma_w(a, c)
                else:
                    self.dma_u(a, c, upiece[c])
            if s32 == 31:
                assert not vq
        self.stamp(a, 'pass2')

        vq = epilogue_ops(2, o.pk_final)
        side = []
        freep = [p for t, p in free]
        state = dict(nu=nu, nr=0, nact=nact)

        def issue_u():
            if state['nu'] < NH and freep:
                h = state['nu']
                pc, prev = freep.pop(0) if isinstance(freep[0], tuple) else (freep.pop(0), None)
                if prev is not None:
                    a.wait_lg(('ur', prev))
                upiece[h] = pc
                self.dma_u(a, h, pc)
                state['nu'] += 1

        def read_next():
            h = state['nr']
            assert h < state['nu']
            self.read_u(a, h, upiece[h])
            freep.append((upiece[h], h))
            state['nr'] += 1

        def act_next(limit):
            if state['nact'] < limit:
                m, g = divmod(state['nact'], 2)
                self.load_act(a, m, g, m % 8)
                state['nact'] += 1

        if gate:
            side.append(lambda: a.wait_all(vm=False))
        for i in range(len(freep)):
            side.append(issue_u)
        if isb:
            if o.p1_issue >= 96:
                side.insert(0, lambda: lvl_load(0)(a))
            else:
                for i in range(8 - nact):
                    side.append(lambda: act_next(8))
        if not isA:
            side.insert(min(len(side), o.l2_pos), lambda: flag_store(1, 'st1'))
        elif not isb and o.kvc_n >= 96:
            side.append(kv_count)
        k = max(1, len(vq) // (len(side) + 1))
        for j, op in enumerate(vq):
            if side and j % k == k - 1:
                side.pop(0)()
            emit(op)
        for it in side:
            it()
        self.stamp(a, 'epi')

        def acc2(t, rt):
            return self.acc2 + 16 * (rt * 2 + t)

        a('v_and_b32 v%d, 31, v1' % t1)

        def g_load():
            a('s_lshl_b32 s%d, s%d, 13' % (sT0, sJ))
            a('s_add_u32 s%d, s%d, 0x%x' % (sT0, sT0, GOFF))
            a('v_lshrrev_b32 v%d, 11, v%d' % (t2, self.vActLd))
            a('v_lshlrev_b32 v%d, 7, v%d' % (t2, t2))
            a('v_lshl_add_u32 v%d, v%d, 2, v%d' % (t2, t1, t2))
            a('buffer_load_dword v%d, v%d, %s, s%d offen sc1' % (self.vG, t2, srd(S_WS), sT0), tag='g')

        if isb:
            a('s_cmp_eq_u32 s%d, 0' % sJ)
            a('s_cselect_b32 s%d, 0, 0x%x' % (sT2, OOB))
            a('s_lshl_b32 s%d, s%d, 7' % (sT3, sCT))
            a('s_add_u32 s%d, s%d, s%d' % (sT2, sT2, sT3))
            a('v_lshlrev_b32 v%d, 1, v%d' % (t2, t1))
            for t in range(2):
                a('v_mov_b32 v%d, 0' % (self.vB2 + 2 * t + 1))
                a('buffer_load_ushort v%d, v%d, %s, s%d offen offset:%d' % (self.vB2 + 2 * t, t2, srd(S_M1), sT2, 64 * t), tag='bias')
            if o.p1_issue >= 96:
                self.check(a, lvl_load(0), lvl_cmp)
                for i in range(8):
                    act_next(8)
            self.stamp(a, 'P1')
            read_next()
            read_next()
            ev = {h: [] for h in range(NH)}

            def chk(level, name):
                def f():
                    self.check(a, lvl_load(level), lvl_cmp)
                    self.stamp(a, name)
                return f
            ev[o.b_l3].append(lambda: flag_store(2, 'st2'))
            ev[o.b_p2i].append(lambda: lvl_load(1)(a))
            ev[o.b_p2c].append(chk(1, 'P2'))
            ev[o.b_p3i].append(lambda: lvl_load(2)(a))
            ev[o.b_p3c].append(chk(2, 'P3'))
            ev[o.b_p3c].append(g_load)
            assert o.b_p2c <= o.b_p3i and o.b_l3 <= o.b_p3c
            for h in range(NH):
                m, g = divmod(h, 2)
                for f in ev[h]:
                    f()
                lim = 8 if h < o.b_p2c else (16 if h < o.b_p3c else NH)
                lim = min(lim, 2 * (m + 8))
                fill = [issue_u]
                if state['nr'] < NH:
                    fill.append(read_next)
                fill += [lambda: act_next(lim) for _ in range(o.b_actper)]
                assert state['nact'] > h
                for rt in range(2):
                    for t in range(2):
                        dd = vr(acc2(t, rt), 16)
                        a(MFMA % (dd, vr(self.ufrag(h, t), 4), vr(self.blk(m % 8) + 8 * g + 4 * rt, 4), '0' if h == 0 else dd))
                        if fill:
                            fill.pop(0)()
                for f in fill:
                    f()
                if h == 3:
                    for rt in range(2):
                        for t in range(2):
                            dd = vr(acc2(t, rt), 16)
                            a(MFMA % (dd, vr(self.vB2, 4), vr(self.vSel + (2 if t == 0 else 0), 4), dd))
        else:
            def cnt_load(aa):
                aa('buffer_load_dword v%d, v%d, %s, s%d offen sc1' % (self.vExp, t3, srd(S_WS), sT0), tag='poll')

            def cnt_cmp(aa):
                aa('v_cmp_eq_u32 vcc, 16, v%d' % self.vExp)
            a('s_lshl_b32 s%d, s%d, 10' % (sT0, sJ))
            a('s_add_u32 s%d, s%d, 0x%x' % (sT0, sT0, CNT))
            a('v_and_b32 v%d, 7, v1' % t3)
            a('v_lshlrev_b32 v%d, 7, v%d' % (t3, t3))
            read_next()
            read_next()
            for i in range(3):
                issue_u()
            flag_store(2, 'st2')
            cnt_load(a)
            lvl_load(2)(a)
            vkv = self.vB2
            a('v_lshrrev_b32 v%d, 5, v1' % t2)
            a('v_lshlrev_b32 v%d, 4, v%d' % (vkv, t1))
            a('v_lshl_add_u32 v%d, v%d, 8, v%d' % (vkv, t2, vkv))
            a('v_lshlrev_b32 v%d, 4, v%d' % (t2, t2))
            a('v_add_u32 v%d, 512, v%d' % (t2, t2))
            a('v_cmp_gt_u32 vcc, 16, v%d' % t1)
            a('v_cndmask_b32 v%d, v%d, v%d, vcc' % (vkv, t2, vkv))
            a('s_mul_i32 s%d, s%d, %d' % (sT2, sJ, 8 * HSTR))
            a('s_add_u32 s%d, s%d, %d' % (sT2, sT2, KVA))
            a('v_add_u32 v%d, s%d, v%d' % (vkv, sT2, vkv))
            a('s_mul_i32 s%d, s%d, %d' % (sKVB, sJ, 8 * HSTR))
            a('s_add_u32 s%d, s%d, 0x%x' % (sKVB, sKVB, KVACC))
            self.check(a, cnt_load, cnt_cmp)
            self.stamp(a, 'P1')
            for i in range(9):
                if i % 4 == 0:
                    a('s_add_u32 m0, s%d, %d' % (sT2, 1024 * i))
                    a('s_add_u32 s%d, s%d, %d' % (sT1, sKVB, 1024 * i))
                a('buffer_load_dwordx4 v%d, %s, s%d offen offset:%d sc1 lds' % (self.vL16, srd(S_WS), sT1, 1024 * (i % 4)), tag=('kv', i))
            self.check(a, lvl_load(2), lvl_cmp)
            self.stamp(a, 'P3')
            for i in range(8):
                act_next(8)
            g_load()
            nd = [self.blk(4), self.blk(5)]
            kraw = self.blk(6)
            kpk = self.blk(7)
            of = self.blk(7) + 8

            def kv_read(h):
                a.wait_vm(*[('kv', i) for i in range(((h + 1) * HSTR - 1) // 1024 + 1)])
                for q in range(2):
                    a.ds('ds_read_b128 %s, v%d offset:%d' % (vr(kraw + 8 * (h & 1) + 4 * q, 4), vkv, h * HSTR + q * QSTR))

            def kv_pack(h):
                for k in range(4):
                    a('v_cvt_pk_bf16_f32 v%d, v%d, v%d' % (kpk + 4 * (h & 1) + k, kraw + 8 * (h & 1) + 2 * k, kraw + 8 * (h & 1) + 2 * k + 1))

            def nd_mfma(i):
                h, rt = divmod(i, 2)
                a(MFMA % (vr(nd[i & 1], 16), vr(kpk + 4 * (h & 1), 4), vr(self.blk(h // 2) + 8 * (h & 1) + 4 * rt, 4), '0'))

            kv_read(0)
            kv_read(1)
            kv_pack(0)
            nd_mfma(0)
            for i in range(16):
                h, rt = divmod(i, 2)
                if rt == 1 and h + 1 < 8:
                    kv_pack(h + 1)
                    if h + 2 < 8:
                        kv_read(h + 2)
                if i + 1 < 16:
                    nd_mfma(i + 1)
                if rt == 0:
                    issue_u()
                    if state['nr'] < NH:
                        read_next()
                b = nd[i & 1]
                den = b + 8
                a('v_add_f32 v%d, 0x%x, v%d' % (den, f2u(1e-6), den))
                a('v_rcp_f32 v%d, v%d' % (den, den))
                for k in range(8):
                    a('v_mul_f32 v%d, v%d, v%d' % (b + k, b + k, den))
                ob = of + 4 * (i & 1)
                for k in range(4):
                    a('v_cvt_pk_bf16_f32 v%d, v%d, v%d' % (ob + k, b + 2 * k, b + 2 * k + 1))
                for t in range(2):
                    dd = vr(acc2(t, rt), 16)
                    a(MFMA % (dd, vr(self.ufrag(h, t), 4), vr(ob, 4), '0' if h == 0 else dd))
        self.stamp(a, 'mm')
        rho = ch

        def kidx(n, hh):
            return max(2 * n + hh - 1, 0)
        a('v_add_u32 v%d, s%d, v%d' % (t2, sP, self.vL16))
        a('v_add_u32 v%d, 0x10000, v%d' % (t3, t2))
        a.wait_all(vm=False)
        for n in (1, 0, 2, 3):
            for hh in range(2):
                if n == 0 and hh == rho:
                    continue
                k = kidx(n, hh)
                for q in range(2):
                    a.ds('ds_write_b128 v%d, %s offset:%d' % (t3 if k >= 4 else t2, vr(self.acc2 + 16 * n + 8 * hh + 4 * q, 4), (k & 3) * REG + q * 1024), tag='red')
        a('s_lshl_b32 s%d, s%d, 11' % (sT0, sJ))
        a('v_add_u32 v%d, s%d, v%d' % (t2, sT0, self.vL16))
        for n in range(4):
            a('v_xor_b32 v%d, 0x%x, v%d' % (self.vUr + n, kidx(n, rho) * REG + n * 2048, t2))
        a('s_lshl_b32 s%d, s%d, 1' % (sT0, sRT))
        a('s_lshr_b32 s%d, s%d, 1' % (sT1, sJ))
        a('s_add_u32 s%d, s%d, s%d' % (sT0, sT0, sT1))
        a('s_lshl_b32 s%d, s%d, 15' % (sT0, sT0))
        a('s_lshl_b32 s%d, s%d, 7' % (sT1, sCT))
        a('s_add_u32 s%d, s%d, s%d' % (sT0, sT0, sT1))
        a('s_and_b32 s%d, s%d, 1' % (sT1, sJ))
        a('s_lshl_b32 s%d, s%d, 6' % (sT1, sT1))
        a('s_add_u32 s%d, s%d, s%d' % (sT0, sT0, sT1))
        a('v_lshrrev_b32 v%d, 5, v1' % t3)
        a('v_lshlrev_b32 v%d, 4, v%d' % (t3, t3))
        a('v_lshl_add_u32 v%d, v%d, 10, v%d' % (t3, t1, t3))
        a.wait_lg('red')
        self.stamp(a, 'wr')
        a('s_barrier')
        self.stamp(a, 'bar')
        own = self.acc2 + 8 * rho
        rb_ = self.XA
        srcs = [(rs, n) for rs in range(2) for n in range(4) if not (rs == rho and n == 0)]
        for i, (rs, n) in enumerate(srcs):
            for q in range(2):
                a.ds('ds_read_b128 %s, v%d offset:%d' % (vr(rb_ + 8 * i + 4 * q, 4), self.vUr + n, rs * 8192 + q * 1024))
        sums = {rho: own}
        for i, (rs, n) in enumerate(srcs):
            if rs not in sums:
                sums[rs] = rb_ + 8 * i
                continue
            for k in range(0, 8, 2):
                a('v_pk_add_f32 %s, %s, %s' % (vr(sums[rs] + k, 2), vr(sums[rs] + k, 2), vr(rb_ + 8 * i + k, 2)))
        for k in range(8):
            a('v_sub_f32 v%d, v%d, v%d' % (sums[0] + k, sums[0] + k, sums[1] + k))
        for k in range(8):
            a('v_fma_f32 v%d, v%d, v%d, v%d' % (sums[0] + k, sums[0] + k, self.vG, sums[1] + k))
        ob = self.XA + 64
        for k in range(4):
            a('v_cvt_pk_bf16_f32 v%d, v%d, v%d' % (ob + k, sums[0] + 2 * k, sums[0] + 2 * k + 1))
        a('v_permlane32_swap_b32 v%d, v%d' % (ob, ob + 2))
        a('v_permlane32_swap_b32 v%d, v%d' % (ob + 1, ob + 3))
        a('buffer_store_dwordx4 %s, v%d, %s, s%d offen offset:%d' % (vr(ob, 4), t3, srd(S_OUT), sT0, 32 * rho))
        if o.diag:
            self.stamp(a, 'end')
            a._put('s_memrealtime s[86:87]')
            a.force_wait('lgkmcnt(0)')
            names = o.stamps.split(',')
            late = [x for x in names if x not in ('karg', 'd0', 'd1', 'd2', 'd3', 's1')]
            for i, nm in enumerate(a.stampn):
                a('s_sub_u32 s%d, s%d, s100' % (40 + 2 * i, 40 + 2 * i))
                a('v_writelane_b32 v%d, s%d, %d' % (self.vStamp, 40 + 2 * i, 6 + late.index(nm)))
            a('v_writelane_b32 v%d, s38, 26' % self.vStamp)
            a('v_writelane_b32 v%d, s86, 31' % self.vStamp)
            a('v_writelane_b32 v%d, s98, 29' % self.vStamp)
            a('s_mov_b32 s%d, %d' % (sT0, 'FGA'.index(var) * 2 + ch))
            a('v_writelane_b32 v%d, s%d, 30' % (self.vStamp, sT0))
            a('s_getreg_b32 s%d, hwreg(HW_REG_XCC_ID)' % sT0)
            a('v_writelane_b32 v%d, s%d, 28' % (self.vStamp, sT0))
            a('s_getreg_b32 s%d, hwreg(HW_REG_HW_ID)' % sT0)
            a('v_writelane_b32 v%d, s%d, 27' % (self.vStamp, sT0))
            a('s_lshl_b32 s%d, s2, 3' % sT0)
            a('s_add_u32 s%d, s%d, s%d' % (sT0, sT0, sWV))
            a('s_lshl_b32 s%d, s%d, 7' % (sT0, sT0))
            a('s_add_u32 s%d, s%d, 0x%x' % (sT0, sT0, STAMP))
            a('v_lshlrev_b32 v%d, 2, v1' % t2)
            a('v_cmp_gt_u32 vcc, 32, v1')
            a('v_mov_b32 v%d, 0x40000000' % t3)
            a('v_cndmask_b32 v%d, v%d, v%d, vcc' % (t2, t3, t2))
            a('buffer_store_dword v%d, v%d, %s, s%d offen' % (self.vStamp, t2, srd(S_WS), sT0))
            self.stampnames = a.stampe + ['-'] * (6 - len(a.stampe)) + late
        a('s_endpgm')
        if o.verbose:
            print(var + role, 'insts', a.ninst, 'nop states', a.nnop, a.stats)

    def build(self):
        self.prologue()
        for pth in ['Ab', 'Aa', 'Fa', 'Fb', 'Ga', 'Gb']:
            self.path(pth[0], pth[1])
        self.a.label('L_end')
        self.a.raw('    s_endpgm')
        ref = open('cdna_kernels/%s.s.ref' % NAME).read().split('\n')
        head = [l for l in ref if l.startswith(';') and '@launch' not in l]
        out = '\n'.join(head) + '\n; generated by tools/gen2.py\n'
        out += '; @launch grid=(256,1,1) block=(512,1,1) lds=163840\n'
        out += '.amdgcn_target "amdgcn-amd-amdhsa--gfx950"\n.text\n.globl %s_kernel\n.p2align 8\n.type %s_kernel,@function\n' % (NAME, NAME)
        out += self.a.text()
        out += '''.section .rodata,"a"
.p2align 6
.amdhsa_kernel %s_kernel
  .amdhsa_next_free_vgpr 256
  .amdhsa_next_free_sgpr 102
  .amdhsa_accum_offset 256
  .amdhsa_group_segment_fixed_size 0
  .amdhsa_kernarg_size 96
  .amdhsa_user_sgpr_count 2
  .amdhsa_user_sgpr_kernarg_segment_ptr 1
  .amdhsa_system_sgpr_workgroup_id_x 1
.end_amdhsa_kernel
''' % NAME
        return out


def parse(argv=None):
    ap = argparse.ArgumentParser()
    ap.add_argument('-o', default='cdna_kernels/%s.s' % NAME)
    ap.add_argument('--diag', action='store_true')
    ap.add_argument('--verbose', action='store_true')
    ap.add_argument('--p2map', type=int, default=0)
    ap.add_argument('--pre', type=int, default=3)
    ap.add_argument('--xlead', type=int, default=0)
    ap.add_argument('--bfine', type=int, default=8)
    ap.add_argument('--bgroup', type=int, default=2)
    ap.add_argument('--ratea', default='1.0,0.5,0.5')
    ap.add_argument('--rateb', default='1.0,0.5,0.5')
    ap.add_argument('--ustart', type=int, default=0)
    ap.add_argument('--vstart', type=int, default=2)
    ap.add_argument('--vend', type=int, default=26)
    ap.add_argument('--vend_kv', type=int, default=10)
    ap.add_argument('--kvw_n', type=int, default=76)
    ap.add_argument('--kv_bar', type=int, default=20)
    ap.add_argument('--rot', type=int, default=0)
    ap.add_argument('--touch', default='-1,-1')
    ap.add_argument('--kvc_n', type=int, default=93)
    ap.add_argument('--pub_n', type=int, default=0)
    ap.add_argument('--ep_issue', type=int, default=40)
    ap.add_argument('--ep_check', type=int, default=56)
    ap.add_argument('--l1_n', type=int, default=72)
    ap.add_argument('--p1_issue', type=int, default=82)
    ap.add_argument('--p1_check', type=int, default=92)
    ap.add_argument('--act_gap', type=int, default=1)
    ap.add_argument('--l2_pos', type=int, default=99)
    ap.add_argument('--b_l3', type=int, default=3)
    ap.add_argument('--b_p2i', type=int, default=2)
    ap.add_argument('--b_p2c', type=int, default=4)
    ap.add_argument('--b_p3i', type=int, default=8)
    ap.add_argument('--b_p3c', type=int, default=11)
    ap.add_argument('--b_actper', type=int, default=2)
    ap.add_argument('--pk_final', type=int, default=1)
    ap.add_argument('--spin', type=int, default=20000)
    ap.add_argument('--sleep', type=int, default=1)
    ap.add_argument('--stamps', default='karg,d0,d1,d2,s1,first,pass0,pass1,pass2,epi,P1,P2,P3,mm,wr,bar,end')
    ap.add_argument('--no', default='')
    return ap.parse_args(argv)


if __name__ == '__main__':
    o = parse()
    g = Gen(o)
    txt = g.build()
    open(o.o, 'w').write(txt)
    if o.diag:
        print('stamps:', g.stampnames)
        open(o.o[:-2] + '.stamps', 'w').write(' '.join(g.stampnames))
    print('wrote', o.o, len(txt), 'bytes')
```

```python
import sys, os, struct, argparse
sys.path.insert(0, os.path.dirname(os.path.abspath(__file__)))
from asmlib import Asm

NAME = "gated_mix__linear_attn_block__dense_activation_gelu__prompt"

UNIT = 131072
KVACC = 0x780000
HSTR, QSTR = 1152, 576
CNT = 0x78A000
GOFF = 0x792000
STAMP = 0x7C0000
FLAG = 0x800000
EOFF = 0x900000
WS_SIZE = 0x900080
OOB = 0x40000000

W_BASE = 65536
NSLOT = 12
REG = 16384
KVA = 7 * REG


def f2u(x):
    return struct.unpack('<I', struct.pack('<f', x))[0]


LOG2E = 1.4426950408889634
GC0 = -2.0 * 0.7978845608028654 * LOG2E
GC1 = GC0 * 0.044715

S_X, S_W, S_WS, S_U, S_OUT, S_DBG, S_M1, S_M2 = 4, 8, 12, 16, 20, 24, 28, 32
P_X, P_WQKV, P_WO, P_W1, P_B1, P_W2, P_B2, P_GATE, P_OUT, P_DBG, P_WS = 40, 42, 44, 48, 50, 52, 54, 56, 58, 60, 62
sWV, sJ, sRB, sCG, sGRP, sRT, sCT, sP, sWQ = 64, 65, 66, 67, 68, 69, 70, 71, 72
sT0, sT1, sT2, sT3 = 73, 74, 75, 76
sUST = 77
sUA, sUB, sUA5 = 78, 79, 80
sAA, sAB, sAA5 = 81, 82, 83
sE = 84
sSPIN = 85
sC1, sONE = 88, 90
sLOG = 92
sKVB = 93
sROT = 3
sXCD, sIDX = 86, 87
ESTAMP = [32, 34, 36, 38, 94, 96]


def srd(n):
    return 's[%d:%d]' % (n, n + 3)


def vr(b, n):
    return 'v[%d:%d]' % (b, b + n - 1)


class VAlloc:
    def __init__(self, start):
        self.n = start

    def get(self, cnt=1, align=1):
        self.n = (self.n + align - 1) // align * align
        r = self.n
        self.n += cnt
        return r


MFMA = 'v_mfma_f32_32x32x16_bf16 %s, %s, %s, %s'


class Gen:
    def __init__(self, opt):
        self.o = opt
        self.a = Asm()
        self.lbl = 0
        self.no = set(opt.no.split(','))
        va = VAlloc(2)
        g = va.get
        self.vL16 = g()
        self.vStamp = g()
        self.vUd = g(2)
        self.vUr = g(4)
        self.vActLd = g(2)
        self.vFlagW = g()
        self.vFlagR = g()
        self.vExp = g()
        self.vPoll = g()
        self.vEpoch = g()
        self.vG = g()
        self.vTmp = g(4, 2)
        self.vSel = g(6, 2)
        self.vB2 = g(4, 2)
        assert va.n <= 36, va.n
        va.n = 36
        self.acc2 = 36
        self.acc0 = g(16)
        self.wf = g(12)
        self.et = g(8)
        self.pk = g(8)
        self.vBias = g(6)
        self.vC0 = g(2)
        self.vXd = g(2)
        self.vXr = g(4)
        self.vWr = g(2)
        self.vMisc = g(2)
        self.vWd = g()
        self.vActSt = g()
        assert va.n == 100, va.n
        self.acc1 = g(16)
        self.pk2 = g(8)
        self.ubuf = 100
        self.vSp = g(4)
        assert va.n == 128
        self.XA = 128

    def blk(self, k):
        return self.XA + 16 * k

    def newlabel(self, s):
        self.lbl += 1
        return 'L%s_%d' % (s, self.lbl)

    def stamp(self, a, name, early=False):
        if not self.o.diag or name not in self.o.stamps.split(','):
            return
        if early:
            i = len(a.stampe)
            a.stampe.append(name)
            assert i < 6
            a._put('s_memtime s[%d:%d]' % (ESTAMP[i], ESTAMP[i] + 1))
            return
        i = len(a.stampn)
        a.stampn.append(name)
        assert i < 12
        a._put('s_memtime s[%d:%d]' % (40 + 2 * i, 41 + 2 * i))

    def save_early(self, a):
        if not self.o.diag:
            return
        a.force_wait('lgkmcnt(0)')
        a('v_mov_b32 v%d, 0' % self.vStamp)
        for i in range(len(a.stampe)):
            a('s_sub_u32 s%d, s%d, s100' % (ESTAMP[i], ESTAMP[i]))
            a('v_writelane_b32 v%d, s%d, %d' % (self.vStamp, ESTAMP[i], i))

    def mksrd(self, a, d, p, size):
        a('s_mov_b32 s%d, s%d' % (d, p))
        a('s_mov_b32 s%d, s%d' % (d + 1, p + 1))
        a('s_mov_b32 s%d, 0x%x' % (d + 2, size))
        a('s_mov_b32 s%d, 0x20000' % (d + 3))

    def prologue(self):
        a, o = self.a, self.o
        a.stampn, a.stampe = [], []
        a.label(NAME + '_kernel')
        a('s_cmp_ge_u32 s2, 256')
        a('s_cbranch_scc1 L_end')
        a._put('s_load_dwordx16 s[40:55], s[0:1], 0')
        a._put('s_load_dwordx8 s[56:63], s[0:1], 64')
        if o.diag:
            a._put('s_memtime s[100:101]')
            a._put('s_memrealtime s[98:99]')
        a('v_lshrrev_b32 v1, 6, v0')
        a('s_and_b32 s%d, s2, 7' % sT0)
        a('v_readfirstlane_b32 s%d, v1' % sWV)
        a('s_lshr_b32 s%d, s2, 3' % sT1)
        a('v_and_b32 v1, 63, v0')
        a('s_and_b32 s%d, s%d, 1' % (sRB, sT0))
        a('s_lshl_b32 s%d, s%d, 3' % (sRB, sRB))
        a('s_and_b32 s%d, s%d, 7' % (sT2, sT1))
        a('s_add_u32 s%d, s%d, s%d' % (sRB, sRB, sT2))
        a('s_lshr_b32 s%d, s%d, 1' % (sCG, sT0))
        a('s_lshl_b32 s%d, s%d, 2' % (sCG, sCG))
        a('s_lshr_b32 s%d, s%d, 3' % (sT2, sT1))
        a('s_add_u32 s%d, s%d, s%d' % (sCG, sCG, sT2))
        a('s_and_b32 s%d, s%d, 7' % (sGRP, sCG))
        if o.p2map == 0:
            a('s_lshl_b32 s%d, s%d, 2' % (sRT, sT0))
            a('s_and_b32 s%d, s%d, 3' % (sT2, sT1))
            a('s_add_u32 s%d, s%d, s%d' % (sRT, sRT, sT2))
            a('s_lshr_b32 s%d, s%d, 2' % (sCT, sT1))
        else:
            a('s_lshr_b32 s%d, s%d, 1' % (sRT, sT0))
            a('s_lshl_b32 s%d, s%d, 3' % (sRT, sRT))
            a('s_and_b32 s%d, s%d, 7' % (sT2, sT1))
            a('s_add_u32 s%d, s%d, s%d' % (sRT, sRT, sT2))
            a('s_and_b32 s%d, s%d, 1' % (sCT, sT0))
            a('s_lshl_b32 s%d, s%d, 2' % (sCT, sCT))
            a('s_lshr_b32 s%d, s%d, 3' % (sT2, sT1))
            a('s_add_u32 s%d, s%d, s%d' % (sCT, sCT, sT2))
        a('s_and_b32 s%d, s%d, 3' % (sJ, sWV))
        a('s_mov_b32 s%d, s%d' % (sXCD, sT0))
        a('s_mov_b32 s%d, s%d' % (sIDX, sT1))
        if o.rot == 1:
            a('s_lshr_b32 s%d, s%d, 3' % (sT2, sT1))
            a('s_lshl_b32 s%d, s%d, 1' % (sT2, sT2))
            a('s_add_u32 s%d, s%d, s%d' % (sROT, sT1, sT2))
            a('s_bfe_u32 s%d, s%d, 0x10001' % (sT2, sT0))
            a('s_add_u32 s%d, s%d, s%d' % (sROT, sROT, sT2))
            a('s_and_b32 s%d, s%d, 7' % (sROT, sROT))
        a('s_lshl_b32 s%d, s%d, 11' % (sP, sWV))
        a('s_lshl_b32 s%d, s%d, 10' % (sWQ, sWV))
        a('s_add_u32 s%d, s%d, %d' % (sWQ, sWQ, W_BASE))
        t0, t1, t2, t3 = [self.vTmp + i for i in range(4)]
        a('v_lshrrev_b32 v%d, 3, v1' % t0)
        a('v_and_b32 v%d, 7, v1' % t1)
        a('v_lshrrev_b32 v%d, 4, v1' % t2)
        a('v_xor_b32 v%d, v%d, v%d' % (t3, t1, t2))
        a('v_lshlrev_b32 v%d, 4, v%d' % (t3, t3))
        a('v_lshl_add_u32 v%d, v%d, 10, v%d' % (t3, t0, t3))
        a('s_lshl_b32 s%d, s%d, 3' % (sT2, sRB))
        a('s_add_u32 s%d, s%d, s%d' % (sT2, sT2, sWV))
        a('s_lshl_b32 s%d, s%d, 14' % (sT3, sT2))
        a('v_add_u32 v%d, s%d, v%d' % (self.vXd, sT3, t3))
        a('v_xor_b32 v%d, 64, v%d' % (self.vXd + 1, self.vXd))
        a('v_add_u32 v%d, %d, v%d' % (self.vXd + 1, 7168, self.vXd + 1))
        a('v_and_b32 v%d, 1, v%d' % (t2, t2))
        a('v_lshlrev_b32 v%d, 2, v%d' % (t2, t2))
        a('v_xor_b32 v%d, v%d, v%d' % (t1, t1, t2))
        a('v_lshlrev_b32 v%d, 4, v%d' % (t1, t1))
        a('v_lshlrev_b32 v%d, 4, v1' % self.vL16)
        a('s_and_b32 s%d, s%d, 1' % (sT3, sGRP))
        a('s_cmp_eq_u32 s%d, 6' % sGRP)
        a('s_cselect_b32 s%d, 1, s%d' % (sT3, sT3))
        a('s_cmp_lt_u32 s%d, 8' % sCG)
        a('s_cselect_b32 s%d, 2, s%d' % (sT3, sT3))
        a('s_lshl_b32 s%d, s%d, 1' % (sT3, sT3))
        a('s_lshr_b32 s%d, s%d, 2' % (sT2, sWV))
        a('s_add_u32 s%d, s%d, s%d' % (sT3, sT3, sT2))
        a('s_add_u32 m0, s%d, 0' % sP)
        for i, nm in enumerate(['Fa', 'Fb', 'Ga', 'Gb', 'Aa']):
            a('s_cmp_eq_u32 s%d, %d' % (sT3, i))
            a('s_cbranch_scc1 L_path' + nm)

    def rotc(self, a, dst, c):
        if c:
            a('s_add_u32 s%d, s%d, %d' % (dst, sROT, c))
            a('s_and_b32 s%d, s%d, 7' % (dst, dst))
            return dst
        return sROT

    def dma_x(self, a, c):
        if c:
            a('s_add_u32 m0, s%d, %d' % (sP, (c & 3) * REG))
        so = 's%d' % sT0
        if self.o.rot:
            a('s_lshl_b32 s%d, s%d, 7' % (sT0, self.rotc(a, sT0, c)))
        elif c:
            a('s_movk_i32 s%d, %d' % (sT0, c * 128))
        else:
            so = '0'
        for i in range(2):
            a('buffer_load_dwordx4 v%d, %s, %s offen offset:%d lds' % (self.vXd + i, srd(S_X), so, 1024 * i), tag=('x', c))

    def dma_w(self, a, n):
        if 'w' in self.no and n >= 4:
            return
        p, c = divmod(n, 8)
        a('s_add_u32 m0, s%d, %d' % (sWQ, (n % NSLOT) * 8192))
        if self.o.rot:
            a('s_mul_i32 s%d, s%d, %d' % (sT1, self.rotc(a, sT1, c), 64 * self.stride))
            if self.passcol[p]:
                a('s_add_u32 s%d, s%d, %d' % (sT1, sT1, self.passcol[p]))
        else:
            a('s_mov_b32 s%d, %d' % (sT1, 64 * c * self.stride + self.passcol[p]))
        a('buffer_load_dwordx4 v%d, %s, s%d offen lds' % (self.vWd, srd(S_W), sT1), tag=('w', n))

    def touch_addr(self, a, var, isb):
        e = self.et
        s0, s1 = sUA, sUB
        st = self.stride
        if not isb:
            a('s_and_b32 s%d, s%d, 1' % (s0, sXCD))
            a('s_lshl_b32 s%d, s%d, 5' % (s0, s0))
            a('s_add_u32 s%d, s%d, s%d' % (s0, s0, sIDX))
            a('s_lshl_b32 s%d, s%d, 2' % (s0, s0))
            a('s_add_u32 s%d, s%d, s%d' % (s0, s0, sJ))
            a('s_lshl_b32 s%d, s%d, 13' % (s0, s0))
            a('s_lshr_b32 s%d, s%d, 1' % (sT0, sXCD))
            a('s_lshl_b32 s%d, s%d, 8' % (sT0, sT0))
            a('s_add_u32 s%d, s%d, s%d' % (s0, s0, sT0))
            a('v_bfe_u32 v%d, v1, 1, 3' % e)
            a('v_lshlrev_b32 v%d, 10, v%d' % (e, e))
            a('v_and_b32 v%d, 1, v1' % (e + 2))
            a('v_lshl_add_u32 v%d, v%d, 7, v%d' % (e, e + 2, e))
            a('s_lshl_b32 s%d, s%d, 2' % (s1, sIDX))
            a('s_add_u32 s%d, s%d, s%d' % (s1, s1, sJ))
            a('s_lshl_b32 s%d, s%d, 12' % (s1, s1))
            a('v_and_b32 v%d, 3, v1' % (e + 1))
        else:
            a('s_lshl_b32 s%d, s%d, 2' % (s0, sIDX))
            a('s_add_u32 s%d, s%d, s%d' % (s0, s0, sJ))
            a('s_mul_i32 s%d, s%d, %d' % (s1, s0, 11 * 1024))
            a('s_mul_i32 s%d, s%d, %d' % (s0, s0, 4 * st))
            a('v_bfe_u32 v%d, v1, 3, 2' % e)
            a('v_mul_u32_u24 v%d, %d, v%d' % (e, st, e))
            a('v_and_b32 v%d, 7, v1' % (e + 2))
            a('v_min_u32 v%d, 5, v%d' % (e + 2, e + 2))
            a('s_bfe_u32 s%d, s%d, 0x10001' % (sT0, sXCD))
            a('s_and_b32 s%d, s%d, 1' % (sT1, sXCD))
            if var == 'A':
                a('s_lshl_b32 s%d, s%d, 9' % (sT0, sT0))
                a('s_lshl_b32 s%d, s%d, 8' % (sT1, sT1))
                a('v_lshrrev_b32 v%d, 1, v%d' % (e + 3, e + 2))
                a('v_lshl_add_u32 v%d, v%d, 10, v%d' % (e, e + 3, e))
                a('v_and_b32 v%d, 1, v%d' % (e + 2, e + 2))
                a('v_lshl_add_u32 v%d, v%d, 7, v%d' % (e, e + 2, e))
            else:
                a('s_mul_i32 s%d, s%d, %d' % (sT0, sT0, 22 * 64))
                a('s_lshl_b32 s%d, s%d, 7' % (sT1, sT1))
                a('v_lshl_add_u32 v%d, v%d, 8, v%d' % (e, e + 2, e))
            a('s_add_u32 s%d, s%d, s%d' % (s0, s0, sT0))
            a('s_add_u32 s%d, s%d, s%d' % (s0, s0, sT1))
            a('v_and_b32 v%d, 15, v1' % (e + 1))
            a('v_min_u32 v%d, 10, v%d' % (e + 1, e + 1))
        a('v_lshlrev_b32 v%d, 10, v%d' % (e + 1, e + 1))
        a('s_lshl_b32 s%d, s%d, 7' % (sT0, sXCD))
        a('s_add_u32 s%d, s%d, s%d' % (s1, s1, sT0))

    def touch(self, a, isb, which):
        e = self.et
        if which == 0:
            a('buffer_load_dword v%d, v%d, %s, s%d offen' % (e + 4, e, srd(S_W if isb else S_X), sUA), tag='touch')
        else:
            a('buffer_load_dword v%d, v%d, %s, s%d offen' % (e + 5, e + 1, srd(S_U), sUB), tag='touch')

    BUNITS = [('A', 0), ('A', 1), ('B', 0), ('B', 1), ('A', 2), ('A', 3), ('B', 2), ('B', 3),
              ('A', 4), ('B', 4), ('A5', 0)]
    AUNITS = [('A', 0), ('A', 1), ('A', 2), ('A', 3)]

    def dma_u(self, a, h, piece):
        if 'u' in self.no:
            return
        m, g = divmod(h, 2)
        grp, idx = self.units[m]
        sreg = {'A': sUA, 'B': sUB, 'A5': sUA5}[grp]
        a('s_add_u32 m0, s%d, %d' % (sP, piece * REG))
        a('s_add_u32 s%d, s%d, %d' % (sT1, sreg, (idx * 32 + g * 16) * 1024))
        for i in range(2):
            a('buffer_load_dwordx4 v%d, %s, s%d offen offset:%d lds' % (self.vUd + i, srd(S_U), sT1, 1024 * i), tag=('u', h))

    def ufrag(self, h, t):
        return self.ubuf + 8 * (h % 3) + 4 * t

    def read_u(self, a, h, piece):
        a.wait_vm(('u', h))
        win, pp = divmod(piece, 4)
        for t in range(2):
            for rd in range(2):
                a.ds('ds_read_b64_tr_b16 %s, v%d offset:%d' % (vr(self.ufrag(h, t) + 2 * rd, 2), self.vUr + win * 2 + t, pp * REG + rd * 1024),
                     tag=('ur', h))

    def load_act(self, a, m, g, blk):
        grp, idx = self.units[m]
        sreg = {'A': sAA, 'B': sAB, 'A5': sAA5}[grp]
        if idx:
            a('s_add_u32 s%d, s%d, %d' % (sT1, sreg, idx * UNIT))
            so = sT1
        else:
            so = sreg
        for rt in range(2):
            a('buffer_load_dwordx4 %s, v%d, %s, s%d offen offset:%d sc1' % (
                vr(self.blk(blk) + 8 * g + 4 * rt, 4), self.vActLd + rt, srd(S_WS), so, 1024 * g), tag=('act', m))

    def gelu_ops(self, accb, pkb, packed):
        et = self.et
        ops = []
        if 'epi' in self.no:
            return ops
        if packed:
            for q in range(0, 16, 8):
                xs = [accb + q + 2 * i for i in range(4)]
                ts = [et + 2 * i for i in range(4)]
                for x, t in zip(xs, ts):
                    ops.append('v_pk_mul_f32 %s, %s, %s' % (vr(t, 2), vr(x, 2), vr(x, 2)))
                for x, t in zip(xs, ts):
                    ops.append('v_pk_fma_f32 %s, %s, s[%d:%d], %s' % (vr(t, 2), vr(t, 2), sC1, sC1 + 1, vr(self.vC0, 2)))
                for x, t in zip(xs, ts):
                    ops.append('v_pk_mul_f32 %s, %s, %s' % (vr(t, 2), vr(t, 2), vr(x, 2)))
                for i in range(8):
                    ops.append('v_exp_f32 v%d, v%d' % (et + i, et + i))
                for t in ts:
                    ops.append('v_pk_add_f32 %s, %s, s[%d:%d]' % (vr(t, 2), vr(t, 2), sONE, sONE + 1))
                for i in range(8):
                    ops.append('v_rcp_f32 v%d, v%d' % (et + i, et + i))
                for x, t in zip(xs, ts):
                    ops.append('v_pk_mul_f32 %s, %s, %s' % (vr(t, 2), vr(t, 2), vr(x, 2)))
                for j, t in enumerate(ts):
                    ops.append('v_cvt_pk_bf16_f32 v%d, v%d, v%d' % (pkb + q // 2 + j, t, t + 1))
        else:
            for q in range(0, 16, 4):
                R = range(4)
                e = et + (q & 4)
                ops += ['v_mul_f32 v%d, v%d, v%d' % (e + i, accb + q + i, accb + q + i) for i in R]
                ops += ['v_fma_f32 v%d, v%d, s%d, v%d' % (e + i, e + i, sC1, self.vC0) for i in R]
                ops += ['v_mul_f32 v%d, v%d, v%d' % (e + i, e + i, accb + q + i) for i in R]
                ops += ['v_exp_f32 v%d, v%d' % (e + i, e + i) for i in R]
                ops += ['v_add_f32 v%d, 1.0, v%d' % (e + i, e + i) for i in R]
                ops += ['v_rcp_f32 v%d, v%d' % (e + i, e + i) for i in R]
                ops += ['v_mul_f32 v%d, v%d, v%d' % (e + i, e + i, accb + q + i) for i in R]
                ops += ['v_cvt_pk_bf16_f32 v%d, v%d, v%d' % (pkb + q // 2 + j, e + 2 * j, e + 2 * j + 1) for j in range(2)]
        return ops

    def phi_ops(self, accb, pkb):
        et = self.et
        ops = []
        if 'epi' in self.no:
            return ops
        for q in range(0, 16, 4):
            R = range(4)
            ops += ['v_mul_f32 v%d, s%d, v%d' % (et + i, sLOG, accb + q + i) for i in R]
            ops += ['v_exp_f32 v%d, v%d clamp' % (et + i, et + i) for i in R]
            ops += ['v_max_f32 v%d, 0x%x, v%d' % (et + 4 + i, f2u(1e-6), accb + q + i) for i in R]
            ops += ['v_add_f32 v%d, v%d, v%d' % (et + i, et + i, et + 4 + i) for i in R]
            ops += ['v_cvt_pk_bf16_f32 v%d, v%d, v%d' % (pkb + q // 2 + j, et + 2 * j, et + 2 * j + 1) for j in range(2)]
        return ops

    def with_stores(self, ops, pkb, unit_rel, tag):
        if 'st' in self.no:
            return ops
        st = []
        for g in range(2):
            st.append([('s_add_u32 s%d, s%d, %d' % (sT2, sUST, unit_rel * UNIT), None),
                       ('buffer_store_dwordx4 %s, v%d, %s, s%d offen offset:%d sc1' % (vr(pkb + 4 * g, 4), self.vActSt, srd(S_WS), sT2, 1024 * g), tag)])
        out = []
        done = False
        for i, op in enumerate(ops):
            out.append(op)
            if not done and i >= 2 and ops[i - 2].startswith('v_cvt_pk_bf16_f32 v%d,' % (pkb + 3)):
                out.append(st[0])
                done = True
        if not done:
            out.append(st[0])
        out.append(st[1])
        return out

    def check(self, a, load, cmps):
        ok = self.newlabel('ok')
        rt = self.newlabel('retry')
        cmps(a)
        a('s_cmp_eq_u64 vcc, -1')
        a('s_cbranch_scc1 ' + ok)
        s = a.fork()
        s('s_mov_b32 s%d, %d' % (sSPIN, self.o.spin))
        s.label(rt)
        if self.o.diag:
            a.nchk = getattr(a, 'nchk', 0) + 1
            s('s_add_u32 s38, s38, %d' % (1 << (6 * (a.nchk - 1))))
        if self.o.sleep:
            s('s_sleep %d' % self.o.sleep)
        load(s)
        s.force_wait('vmcnt(0)')
        cmps(s)
        s('s_cmp_eq_u64 vcc, -1')
        s('s_cbranch_scc1 ' + ok)
        s('s_sub_u32 s%d, s%d, 1' % (sSPIN, sSPIN))
        s('s_cmp_lg_u32 s%d, 0' % sSPIN)
        s('s_cbranch_scc1 ' + rt)
        a.label(ok)

    def path(self, var, role):
        o = self.o
        a = self.a.fork()
        a.stampn, a.stampe = list(self.a.stampn), list(self.a.stampe)
        a.label('L_path' + var + role)
        a.lgmax = 12 if o.diag else 15
        isA, isG = var == 'A', var == 'G'
        isb = role == 'b'
        ch = 1 if isb else 0
        gate = isG and isb
        self.units = self.BUNITS if isb else self.AUNITS
        NU = len(self.units)
        NH = 2 * NU
        self.stride = 3072 if isA else 2752
        self.passcol = [1024, 2048, 0] if isA else [0, 128, 256]
        t0, t1, t2, t3 = [self.vTmp + i for i in range(4)]
        if isA:
            a('s_lshl_b32 s%d, s%d, 7' % (sT2, sGRP))
            a('s_lshl_b32 s%d, s%d, 18' % (sUST, sGRP))
        else:
            a('s_mul_i32 s%d, s%d, 5' % (sT2, sGRP))
            a('s_add_u32 s%d, s%d, 1' % (sT3, sGRP))
            a('s_lshr_b32 s%d, s%d, 1' % (sT3, sT3))
            a('s_min_u32 s%d, s%d, 3' % (sT3, sT3))
            a('s_add_u32 s%d, s%d, s%d' % (sT2, sT2, sT3))
            a('s_add_u32 s%d, s%d, 16' % (sUST, sT2))
            a('s_lshl_b32 s%d, s%d, 17' % (sUST, sUST))
            a('s_lshl_b32 s%d, s%d, 6' % (sT2, sT2))
        a('s_mul_i32 s%d, s%d, %d' % (sT3, sWV, 8 * self.stride))
        a('s_add_u32 s%d, s%d, s%d' % (sT3, sT3, sT2))
        a('v_mul_u32_u24 v%d, %d, v%d' % (self.vWd, self.stride, t0))
        a('v_add3_u32 v%d, v%d, v%d, s%d' % (self.vWd, self.vWd, t1, sT3))
        tpos = [int(x) for x in o.touch.split(',')]
        if max(tpos) >= 0:
            self.touch_addr(a, var, isb)
        a._put('s_waitcnt lgkmcnt(0)')
        self.stamp(a, 'karg', True)
        if o.chain:
            self.mksrd(a, S_M1, 46, 2048 * 1024)
            a('v_mov_b32 v200, 0')
            for i in range(o.chain):
                a('buffer_load_dword v201, v200, %s, 0 offen' % srd(S_M1), tag='chain')
                a.wait_vm('chain')
                a('v_and_b32 v201, 0, v201')
                a('v_add3_u32 v200, v200, v201, 0x1080' if False else 'v_add_u32 v200, v200, v201')
                a('v_add_u32 v200, %d, v200' % 4224)
        self.mksrd(a, S_X, P_X, 2048 * 1024)
        if isA:
            self.mksrd(a, S_W, P_WQKV, 512 * 3072)
        else:
            self.mksrd(a, S_W, P_W1, 512 * 2752)
        if tpos[0] == 0:
            self.touch(a, isb, 0)
        if isb:
            self.mksrd(a, S_U, P_W2, 1376 * 1024)
        else:
            self.mksrd(a, S_U, P_WO, 512 * 1024)
        if tpos[1] == 0:
            self.touch(a, isb, 1)
        self.dma_x(a, 0)
        self.dma_w(a, 0)
        if isA and not isb:
            skip = self.newlabel('nopub')
            a('s_or_b32 s%d, s2, s%d' % (sT3, sWV))
            a('s_cbranch_scc1 ' + skip)
            a('s_mov_b32 s%d, 0x%x' % (sT3, EOFF))
            a._put('s_load_dword s%d, s[%d:%d], s%d' % (sE, P_WS, P_WS + 1, sT3))
            a.label(skip)
            a.lgmax -= 1
        self.stamp(a, 'd0', True)
        for c in range(1, o.pre):
            for w in range(2):
                if tpos[w] == c:
                    self.touch(a, isb, w)
            self.dma_x(a, c)
            if c == o.pre - 1:
                self.mksrd(a, S_WS, P_WS, WS_SIZE)
                if isA and isb:
                    skip = self.newlabel('noinit')
                    a('s_or_b32 s%d, s%d, s%d' % (sT3, sRB, sJ))
                    a('s_cbranch_scc1 ' + skip)
                    z = self.pk
                    for i in range(4):
                        a('v_mov_b32 v%d, 0' % (z + i))
                    a('s_mul_i32 s%d, s%d, %d' % (sT0, sGRP, 4 * HSTR))
                    a('s_add_u32 s%d, s%d, 0x%x' % (sT0, sT0, KVACC))
                    for i in range(4):
                        a('buffer_store_dwordx4 %s, v%d, %s, s%d offen offset:%d sc1' % (vr(z, 4), self.vL16, srd(S_WS), sT0, 1024 * i), count=False)
                    a('s_add_u32 s%d, s%d, 4096' % (sT0, sT0))
                    a('v_add_u32 v%d, s%d, v%d' % (t2, sT0, self.vL16))
                    a('s_lshl_b32 s%d, s%d, 9' % (sT0, sGRP))
                    a('s_add_u32 s%d, s%d, 0x%x' % (sT0, sT0, CNT - 32 * 128))
                    a('v_lshl_add_u32 v%d, v1, 7, s%d' % (t3, sT0))
                    a('v_cmp_gt_u32 vcc, 32, v1')
                    a('v_cndmask_b32 v%d, v%d, v%d, vcc' % (t2, t3, t2))
                    a('v_mov_b32 v%d, 0x%x' % (t3, OOB))
                    a('v_cmp_gt_u32 vcc, 36, v1')
                    a('v_cndmask_b32 v%d, v%d, v%d, vcc' % (t2, t3, t2))
                    a('buffer_store_dwordx4 %s, v%d, %s, 0 offen sc1' % (vr(z, 4), t2, srd(S_WS)), count=False)
                    a.label(skip)
                    a.nop(2)
            self.dma_w(a, c)
            self.stamp(a, 'd%d' % c, True)
        if not isA:
            self.mksrd(a, S_M1, P_B1, 1376 * 2)
            a('v_and_b32 v%d, 31, v1' % t2)
            a('v_lshlrev_b32 v%d, 1, v%d' % (t2, t2))
            for p in range(2 if gate else 3):
                a('buffer_load_ushort v%d, v%d, %s, s%d offen offset:%d' % (self.vBias + 2 * p, t2, srd(S_M1), sT2, 128 * p + 64 * ch), tag='bias')
        a('s_lshl_b32 s%d, s%d, 7' % (sT3, sCT))
        a('v_lshl_add_u32 v%d, v%d, 10, v%d' % (self.vUd, t0, t1))
        a('v_add_u32 v%d, s%d, v%d' % (self.vUd, sT3, self.vUd))
        a('v_add_u32 v%d, 7168, v%d' % (self.vUd + 1, self.vUd))
        a('v_and_b32 v%d, 31, v1' % t0)
        a('v_lshrrev_b32 v%d, 5, v1' % t1)
        a('v_bfe_u32 v%d, v1, 1, 3' % t2)
        a('v_xor_b32 v%d, v%d, v%d' % (t2, t2, t1))
        a('v_lshlrev_b32 v%d, 4, v%d' % (t2, t2))
        a('v_lshl_add_u32 v%d, v%d, 7, v%d' % (t2, t0, t2))
        a('s_lshl_b32 s%d, s%d, 12' % (sT0, sJ))
        a('v_add_u32 v%d, s%d, v%d' % (self.vXr, sT0, t2))
        for s in range(1, 4):
            a('v_xor_b32 v%d, %d, v%d' % (self.vXr + s, 32 * s, self.vXr))
        for i in range(6):
            if i != 2:
                a('v_mov_b32 v%d, 0' % (self.vSel + i))
        a('v_xor_b32 v%d, 1, v%d' % (t3, t1))
        a('v_mul_u32_u24 v%d, 0x3f80, v%d' % (self.vSel + 2, t3))
        if not isA:
            for i in range(3):
                a('v_mov_b32 v%d, 0' % (self.vBias + 2 * i + 1))
        a('s_lshl_b32 s%d, s%d, 2' % (sT1, sRB))
        a('s_add_u32 s%d, s%d, s%d' % (sT1, sT1, sJ))
        a('s_lshl_b32 s%d, s%d, 11' % (sT0, sT1))
        a('v_add_u32 v%d, s%d, v%d' % (self.vActSt, sT0, self.vL16))
        if gate:
            a('v_lshl_add_u32 v%d, v%d, 4, s%d' % (self.vMisc, t1, sP))
            a('s_lshr_b32 s%d, s%d, 1' % (sT0, sGRP))
            a('s_lshl_b32 s%d, s%d, 13' % (sT0, sT0))
            a('s_lshl_b32 s%d, s%d, 7' % (sT1, sT1))
            a('s_add_u32 s%d, s%d, s%d' % (sT0, sT0, sT1))
            a('s_add_u32 s%d, s%d, 0x%x' % (sT0, sT0, GOFF))
            a('v_lshl_add_u32 v%d, v%d, 2, s%d' % (self.vMisc + 1, t0, sT0))
        a('v_bfe_u32 v%d, v1, 2, 2' % t0)
        a('v_and_b32 v%d, 3, v1' % t2)
        a('v_lshlrev_b32 v%d, 3, v%d' % (t2, t2))
        a('v_bfe_u32 v%d, v1, 4, 1' % t3)
        a('v_lshl_add_u32 v%d, v%d, 5, v%d' % (t2, t3, t2))
        a('v_bfe_u32 v%d, v1, 3, 1' % t3)
        a('v_lshl_add_u32 v%d, v%d, 6, v%d' % (t2, t3, t2))
        a('v_lshl_add_u32 v%d, v%d, 7, v%d' % (t2, t0, t2))
        a('v_lshl_add_u32 v%d, v%d, 10, v%d' % (t3, t1, t2))
        if ch:
            a('v_xor_b32 v%d, 64, v%d' % (t3, t3))
        a('v_add_u32 v%d, %d, v%d' % (self.vWr, W_BASE, t3))
        a('v_add_u32 v%d, 49152, v%d' % (self.vWr + 1, self.vWr))
        a('v_lshl_add_u32 v%d, v%d, 9, v%d' % (t3, t1, t2))
        a('s_and_b32 s%d, s%d, 1' % (sT0, sWV))
        a('s_lshl_b32 s%d, s%d, 6' % (sT0, sT0))
        a('v_xor_b32 v%d, s%d, v%d' % (t3, sT0, t3))
        a('v_add_u32 v%d, s%d, v%d' % (self.vUr, sP, t3))
        a('v_xor_b32 v%d, 64, v%d' % (self.vUr + 1, self.vUr))
        a('v_add_u32 v%d, 0x10000, v%d' % (self.vUr + 2, self.vUr))
        a('v_add_u32 v%d, 0x10000, v%d' % (self.vUr + 3, self.vUr + 1))
        for r, val in ((sC1, GC1), (sC1 + 1, GC1), (sLOG, LOG2E), (sONE, 1.0), (sONE + 1, 1.0)):
            a('s_mov_b32 s%d, 0x%x' % (r, f2u(val)))
        if not isA:
            a('v_mov_b32 v%d, 0x%x' % (self.vC0, f2u(GC0)))
            a('v_mov_b32 v%d, 0x%x' % (self.vC0 + 1, f2u(GC0)))
        self.stamp(a, 's1', True)
        self.save_early(a)
        self.mksrd(a, S_DBG, P_DBG, 256)
        if o.diag:
            a('s_mov_b32 s38, 0')
        if gate:
            self.mksrd(a, S_M2, P_GATE, 1024)
        if isb:
            self.mksrd(a, S_M1, P_B2, 1024)
        self.mksrd(a, S_OUT, P_OUT, 2048 * 1024)
        if isb:
            a('s_mul_i32 s%d, s%d, 11' % (sT0, sJ))
            a('s_cmp_eq_u32 s%d, 3' % sJ)
            a('s_cselect_b32 s%d, 5, 6' % sT1)
            a('s_cselect_b32 s%d, 0x%x, 0' % (sT2, OOB))
            a('s_add_u32 s%d, s%d, s%d' % (sT1, sT1, sT0))
            a('s_lshl_b32 s%d, s%d, 15' % (sUA, sT0))
            a('s_lshl_b32 s%d, s%d, 15' % (sUB, sT1))
            a('s_add_u32 s%d, s%d, %d' % (sUA5, sUA, 5 * 32768))
            a('s_add_u32 s%d, s%d, s%d' % (sUA5, sUA5, sT2))
            a('s_add_u32 s%d, s%d, 16' % (sT0, sT0))
            a('s_add_u32 s%d, s%d, 16' % (sT1, sT1))
            a('s_lshl_b32 s%d, s%d, 17' % (sAA, sT0))
            a('s_lshl_b32 s%d, s%d, 17' % (sAB, sT1))
            a('s_add_u32 s%d, s%d, %d' % (sAA5, sAA, 5 * UNIT))
            a('s_add_u32 s%d, s%d, s%d' % (sAA5, sAA5, sT2))
        else:
            a('s_lshl_b32 s%d, s%d, 17' % (sUA, sJ))
            a('s_lshl_b32 s%d, s%d, 19' % (sAA, sJ))
        a('s_lshl_b32 s%d, s%d, 1' % (sT0, sRT))
        a('s_lshr_b32 s%d, s%d, 1' % (sT1, sJ))
        a('s_add_u32 s%d, s%d, s%d' % (sT0, sT0, sT1))
        a('s_lshl_b32 s%d, s%d, 11' % (sT1, sT0))
        a('v_add_u32 v%d, s%d, v%d' % (self.vActLd, sT1, self.vL16))
        a('v_xor_b32 v%d, 2048, v%d' % (self.vActLd + 1, self.vActLd))
        a('s_lshl_b32 s%d, s%d, 4' % (sT0, sRB))
        a('s_add_u32 s%d, s%d, s%d' % (sT0, sT0, sCG))
        a('s_lshl_b32 s%d, s%d, 3' % (sT0, sT0))
        a('s_add_u32 s%d, s%d, s%d' % (sT0, sT0, sWV))
        a('s_lshl_b32 s%d, s%d, 9' % (sT0, sT0))
        a('s_add_u32 s%d, s%d, 0x%x' % (sT0, sT0, FLAG))
        a('v_mov_b32 v%d, s%d' % (self.vFlagW, sT0))
        a('s_lshr_b32 s%d, s%d, 1' % (sT0, sRT))
        a('s_lshl_b32 s%d, s%d, 3' % (sT0, sT0))
        a('s_add_u32 s%d, s%d, s%d' % (sT0, sT0, sJ))
        a('s_lshl_b32 s%d, s%d, 3' % (sT0, sT0))
        a('s_and_b32 s%d, s%d, 1' % (sT1, sRT))
        a('s_add_u32 s%d, s%d, s%d' % (sT0, sT0, sT1))
        a('s_lshl_b32 s%d, s%d, 10' % (sT0, sT0))
        a('s_add_u32 s%d, s%d, 0x%x' % (sT0, sT0, FLAG + (8 * 4096 if isb else 0)))
        a('v_and_b32 v%d, 1, v1' % t0)
        a('v_bfe_u32 v%d, v1, 1, 1' % t2)
        a('v_lshlrev_b32 v%d, 12, v%d' % (t0, t0))
        a('v_lshl_add_u32 v%d, v%d, 9, v%d' % (t0, t2, t0))
        a('v_bfe_u32 v%d, v1, 2, 1' % t2)
        a('v_lshl_add_u32 v%d, v%d, 11, v%d' % (t0, t2, t0))
        if not isb:
            a('v_bfe_u32 v%d, v1, 3, 1' % t2)
            a('v_lshl_add_u32 v%d, v%d, 15, v%d' % (t0, t2, t0))
        a('v_add_u32 v%d, s%d, v%d' % (self.vFlagR, sT0, t0))
        if isA:
            a('s_lshl_b32 s%d, s%d, 12' % (sT0, sWV))
            a('s_add_u32 s%d, s%d, %d' % (sT0, sT0, W_BASE))
            a('v_add_u32 v%d, s%d, v%d' % (self.vMisc, sT0, self.vL16))
        a('v_mov_b32 v%d, 0' % self.vTmp)
        self.stamp(a, 'setup')

        PF = 2
        bar_chunks = list(range(o.bfine)) + list(range(o.bfine, 24, o.bgroup))

        def bar_n(c):
            return max(0, 4 * c - PF)

        def wbuf(n):
            return self.wf + (n % 3) * 4

        def reads_for(n):
            c, s = divmod(n, 4)
            win, sl = divmod(c % NSLOT, 6)
            if gate and n >= 64:
                return ['ds_read_b128 %s, v%d offset:%d' % (vr(wbuf(n), 4), self.vMisc, 3 * REG + 32 * (n % 32))]
            return ['ds_read_b64_tr_b16 %s, v%d offset:%d' % (vr(wbuf(n) + 2 * rd, 2), self.vWr + win, sl * 8192 + (16 * s + 4 * rd) * 128)
                    for rd in range(2)]

        def barrier_for(c):
            nxt = [x for x in bar_chunks if x > c]
            last = (nxt[0] if nxt else 24) - 1
            tags = [('w', k) for k in range(c, last + 1)] + [('x', k) for k in range(c, last + 1)]
            a.wait_both(tags, [('xr', k) for k in range(c)])
            a('s_barrier')

        def xreads(c):
            for s in range(4):
                a.ds('ds_read_b128 %s, v%d offset:%d' % (vr(self.blk(c) + 4 * s, 4), self.vXr + s, (c & 3) * REG), tag=('xr', c))

        allbars = bar_chunks + [24]

        def first_bar(cmin):
            return bar_n([x for x in allbars if x >= cmin][0])
        piece_free = {}
        for s in range(4):
            piece_free[s] = first_bar(5 + s)
        for s in range(3):
            piece_free[4 + s] = first_bar(15 + 2 * s)
        if isA:
            piece_free[4] = piece_free[5] = first_bar(24)
        if gate:
            piece_free[3] = 96
        free = sorted((t, p) for p, t in piece_free.items())
        plan = {n: [] for n in range(96)}
        nx, nw, nu = o.pre, o.pre, 0
        upiece = {}
        credit = 0.0
        rates = [float(x) for x in (o.rateb if isb else o.ratea).split(',')]
        for n in range(96):
            credit = min(credit + rates[n // 32], 3.0)
            while True:
                if nx < 8 and (nx < 4 or first_bar(nx - 3) <= n) and nx <= nw + o.xlead:
                    if credit < 2:
                        break
                    plan[n].append(('x', nx))
                    nx += 1
                    credit -= 2
                elif nw < 24 and (nw < 12 or first_bar(nw - 10) <= n):
                    if credit < 1:
                        break
                    plan[n].append(('w', nw))
                    nw += 1
                    credit -= 1
                elif nu < NH and free and free[0][0] <= n and n >= o.ustart:
                    if credit < 2:
                        break
                    upiece[nu] = free.pop(0)[1]
                    plan[n].append(('u', nu))
                    nu += 1
                    credit -= 2
                else:
                    break
        assert nx == 8 and nw == 24
        for n in range(96):
            for k, c in plan[n]:
                if k in 'xw':
                    pub = [x for x in bar_chunks if x <= c][-1]
                    assert n < bar_n(pub), (var, role, k, c, n)
        if o.verbose:
            print(var + role, 'plan:', {k: v for k, v in plan.items() if v})

        def emit(op):
            if callable(op):
                op()
            elif isinstance(op, list):
                for tx, tg in op:
                    a(tx, tag=tg)
            elif op.startswith('ds_'):
                a.ds(op)
            else:
                a(op)

        def cost(op):
            if callable(op):
                return 3
            if isinstance(op, list):
                return 3
            return 2 if op.startswith(('v_exp', 'v_rcp', 'v_mfma')) else 1

        def flag_store(level, tag):
            self.stamp(a, 'fw%d' % level)
            a.wait_vm(tag)
            self.stamp(a, 'fa%d' % level)
            a('buffer_store_dword v%d, v%d, %s, 0 offen offset:%d sc1' % (self.vEpoch, self.vFlagW, srd(S_WS), 128 * level), tag='flag')

        def ep_load(aa):
            aa('buffer_load_dword v%d, v%d, %s, 0 offen sc1' % (self.vEpoch, self.vTmp, srd(S_DBG)), tag='poll')

        def ep_cmp(aa):
            aa('v_cmp_ne_u32 vcc, 0, v%d' % self.vEpoch)

        def in_load(aa):
            aa('s_lshl_b32 s%d, s%d, 2' % (sT2, sGRP))
            aa('buffer_load_dword v%d, v%d, %s, s%d offen offset:128 sc1' % (self.vPoll, self.vTmp, srd(S_DBG), sT2), tag='poll')

        def in_cmp(aa):
            aa('v_cmp_eq_u32 vcc, 1, v%d' % self.vPoll)

        def lvl_load(level):
            def f(aa):
                aa('buffer_load_dword v%d, v%d, %s, 0 offen offset:%d sc1' % (self.vPoll, self.vFlagR, srd(S_WS), 128 * level), tag='poll')
            return f

        def lvl_cmp(aa):
            aa('v_cmp_eq_u32 vcc, v%d, v%d' % (self.vEpoch, self.vPoll))

        def acc(p):
            return self.acc1 if p & 1 else self.acc0

        def kvres(hb):
            return self.blk(0) if hb else self.acc1

        def epilogue_ops(p, packed):
            if isA:
                if p == 0:
                    return self.phi_ops(acc(0), self.pk)
                if p == 1:
                    ones, vmod = self.vBias, self.et
                    ops = ['v_mov_b32 v%d, 0x3f803f80' % ones,
                           'v_bfe_u32 v%d, v1, 4, 1' % (ones + 1),
                           'v_cmp_eq_u32 vcc, 1, v%d' % (ones + 1)]
                    ops += ['v_cvt_pk_bf16_f32 v%d, v%d, v%d' % (self.pk2 + j, acc(1) + 2 * j, acc(1) + 2 * j + 1) for j in range(8)]
                    ops += ['v_cndmask_b32 v%d, v%d, v%d, vcc' % (vmod + j, self.pk2 + j, ones) for j in range(8)]
                    ops += ['v_cndmask_b32 v%d, v%d, v%d, vcc' % (self.pk2 + j, ones, self.pk2 + j) for j in range(8)]
                    for hb in range(2):
                        d = vr(kvres(hb), 16)
                        for g in range(2):
                            ops.append(MFMA % (d, vr(self.pk + 4 * g, 4), vr((self.pk2 if hb else vmod) + 4 * g, 4), '0' if g == 0 else d))
                    return ops
                return self.with_stores(self.phi_ops(acc(2), self.pk), self.pk, ch, 'st2')
            if gate and p == 2:
                x, e = acc(2), self.et
                return ['v_mul_f32 v%d, s%d, v%d' % (e, sLOG, x),
                        'v_exp_f32 v%d, -v%d' % (e, e),
                        'v_add_f32 v%d, 1.0, v%d' % (e, e),
                        'v_rcp_f32 v%d, v%d' % (e, e),
                        [('buffer_store_dword v%d, v%d, %s, 0 offen sc1' % (e, self.vMisc + 1, srd(S_WS)), 'st2')]]
            pkb = self.pk2 if p == 1 else self.pk
            return self.with_stores(self.gelu_ops(acc(p), pkb, packed), pkb, 2 * p + ch, 'st%d' % p)

        def kv_write():
            for hb in range(2):
                src = kvres(hb) + 8 * hb
                for q in range(2):
                    a.ds('ds_write_b128 v%d, %s offset:%d' % (self.vMisc, vr(src + 4 * q, 4), hb * 2048 + q * 1024), tag='kvw')

        def kv_reduce():
            d = self.acc1
            ad, az = self.vSp, self.vSp + 1
            a('s_lshr_b32 s%d, s%d, 1' % (sT2, sJ))
            a('s_lshl_b32 s%d, s%d, 14' % (sT2, sT2))
            a('s_and_b32 s%d, s%d, 1' % (sT3, sJ))
            a('s_mul_i32 s%d, s%d, %d' % (sT0, sT3, 2048 + 256))
            a('s_add_u32 s%d, s%d, s%d' % (sT0, sT0, sT2))
            a('s_add_u32 s%d, s%d, %d' % (sT0, sT0, W_BASE))
            a('v_lshl_add_u32 v%d, v1, 2, s%d' % (ad, sT0))
            for r in range(4):
                for q in range(2):
                    a.ds('ds_read2st64_b32 %s, v%d offset0:%d offset1:%d' % (vr(d + r * 4 + 2 * q, 2), ad, r * 16 + q * 4, r * 16 + q * 4 + 2), tag='kvr')
            a('s_xor_b32 s%d, s%d, 256' % (sT0, sT0))
            a('v_bfe_u32 v%d, v1, 2, 2' % az)
            a('v_and_b32 v%d, 3, v1' % (az + 1))
            a('v_lshlrev_b32 v%d, 2, v%d' % (az + 1, az + 1))
            a('v_lshl_add_u32 v%d, v%d, 9, v%d' % (az + 2, az, az + 1))
            a('v_add_u32 v%d, s%d, v%d' % (az + 2, sT0, az + 2))
            for r in range(0, 4, 2):
                a.ds('ds_read2st64_b32 %s, v%d offset0:%d offset1:%d' % (vr(d + 16 + r, 2), az + 2, r * 16, r * 16 + 16), tag='kvr')
            a('v_bfe_u32 v%d, v1, 3, 1' % az)
            a('v_mul_u32_u24 v%d, %d, v%d' % (az, QSTR - 32, az))
            a('v_lshl_add_u32 v%d, v1, 2, v%d' % (az, az))
            a('v_mov_b32 v%d, 0x%x' % (az + 1, OOB))
            a('v_cmp_gt_u32 vcc, 16, v1')
            a('v_cndmask_b32 v%d, v%d, v%d, vcc' % (az, az + 1, az))
            a('v_lshlrev_b32 v%d, 2, v1' % (az + 1))
            a('s_lshl_b32 s%d, s%d, 2' % (sT2, sGRP))
            a('s_add_u32 s%d, s%d, s%d' % (sT2, sT2, sJ))
            a('s_mul_i32 s%d, s%d, %d' % (sKVB, sT2, HSTR))
            a('s_add_u32 s%d, s%d, 0x%x' % (sKVB, sKVB, KVACC))

        def kv_atomics():
            d = self.acc1
            az = self.vSp + 1
            for k in range(4):
                a('v_add_f32 v%d, v%d, v%d' % (d + k, d + k, d + 4 + k))
                a('v_add_f32 v%d, v%d, v%d' % (d + 8 + k, d + 8 + k, d + 12 + k))
            a('v_add_f32 v%d, v%d, v%d' % (d + 16, d + 16, d + 17))
            a('v_add_f32 v%d, v%d, v%d' % (d + 18, d + 18, d + 19))
            for k in range(4):
                a('v_add_f32 v%d, v%d, v%d' % (d + k, d + k, d + 8 + k))
            a('v_add_f32 v%d, v%d, v%d' % (d + 16, d + 16, d + 18))
            self.check(a, in_load, in_cmp)
            for k in range(4):
                a('buffer_atomic_add_f32 v%d, v%d, %s, s%d offen offset:%d' % (d + k, az + 1, srd(S_WS), sKVB, (k >> 1) * QSTR + (k & 1) * 256), tag='kva')
            a('buffer_atomic_add_f32 v%d, v%d, %s, s%d offen offset:512' % (d + 16, az, srd(S_WS), sKVB), tag='kva')

        def kv_count():
            az = self.vSp + 1
            a('v_mov_b32 v%d, 0x%x' % (az, OOB))
            a('v_cmp_eq_u32 vcc, 0, v1')
            a('v_cndmask_b32 v%d, v%d, v1, vcc' % (az, az))
            a('v_mov_b32 v%d, 1' % (az + 1))
            a('s_lshl_b32 s%d, s%d, 2' % (sT2, sGRP))
            a('s_add_u32 s%d, s%d, s%d' % (sT2, sT2, sJ))
            a('s_lshl_b32 s%d, s%d, 7' % (sT2, sT2))
            a('s_add_u32 s%d, s%d, 0x%x' % (sT2, sT2, CNT))
            self.stamp(a, 'fw1')
            a.wait_vm('kva')
            self.stamp(a, 'fa1')
            a('buffer_atomic_add v%d, v%d, %s, s%d offen' % (az + 1, az, srd(S_WS), sT2), tag='flag')

        def init_pub():
            skip = self.newlabel('nopub')
            a('s_or_b32 s%d, s%d, s%d' % (sT3, sRB, sJ))
            a('s_cbranch_scc1 ' + skip)
            a('v_mov_b32 v%d, 1' % self.vPoll)
            a('s_lshl_b32 s%d, s%d, 2' % (sT2, sGRP))
            a('buffer_store_dword v%d, v%d, %s, s%d offen offset:128 sc1' % (self.vPoll, self.vTmp, srd(S_DBG), sT2), count=False)
            a.label(skip)

        def epoch_pub():
            skip = self.newlabel('nopub')
            a('s_or_b32 s%d, s2, s%d' % (sT3, sWV))
            a('s_cbranch_scc1 ' + skip)
            a._put('s_waitcnt lgkmcnt(0)')
            a('s_or_b32 s%d, s%d, 1' % (sE, sE))
            a('s_add_u32 s%d, s%d, 2' % (sE, sE))
            a('v_mov_b32 v%d, s%d' % (self.vPoll, sE))
            a('s_mov_b32 s%d, 0x%x' % (sT3, EOFF))
            a('buffer_store_dword v%d, v%d, %s, 0 offen sc1' % (self.vPoll, self.vTmp, srd(S_DBG)), count=False)
            a('buffer_store_dword v%d, v%d, %s, s%d offen sc1' % (self.vPoll, self.vTmp, srd(S_WS), sT3), count=False)
            a.label(skip)
            a.lgmax += 1

        def gate_dma():
            a('s_add_u32 m0, s%d, %d' % (sP, 3 * REG))
            ga = self.vL16
            if o.rot:
                ga = self.vSp
                a('s_lshl_b32 s%d, s%d, 7' % (sT0, sROT))
                a('v_add_u32 v%d, s%d, v%d' % (ga, sT0, self.vL16))
                a('v_and_b32 v%d, 1023, v%d' % (ga, ga))
            a('buffer_load_dwordx4 v%d, %s, 0 offen lds' % (ga, srd(S_M2)), tag='gate')

        extra = {n: [] for n in range(97)}
        extra[o.ep_issue].append(lambda: ep_load(a))
        extra[o.ep_check].append(lambda: self.check(a, ep_load, ep_cmp))
        if isA and isb:
            extra[bar_n(o.pre - 1) + 1].append(init_pub)
        if isA and not isb:
            extra[o.pub_n].append(epoch_pub)
        if gate:
            extra[36].append(gate_dma)
        if not isA:
            extra[o.l1_n].append(lambda: flag_store(0, 'st0'))
        if isA:
            extra[o.kvw_n].append(kv_write)
            assert o.kvw_n < bar_n(o.kv_bar) and o.kv_bar in bar_chunks
            if not isb:
                extra[o.kvw_n - 4].append(lambda: in_load(a))
                extra[bar_n(o.kv_bar)].append(kv_reduce)
                extra[bar_n(o.kv_bar) + 2].append(kv_atomics)
                if o.kvc_n < 96:
                    extra[o.kvc_n].append(kv_count)
        nact = 0
        if isb and o.p1_issue < 96:
            extra[o.p1_issue].append(lambda: lvl_load(0)(a))
            extra[o.p1_check].append(lambda: self.check(a, lvl_load(0), lvl_cmp))
            n = o.p1_check
            while n < 96 and nact < 8:
                m, g = divmod(nact, 2)
                assert n >= 68 + 4 * m
                extra[n].append(lambda m=m, g=g: self.load_act(a, m, g, m))
                nact += 1
                n += o.act_gap

        barrier_for(0)
        self.stamp(a, 'first')
        xreads(0)
        for n in range(PF):
            for tx in reads_for(n):
                a.ds(tx)

        vq = []
        for n in range(96):
            p, s32 = divmod(n, 32)
            if s32 == 0:
                vq = epilogue_ops(p - 1, False) if p else []
                vtot = sum(cost(x) for x in vq)
                vdone = 0
                vspan = (o.vstart, o.vend)
                if isA and p == 2:
                    vspan = (max(o.vstart, 1), o.vend_kv)
                if p:
                    self.stamp(a, 'pass%d' % (p - 1))
            if n % 4 == 0:
                self.stamp(a, 'c%d' % (n // 4))
            nn = n + PF
            if nn < 96 and nn % 4 == 0:
                cb = nn // 4
                if cb in bar_chunks:
                    if isA and cb == o.kv_bar:
                        a.wait_lg('kvw')
                    barrier_for(cb)
                if gate and cb == 16:
                    a.wait_vm('gate')
                if cb < 8:
                    xreads(cb)
            if nn == 96:
                if isA:
                    a.wait_lg('kvr')
                a('s_barrier')
            xf = vr(self.XA + 4 * s32, 4)
            wf = vr(wbuf(n), 4)
            d = vr(acc(p), 16)
            first = s32 == 0
            if first and not isA and not (gate and p == 2):
                bb, sel = [(0, 2), (0, 0), (2, 0)][p]
                a(MFMA % (d, vr(self.vBias + bb, 4), vr(self.vSel + sel, 4), '0'))
                first = False
            A_, B_ = (xf, wf) if (isA and p < 2) else (wf, xf)
            a(MFMA % (d, A_, B_, '0' if first else d))
            if nn < 96:
                for tx in reads_for(nn):
                    a.ds(tx)
            if vq and s32 >= vspan[0]:
                frac = min(1.0, (s32 - vspan[0] + 1) / float(vspan[1] - vspan[0]))
                while vq and vdone < frac * vtot:
                    op = vq.pop(0)
                    if isinstance(op, str) and op.startswith('v_mfma') and ('v[%d:' % self.blk(0)) in op.split(',')[0]:
                        assert n >= 68
                    vdone += cost(op)
                    emit(op)
            for it in extra[n]:
                it()
            for k, c in plan[n]:
                if k == 'x':
                    self.dma_x(a, c)
                elif k == 'w':
                    self.dma_w(a, c)
                else:
                    self.dma_u(a, c, upiece[c])
            if s32 == 31:
                assert not vq
        self.stamp(a, 'pass2')

        vq = epilogue_ops(2, o.pk_final)
        side = []
        freep = [p for t, p in free]
        state = dict(nu=nu, nr=0, nact=nact)

        def issue_u():
            if state['nu'] < NH and freep:
                h = state['nu']
                pc, prev = freep.pop(0) if isinstance(freep[0], tuple) else (freep.pop(0), None)
                if prev is not None:
                    a.wait_lg(('ur', prev))
                upiece[h] = pc
                self.dma_u(a, h, pc)
                state['nu'] += 1

        def read_next():
            h = state['nr']
            assert h < state['nu']
            self.read_u(a, h, upiece[h])
            freep.append((upiece[h], h))
            state['nr'] += 1

        def act_next(limit):
            if state['nact'] < limit:
                m, g = divmod(state['nact'], 2)
                self.load_act(a, m, g, m % 8)
                state['nact'] += 1

        if gate:
            side.append(lambda: a.wait_all(vm=False))
        for i in range(len(freep)):
            side.append(issue_u)
        if isb:
            if o.p1_issue >= 96:
                side.insert(0, lambda: lvl_load(0)(a))
            else:
                for i in range(8 - nact):
                    side.append(lambda: act_next(8))
        if not isA:
            side.insert(min(len(side), o.l2_pos), lambda: flag_store(1, 'st1'))
        elif not isb and o.kvc_n >= 96:
            side.append(kv_count)
        k = max(1, len(vq) // (len(side) + 1))
        for j, op in enumerate(vq):
            if side and j % k == k - 1:
                side.pop(0)()
            emit(op)
        for it in side:
            it()
        self.stamp(a, 'epi')

        def acc2(t, rt):
            return self.acc2 + 16 * (rt * 2 + t)

        a('v_and_b32 v%d, 31, v1' % t1)

        def g_load():
            a('s_lshl_b32 s%d, s%d, 13' % (sT0, sJ))
            a('s_add_u32 s%d, s%d, 0x%x' % (sT0, sT0, GOFF))
            a('v_lshrrev_b32 v%d, 11, v%d' % (t2, self.vActLd))
            a('v_lshlrev_b32 v%d, 7, v%d' % (t2, t2))
            a('v_lshl_add_u32 v%d, v%d, 2, v%d' % (t2, t1, t2))
            a('buffer_load_dword v%d, v%d, %s, s%d offen sc1' % (self.vG, t2, srd(S_WS), sT0), tag='g')

        if isb:
            a('s_cmp_eq_u32 s%d, 0' % sJ)
            a('s_cselect_b32 s%d, 0, 0x%x' % (sT2, OOB))
            a('s_lshl_b32 s%d, s%d, 7' % (sT3, sCT))
            a('s_add_u32 s%d, s%d, s%d' % (sT2, sT2, sT3))
            a('v_lshlrev_b32 v%d, 1, v%d' % (t2, t1))
            for t in range(2):
                a('v_mov_b32 v%d, 0' % (self.vB2 + 2 * t + 1))
                a('buffer_load_ushort v%d, v%d, %s, s%d offen offset:%d' % (self.vB2 + 2 * t, t2, srd(S_M1), sT2, 64 * t), tag='bias')
            if o.p1_issue >= 96:
                self.check(a, lvl_load(0), lvl_cmp)
                for i in range(8):
                    act_next(8)
            self.stamp(a, 'P1')
            read_next()
            read_next()
            ev = {h: [] for h in range(NH)}

            def chk(level, name):
                def f():
                    self.check(a, lvl_load(level), lvl_cmp)
                    self.stamp(a, name)
                return f
            ev[o.b_l3].append(lambda: flag_store(2, 'st2'))
            ev[o.b_p2i].append(lambda: lvl_load(1)(a))
            ev[o.b_p2c].append(chk(1, 'P2'))
            ev[o.b_p3i].append(lambda: lvl_load(2)(a))
            ev[o.b_p3c].append(chk(2, 'P3'))
            ev[o.b_p3c].append(g_load)
            assert o.b_p2c <= o.b_p3i and o.b_l3 <= o.b_p3c
            for h in range(NH):
                m, g = divmod(h, 2)
                for f in ev[h]:
                    f()
                lim = 8 if h < o.b_p2c else (16 if h < o.b_p3c else NH)
                lim = min(lim, 2 * (m + 8))
                fill = [issue_u]
                if state['nr'] < NH:
                    fill.append(read_next)
                fill += [lambda: act_next(lim) for _ in range(o.b_actper)]
                assert state['nact'] > h
                for rt in range(2):
                    for t in range(2):
                        dd = vr(acc2(t, rt), 16)
                        a(MFMA % (dd, vr(self.ufrag(h, t), 4), vr(self.blk(m % 8) + 8 * g + 4 * rt, 4), '0' if h == 0 else dd))
                        if fill:
                            fill.pop(0)()
                for f in fill:
                    f()
                if h == 3:
                    for rt in range(2):
                        for t in range(2):
                            dd = vr(acc2(t, rt), 16)
                            a(MFMA % (dd, vr(self.vB2, 4), vr(self.vSel + (2 if t == 0 else 0), 4), dd))
        else:
            def cnt_load(aa):
                aa('buffer_load_dword v%d, v%d, %s, s%d offen sc1' % (self.vExp, t3, srd(S_WS), sT0), tag='poll')

            def cnt_cmp(aa):
                aa('v_cmp_eq_u32 vcc, 16, v%d' % self.vExp)
            a('s_lshl_b32 s%d, s%d, 10' % (sT0, sJ))
            a('s_add_u32 s%d, s%d, 0x%x' % (sT0, sT0, CNT))
            a('v_and_b32 v%d, 7, v1' % t3)
            a('v_lshlrev_b32 v%d, 7, v%d' % (t3, t3))
            read_next()
            read_next()
            for i in range(3):
                issue_u()
            flag_store(2, 'st2')
            cnt_load(a)
            lvl_load(2)(a)
            vkv = self.vB2
            a('v_lshrrev_b32 v%d, 5, v1' % t2)
            a('v_lshlrev_b32 v%d, 4, v%d' % (vkv, t1))
            a('v_lshl_add_u32 v%d, v%d, 8, v%d' % (vkv, t2, vkv))
            a('v_lshlrev_b32 v%d, 4, v%d' % (t2, t2))
            a('v_add_u32 v%d, 512, v%d' % (t2, t2))
            a('v_cmp_gt_u32 vcc, 16, v%d' % t1)
            a('v_cndmask_b32 v%d, v%d, v%d, vcc' % (vkv, t2, vkv))
            a('s_mul_i32 s%d, s%d, %d' % (sT2, sJ, 8 * HSTR))
            a('s_add_u32 s%d, s%d, %d' % (sT2, sT2, KVA))
            a('v_add_u32 v%d, s%d, v%d' % (vkv, sT2, vkv))
            a('s_mul_i32 s%d, s%d, %d' % (sKVB, sJ, 8 * HSTR))
            a('s_add_u32 s%d, s%d, 0x%x' % (sKVB, sKVB, KVACC))
            self.check(a, cnt_load, cnt_cmp)
            self.stamp(a, 'P1')
            for i in range(9):
                if i % 4 == 0:
                    a('s_add_u32 m0, s%d, %d' % (sT2, 1024 * i))
                    a('s_add_u32 s%d, s%d, %d' % (sT1, sKVB, 1024 * i))
                a('buffer_load_dwordx4 v%d, %s, s%d offen offset:%d sc1 lds' % (self.vL16, srd(S_WS), sT1, 1024 * (i % 4)), tag=('kv', i))
            self.check(a, lvl_load(2), lvl_cmp)
            self.stamp(a, 'P3')
            for i in range(8):
                act_next(8)
            g_load()
            nd = [self.blk(4), self.blk(5)]
            kraw = self.blk(6)
            kpk = self.blk(7)
            of = self.blk(7) + 8

            def kv_read(h):
                a.wait_vm(*[('kv', i) for i in range(((h + 1) * HSTR - 1) // 1024 + 1)])
                for q in range(2):
                    a.ds('ds_read_b128 %s, v%d offset:%d' % (vr(kraw + 8 * (h & 1) + 4 * q, 4), vkv, h * HSTR + q * QSTR))

            def kv_pack(h):
                for k in range(4):
                    a('v_cvt_pk_bf16_f32 v%d, v%d, v%d' % (kpk + 4 * (h & 1) + k, kraw + 8 * (h & 1) + 2 * k, kraw + 8 * (h & 1) + 2 * k + 1))

            def nd_mfma(i):
                h, rt = divmod(i, 2)
                a(MFMA % (vr(nd[i & 1], 16), vr(kpk + 4 * (h & 1), 4), vr(self.blk(h // 2) + 8 * (h & 1) + 4 * rt, 4), '0'))

            kv_read(0)
            kv_read(1)
            kv_pack(0)
            nd_mfma(0)
            for i in range(16):
                h, rt = divmod(i, 2)
                if rt == 1 and h + 1 < 8:
                    kv_pack(h + 1)
                    if h + 2 < 8:
                        kv_read(h + 2)
                if i + 1 < 16:
                    nd_mfma(i + 1)
                if rt == 0:
                    issue_u()
                    if state['nr'] < NH:
                        read_next()
                b = nd[i & 1]
                den = b + 8
                a('v_add_f32 v%d, 0x%x, v%d' % (den, f2u(1e-6), den))
                a('v_rcp_f32 v%d, v%d' % (den, den))
                for k in range(8):
                    a('v_mul_f32 v%d, v%d, v%d' % (b + k, b + k, den))
                ob = of + 4 * (i & 1)
                for k in range(4):
                    a('v_cvt_pk_bf16_f32 v%d, v%d, v%d' % (ob + k, b + 2 * k, b + 2 * k + 1))
                for t in range(2):
                    dd = vr(acc2(t, rt), 16)
                    a(MFMA % (dd, vr(self.ufrag(h, t), 4), vr(ob, 4), '0' if h == 0 else dd))
        self.stamp(a, 'mm')
        rho = ch

        def kidx(n, hh):
            return max(2 * n + hh - 1, 0)
        a('v_add_u32 v%d, s%d, v%d' % (t2, sP, self.vL16))
        a('v_add_u32 v%d, 0x10000, v%d' % (t3, t2))
        a.wait_all(vm=False)
        for n in (1, 0, 2, 3):
            for hh in range(2):
                if n == 0 and hh == rho:
                    continue
                k = kidx(n, hh)
                for q in range(2):
                    a.ds('ds_write_b128 v%d, %s offset:%d' % (t3 if k >= 4 else t2, vr(self.acc2 + 16 * n + 8 * hh + 4 * q, 4), (k & 3) * REG + q * 1024), tag='red')
        a('s_lshl_b32 s%d, s%d, 11' % (sT0, sJ))
        a('v_add_u32 v%d, s%d, v%d' % (t2, sT0, self.vL16))
        for n in range(4):
            a('v_xor_b32 v%d, 0x%x, v%d' % (self.vUr + n, kidx(n, rho) * REG + n * 2048, t2))
        a('s_lshl_b32 s%d, s%d, 1' % (sT0, sRT))
        a('s_lshr_b32 s%d, s%d, 1' % (sT1, sJ))
        a('s_add_u32 s%d, s%d, s%d' % (sT0, sT0, sT1))
        a('s_lshl_b32 s%d, s%d, 15' % (sT0, sT0))
        a('s_lshl_b32 s%d, s%d, 7' % (sT1, sCT))
        a('s_add_u32 s%d, s%d, s%d' % (sT0, sT0, sT1))
        a('s_and_b32 s%d, s%d, 1' % (sT1, sJ))
        a('s_lshl_b32 s%d, s%d, 6' % (sT1, sT1))
        a('s_add_u32 s%d, s%d, s%d' % (sT0, sT0, sT1))
        a('v_lshrrev_b32 v%d, 5, v1' % t3)
        a('v_lshlrev_b32 v%d, 4, v%d' % (t3, t3))
        a('v_lshl_add_u32 v%d, v%d, 10, v%d' % (t3, t1, t3))
        a.wait_lg('red')
        self.stamp(a, 'wr')
        a('s_barrier')
        self.stamp(a, 'bar')
        own = self.acc2 + 8 * rho
        rb_ = self.XA
        srcs = [(rs, n) for rs in range(2) for n in range(4) if not (rs == rho and n == 0)]
        for i, (rs, n) in enumerate(srcs):
            for q in range(2):
                a.ds('ds_read_b128 %s, v%d offset:%d' % (vr(rb_ + 8 * i + 4 * q, 4), self.vUr + n, rs * 8192 + q * 1024))
        sums = {rho: own}
        for i, (rs, n) in enumerate(srcs):
            if rs not in sums:
                sums[rs] = rb_ + 8 * i
                continue
            for k in range(0, 8, 2):
                a('v_pk_add_f32 %s, %s, %s' % (vr(sums[rs] + k, 2), vr(sums[rs] + k, 2), vr(rb_ + 8 * i + k, 2)))
        for k in range(8):
            a('v_sub_f32 v%d, v%d, v%d' % (sums[0] + k, sums[0] + k, sums[1] + k))
        for k in range(8):
            a('v_fma_f32 v%d, v%d, v%d, v%d' % (sums[0] + k, sums[0] + k, self.vG, sums[1] + k))
        ob = self.XA + 64
        for k in range(4):
            a('v_cvt_pk_bf16_f32 v%d, v%d, v%d' % (ob + k, sums[0] + 2 * k, sums[0] + 2 * k + 1))
        a('v_permlane32_swap_b32 v%d, v%d' % (ob, ob + 2))
        a('v_permlane32_swap_b32 v%d, v%d' % (ob + 1, ob + 3))
        a('buffer_store_dwordx4 %s, v%d, %s, s%d offen offset:%d' % (vr(ob, 4), t3, srd(S_OUT), sT0, 32 * rho))
        if o.diag:
            self.stamp(a, 'end')
            a._put('s_memrealtime s[86:87]')
            a.force_wait('lgkmcnt(0)')
            names = o.stamps.split(',')
            late = [x for x in names if x not in ('karg', 'd0', 'd1', 'd2', 'd3', 's1')]
            for i, nm in enumerate(a.stampn):
                a('s_sub_u32 s%d, s%d, s100' % (40 + 2 * i, 40 + 2 * i))
                a('v_writelane_b32 v%d, s%d, %d' % (self.vStamp, 40 + 2 * i, 6 + late.index(nm)))
            a('v_writelane_b32 v%d, s38, 26' % self.vStamp)
            a('v_writelane_b32 v%d, s86, 31' % self.vStamp)
            a('v_writelane_b32 v%d, s98, 29' % self.vStamp)
            a('s_mov_b32 s%d, %d' % (sT0, 'FGA'.index(var) * 2 + ch))
            a('v_writelane_b32 v%d, s%d, 30' % (self.vStamp, sT0))
            a('s_getreg_b32 s%d, hwreg(HW_REG_XCC_ID)' % sT0)
            a('v_writelane_b32 v%d, s%d, 28' % (self.vStamp, sT0))
            a('s_getreg_b32 s%d, hwreg(HW_REG_HW_ID)' % sT0)
            a('v_writelane_b32 v%d, s%d, 27' % (self.vStamp, sT0))
            a('s_lshl_b32 s%d, s2, 3' % sT0)
            a('s_add_u32 s%d, s%d, s%d' % (sT0, sT0, sWV))
            a('s_lshl_b32 s%d, s%d, 7' % (sT0, sT0))
            a('s_add_u32 s%d, s%d, 0x%x' % (sT0, sT0, STAMP))
            a('v_lshlrev_b32 v%d, 2, v1' % t2)
            a('v_cmp_gt_u32 vcc, 32, v1')
            a('v_mov_b32 v%d, 0x40000000' % t3)
            a('v_cndmask_b32 v%d, v%d, v%d, vcc' % (t2, t3, t2))
            a('buffer_store_dword v%d, v%d, %s, s%d offen' % (self.vStamp, t2, srd(S_WS), sT0))
            self.stampnames = a.stampe + ['-'] * (6 - len(a.stampe)) + late
        a('s_endpgm')
        if o.verbose:
            print(var + role, 'insts', a.ninst, 'nop states', a.nnop, a.stats)

    def build(self):
        self.prologue()
        for pth in ['Ab', 'Aa', 'Fa', 'Fb', 'Ga', 'Gb']:
            self.path(pth[0], pth[1])
        self.a.label('L_end')
        self.a.raw('    s_endpgm')
        ref = open('cdna_kernels/%s.s.ref' % NAME).read().split('\n')
        head = [l for l in ref if l.startswith(';') and '@launch' not in l]
        out = '\n'.join(head) + '\n; generated by tools/gen2.py\n'
        out += '; @launch grid=(256,1,1) block=(512,1,1) lds=163840\n'
        out += '.amdgcn_target "amdgcn-amd-amdhsa--gfx950"\n.text\n.globl %s_kernel\n.p2align 8\n.type %s_kernel,@function\n' % (NAME, NAME)
        out += self.a.text()
        out += '''.section .rodata,"a"
.p2align 6
.amdhsa_kernel %s_kernel
  .amdhsa_next_free_vgpr 256
  .amdhsa_next_free_sgpr 102
  .amdhsa_accum_offset 256
  .amdhsa_group_segment_fixed_size 0
  .amdhsa_kernarg_size 96
  .amdhsa_user_sgpr_count 2
  .amdhsa_user_sgpr_kernarg_segment_ptr 1
  .amdhsa_system_sgpr_workgroup_id_x 1
.end_amdhsa_kernel
''' % NAME
        return out


def parse(argv=None):
    ap = argparse.ArgumentParser()
    ap.add_argument('-o', default='cdna_kernels/%s.s' % NAME)
    ap.add_argument('--diag', action='store_true')
    ap.add_argument('--verbose', action='store_true')
    ap.add_argument('--p2map', type=int, default=0)
    ap.add_argument('--pre', type=int, default=3)
    ap.add_argument('--xlead', type=int, default=0)
    ap.add_argument('--bfine', type=int, default=8)
    ap.add_argument('--bgroup', type=int, default=2)
    ap.add_argument('--ratea', default='1.0,0.5,0.5')
    ap.add_argument('--rateb', default='1.0,0.5,0.5')
    ap.add_argument('--ustart', type=int, default=0)
    ap.add_argument('--vstart', type=int, default=2)
    ap.add_argument('--vend', type=int, default=26)
    ap.add_argument('--vend_kv', type=int, default=10)
    ap.add_argument('--kvw_n', type=int, default=76)
    ap.add_argument('--kv_bar', type=int, default=20)
    ap.add_argument('--rot', type=int, default=0)
    ap.add_argument('--touch', default='-1,-1')
    ap.add_argument('--kvc_n', type=int, default=93)
    ap.add_argument('--pub_n', type=int, default=0)
    ap.add_argument('--ep_issue', type=int, default=40)
    ap.add_argument('--ep_check', type=int, default=56)
    ap.add_argument('--l1_n', type=int, default=72)
    ap.add_argument('--p1_issue', type=int, default=82)
    ap.add_argument('--p1_check', type=int, default=92)
    ap.add_argument('--act_gap', type=int, default=1)
    ap.add_argument('--l2_pos', type=int, default=99)
    ap.add_argument('--b_l3', type=int, default=3)
    ap.add_argument('--b_p2i', type=int, default=2)
    ap.add_argument('--b_p2c', type=int, default=4)
    ap.add_argument('--b_p3i', type=int, default=8)
    ap.add_argument('--b_p3c', type=int, default=11)
    ap.add_argument('--b_actper', type=int, default=2)
    ap.add_argument('--pk_final', type=int, default=1)
    ap.add_argument('--spin', type=int, default=20000)
    ap.add_argument('--sleep', type=int, default=1)
    ap.add_argument('--stamps', default='karg,d0,d1,d2,s1,first,pass0,pass1,pass2,epi,P1,P2,P3,mm,wr,bar,end')
    ap.add_argument('--no', default='')
    ap.add_argument('--chain', type=int, default=0)
    return ap.parse_args(argv)


if __name__ == '__main__':
    o = parse()
    g = Gen(o)
    txt = g.build()
    open(o.o, 'w').write(txt)
    if o.diag:
        print('stamps:', g.stampnames)
        open(o.o[:-2] + '.stamps', 'w').write(' '.join(g.stampnames))
    print('wrote', o.o, len(txt), 'bytes')
```

```python
import re

_REG = re.compile(r'^(-?)(\|?)([vas])(\d+)(\|?)$')
_RNG = re.compile(r'^(-?)([vas])\[(\d+):(\d+)\]$')
TRANS = ('v_exp_f32', 'v_log_f32', 'v_rcp_f32', 'v_rsq_f32', 'v_sqrt_f32', 'v_sin_f32', 'v_cos_f32')


def regs_of(op):
    op = op.strip()
    if op.startswith('abs(') and op.endswith(')'):
        op = op[4:-1]
    if op.startswith('-abs(') and op.endswith(')'):
        op = op[5:-1]
    m = _REG.match(op)
    if m:
        return [(m.group(3), int(m.group(4)))]
    m = _RNG.match(op)
    if m:
        return [(m.group(2), i) for i in range(int(m.group(3)), int(m.group(4)) + 1)]
    if op in ('vcc', 'vcc_lo', 'vcc_hi'):
        return [('s', 'vcc')]
    if op == 'exec':
        return [('s', 'exec')]
    if op == 'm0':
        return [('s', 'm0')]
    return []


def split_ops(s):
    out, depth, cur = [], 0, ''
    for ch in s:
        if ch in '[(':
            depth += 1
        if ch in '])':
            depth -= 1
        if ch == ',' and depth == 0:
            out.append(cur.strip())
            cur = ''
        else:
            cur += ch
    if cur.strip():
        out.append(cur.strip())
    return out


class Asm:
    def __init__(self):
        self.lines = []
        self.pos = 0
        self.lastw = {}
        self.mfma_c_read = {}
        self.store_read = {}
        self.vm = []
        self.lg = []
        self.ninst = 0
        self.nnop = 0
        self.stats = {}
        self.lgmax = 15

    def raw(self, text):
        self.lines.append(text)

    def comment(self, text):
        self.lines.append('    ; ' + text)

    def label(self, name):
        self.lines.append(name + ':')

    def _put(self, text, states=1):
        self.lines.append('    ' + text)
        self.pos += states
        self.ninst += 1

    def nop(self, n):
        while n > 0:
            k = min(n, 16)
            self._put('s_nop %d' % (k - 1), k)
            self.nnop += k
            n -= k

    def _wait(self, vm=None, lg=None):
        parts = []
        if vm is not None and vm < len(self.vm):
            vmn = min(vm, 63)
            parts.append('vmcnt(%d)' % vmn)
            self.vm = self.vm[len(self.vm) - vmn:] if vmn else []
        if lg is not None and lg < len(self.lg):
            lgn = min(lg, 15)
            parts.append('lgkmcnt(%d)' % lgn)
            self.lg = self.lg[len(self.lg) - lgn:] if lgn else []
        if parts:
            self._put('s_waitcnt ' + ' '.join(parts))

    @staticmethod
    def _need(fifo, pred):
        last = None
        for i, e in enumerate(fifo):
            if pred(e):
                last = i
        return None if last is None else len(fifo) - 1 - last

    def wait_vm(self, *tags):
        self._wait(vm=self._need(self.vm, lambda e: e['tag'] in tags))

    def wait_lg(self, *tags):
        self._wait(lg=self._need(self.lg, lambda e: e['tag'] in tags))

    def wait_both(self, vmtags=(), lgtags=()):
        self._wait(vm=self._need(self.vm, lambda e: e['tag'] in vmtags),
                   lg=self._need(self.lg, lambda e: e['tag'] in lgtags))

    def wait_all(self, vm=True, lg=True):
        self._wait(vm=0 if vm else None, lg=0 if lg else None)

    def force_wait(self, text):
        self._put('s_waitcnt ' + text)
        m = re.search(r'vmcnt\((\d+)\)', text)
        if m:
            n = int(m.group(1))
            self.vm = self.vm[len(self.vm) - n:] if 0 < n < len(self.vm) else ([] if n == 0 else self.vm)
        m = re.search(r'lgkmcnt\((\d+)\)', text)
        if m:
            n = int(m.group(1))
            self.lg = self.lg[len(self.lg) - n:] if 0 < n < len(self.lg) else ([] if n == 0 else self.lg)

    def pending_vm(self, tag):
        return any(e['tag'] == tag for e in self.vm)

    def __call__(self, text, tag=None, count=True):
        text = text.strip()
        sp = text.split(None, 1)
        mn = sp[0]
        rest = sp[1] if len(sp) > 1 else ''
        ops = split_ops(rest)
        mods = ''
        if ops:
            lp = ops[-1].split(None, 1)
            if len(lp) > 1:
                ops[-1] = lp[0]
                mods = lp[1]
        R = [regs_of(o) for o in ops]
        reads, writes = [], []
        kind = 'other'
        srcA = srcB = srcC = []
        if mn.startswith('v_mfma'):
            kind = 'mfma'
            writes = R[0]
            srcA, srcB, srcC = R[1], R[2], R[3]
            reads = srcA + srcB + srcC
        elif mn.startswith('v_cmp'):
            kind = 'valu'
            writes = R[0]
            reads = sum(R[1:], [])
        elif mn.startswith('v_permlane'):
            kind = 'valu'
            writes = R[0] + R[1]
            reads = R[0] + R[1]
        elif mn.startswith('v_'):
            kind = 'trans' if mn.split('_e')[0] in TRANS or mn in TRANS else 'valu'
            writes = R[0]
            reads = sum(R[1:], [])
            if mn.startswith(('v_fmac', 'v_dot2c', 'v_pk_fmac', 'v_writelane')):
                reads = reads + R[0]
        elif mn.startswith('ds_read'):
            kind = 'ds'
            writes = R[0]
            reads = R[1]
        elif mn.startswith('ds_write') or mn.startswith('ds_add'):
            kind = 'ds'
            reads = sum(R, [])
        elif mn.startswith('buffer_load'):
            kind = 'vmem'
            if re.search(r'\blds\b', mods):
                reads = sum(R, []) + [('s', 'm0')]
            else:
                writes = R[0]
                reads = sum(R[1:], [])
                if 'd16' in mn:
                    reads = reads + R[0]
        elif mn.startswith('buffer_store') or mn.startswith('buffer_atomic'):
            kind = 'vmem'
            reads = sum(R, [])
            if mn.startswith('buffer_atomic') and re.search(r'\bsc0\b', mods):
                writes = R[0]
        elif mn.startswith('s_'):
            kind = 'salu'
            if mn.startswith(('s_cmp', 's_cbranch', 's_branch', 's_barrier', 's_endpgm', 's_sleep', 's_setprio', 's_nop', 's_waitcnt')):
                reads = sum(R, [])
            else:
                writes = R[0] if R else []
                reads = sum(R[1:], [])
                if 'saveexec' in mn:
                    writes = writes + [('s', 'exec')]
        else:
            raise ValueError('unknown instruction ' + text)

        touched = set(reads) | set(writes)
        nv = self._need(self.vm, lambda e: e['dst'] & touched)
        nl = self._need(self.lg, lambda e: e['dst'] & touched)
        if nv is not None or nl is not None:
            self._wait(vm=nv, lg=nl)

        need = 0

        def req(ppos, ws):
            nonlocal need
            d = self.pos - ppos - 1
            if ws - d > need:
                need = ws - d

        isv = kind in ('valu', 'trans')
        for r in reads:
            w = self.lastw.get(r)
            if not w:
                continue
            ppos, pk, extra = w
            if pk == 'mfma':
                passes, dset = extra
                if kind == 'mfma':
                    if r in srcC and r not in srcA and r not in srcB:
                        if tuple(srcC) == dset:
                            req(ppos, 0 if passes >= 4 else 2)
                        else:
                            req(ppos, {2: 4, 4: 6, 8: 10, 16: 18}[passes])
                    else:
                        req(ppos, {2: 5, 4: 8, 8: 12, 16: 20}[passes])
                else:
                    req(ppos, {2: 5, 4: 8, 8: 12, 16: 20}[passes])
            elif pk in ('valu', 'trans'):
                if r[0] in 'va':
                    if kind == 'mfma':
                        req(ppos, 2)
                    if '_dpp' in mn:
                        req(ppos, 2)
                    if extra == 'dot' and not mn.startswith('v_dot'):
                        req(ppos, 3)
                    if mn.startswith('v_permlane'):
                        req(ppos, 2)
                    if mn.startswith(('v_readfirstlane', 'v_readlane')):
                        req(ppos, 1)
                    if pk == 'trans' and kind in ('valu',):
                        req(ppos, 1)
                    if pk == 'trans' and kind in ('vmem', 'ds'):
                        req(ppos, 1)
                else:
                    if isv:
                        req(ppos, 2)
                    if kind == 'vmem':
                        req(ppos, 5)
                    if kind == 'salu':
                        req(ppos, 1)
            elif pk == 'salu':
                if r == ('s', 'm0') and kind == 'vmem':
                    req(ppos, 1)
        for r in writes:
            w = self.lastw.get(r)
            if w and w[2] == 'dot' and not mn.startswith('v_dot'):
                req(w[0], 3)
            if w and w[1] == 'mfma' and kind != 'mfma':
                req(w[0], {2: 5, 4: 8, 8: 12, 16: 20}[w[2][0]])
            if w and w[1] == 'mfma' and kind == 'mfma' and tuple(writes) != w[2][1]:
                req(w[0], {2: 5, 4: 8, 8: 12, 16: 20}[w[2][0]])
            if w and w[1] == 'mfma' and kind == 'mfma' and tuple(writes) == w[2][1] and tuple(srcC) != w[2][1]:
                req(w[0], {2: 5, 4: 8, 8: 12, 16: 20}[w[2][0]])
            if r in self.mfma_c_read and kind != 'mfma':
                req(self.mfma_c_read[r][0], {2: 1, 4: 3, 8: 7, 16: 15}[self.mfma_c_read[r][1]])
            if r in self.store_read:
                req(self.store_read[r], 2)
        if need > 0:
            self.nop(need)

        p = self.pos
        self._put(text)
        self.stats[kind] = self.stats.get(kind, 0) + 1
        if kind == 'mfma':
            passes = 8 if '32x32' in mn else 4
            for r in writes:
                self.lastw[r] = (p, 'mfma', (passes, tuple(writes)))
            for r in srcC:
                self.mfma_c_read[r] = (p, passes)
        elif kind in ('valu', 'trans', 'salu'):
            for r in writes:
                self.lastw[r] = (p, kind, 'dot' if mn.startswith('v_dot') else None)
        elif kind == 'vmem':
            for r in writes:
                self.lastw.pop(r, None)
            if count:
                self.vm.append(dict(dst=set(writes), tag=tag))
            if mn.startswith(('buffer_store_dwordx4', 'buffer_store_dwordx3')):
                for r in R[0]:
                    self.store_read[r] = p
            assert len(self.vm) <= 63, 'too many vmem ops outstanding'
        elif kind == 'ds':
            for r in writes:
                self.lastw.pop(r, None)
            self.lg.append(dict(dst=set(writes), tag=tag))
            if len(self.lg) > 15:
                raise AssertionError('too many lds ops outstanding: ' + text)

    def ds(self, text, tag=None):
        if len(self.lg) >= self.lgmax:
            self._wait(lg=self.lgmax - 1)
        self(text, tag=tag)

    def text(self):
        return '\n'.join(self.lines) + '\n'

    def fork(self):
        import copy
        o = Asm()
        o.lines = self.lines
        o.pos = self.pos
        o.lastw = dict(self.lastw)
        o.mfma_c_read = dict(self.mfma_c_read)
        o.store_read = dict(self.store_read)
        o.vm = copy.deepcopy(self.vm)
        o.lg = copy.deepcopy(self.lg)
        o.lgmax = self.lgmax
        return o
```

```python
import sys, os, struct, argparse
sys.path.insert(0, os.path.dirname(os.path.abspath(__file__)))
from asmlib import Asm

NAME = "gated_mix__linear_attn_block__dense_activation_gelu__prompt"

UNIT = 131072
KVACC = 0x780000
HSTR, QSTR = 1152, 576
CNT = 0x78A000
GOFF = 0x790000
STAMP = 0x7C0000
FLAG = 0x800000
EOFF = 0x900000
WS_SIZE = 0x900080
OOB = 0x40000000

W_BASE = 65536
XS, WSL = 16384, 24576
KVP = [8, 9, 11, 12]
NCNT = 32


def f2u(x):
    return struct.unpack('<I', struct.pack('<f', x))[0]


LOG2E = 1.4426950408889634
GC0 = -2.0 * 0.7978845608028654 * LOG2E
GC1 = GC0 * 0.044715

S_X, S_WA, S_WS, S_U, S_OUT, S_DBG, S_M1, S_M2, S_U2, S_WF = 4, 8, 12, 16, 20, 24, 28, 32, 36, 40
sWV, sJ, sRB, sCG, sGRP, sRT, sCT, sP, sXQ, sWQ = range(64, 74)
sT0, sT1, sT2, sT3, sT4 = range(74, 79)
sD0, sD1, sD2 = 79, 80, 81
sC1, sONE = 82, 84
sUST, sUF, sUQ, sAF, sAQ, sO5 = range(86, 92)
sXCD, sIDX = 92, 93
sE, sFR, sRC = 94, 96, 97
sKVB = sT4
sCOL = 3
sSPIN, sIN = 0, 1
sGF, sKC = sONE, sONE + 1
PSLOT = [4, 6, 8, 10]
KSL = [4, 28]


def srd(n):
    return 's[%d:%d]' % (n, n + 3)


def vr(b, n):
    return 'v[%d:%d]' % (b, b + n - 1)


MFMA = 'v_mfma_f32_32x32x16_bf16 %s, %s, %s, %s'


class Gen:
    def __init__(self, opt):
        self.o = opt
        self.a = Asm()
        self.lbl = 0
        self.no = set(opt.no.split(','))
        self.vL16, self.vStamp, self.vUd = 2, 3, 4
        self.vUr = 5
        self.vActLd = 11
        self.vFlagW, self.vEpoch = 13, 17
        self.vG = 18
        self.vTmp = 20
        self.vB2 = 24
        self.vActSt = 28
        self.vGa = 29
        self.vGv = 30
        self.vKV = 32
        self.vZero = 33
        self.vMisc = 34
        self.acc2 = 36
        self.fr = 36
        self.vBias = 84
        self.vSel = 90
        self.vXd = 96
        self.vWd = 98
        self.acc = 100
        self.et = 148
        self.pk = 156
        self.et2 = 164
        self.pk2 = 172
        self.vXr = 180
        self.vWr = 184
        self.vC0 = 186
        self.gw = 188
        self.kvres = 196
        self.ring0 = 228
        self.ool = []

    def newlabel(self, s):
        self.lbl += 1
        return 'L%s_%d' % (s, self.lbl)

    def stamp(self, a, name):
        if not self.o.diag or name not in self.o.stamps.split(','):
            return
        r = a.stpool.pop(0)
        a.stampn.append((name, r))
        a._put('s_memtime s[%d:%d]' % (r, r + 1))

    def dstore(self, a, text, tag):
        if not self.o.dual:
            a(text + self.o.spol, tag=tag)
            return
        L = self.newlabel('ds')
        a('s_cmp_lg_u32 s%d, 0' % sMODE)
        a(text, tag=tag)
        st = a.lines.pop()
        a._put('s_cbranch_scc1 %ss' % L)
        a.lines.append(st)
        a.label(L + 'b')
        self.ool += [L + 's:', '    ' + text + ' sc1', '    s_branch %sb' % L]

    def prologue(self):
        a, o = self.a, self.o
        a.label(NAME + '_kernel')
        a('s_cmp_ge_u32 s2, 256')
        a('s_cbranch_scc1 L_end')
        for d, off in ((S_X, 0), (S_WA, 8), (S_WF, 32), (S_WS, 88)):
            a._put('s_load_dwordx2 s[%d:%d], s[0:1], %d' % (d, d + 1, off))
        if o.diag:
            a._put('s_memtime s[100:101]')
            a._put('s_memrealtime s[98:99]')
        a('v_lshrrev_b32 v1, 6, v0')
        a('s_and_b32 s%d, s2, 7' % sXCD)
        a('v_readfirstlane_b32 s%d, v1' % sWV)
        a('s_lshr_b32 s%d, s2, 3' % sIDX)
        a('v_and_b32 v1, 63, v0')
        if o.loc:
            a('s_lshl_b32 s%d, s%d, 1' % (sRB, sXCD))
            a('s_and_b32 s%d, s%d, 1' % (sT2, sIDX))
            a('s_add_u32 s%d, s%d, s%d' % (sRB, sRB, sT2))
            a('s_lshr_b32 s%d, s%d, 1' % (sCG, sIDX))
        else:
            a('s_and_b32 s%d, s%d, 1' % (sRB, sXCD))
            a('s_lshl_b32 s%d, s%d, 3' % (sRB, sRB))
            a('s_and_b32 s%d, s%d, 7' % (sT2, sIDX))
            a('s_add_u32 s%d, s%d, s%d' % (sRB, sRB, sT2))
            a('s_lshr_b32 s%d, s%d, 1' % (sCG, sXCD))
            a('s_lshl_b32 s%d, s%d, 2' % (sCG, sCG))
            a('s_lshr_b32 s%d, s%d, 3' % (sT2, sIDX))
            a('s_add_u32 s%d, s%d, s%d' % (sCG, sCG, sT2))
        a('s_and_b32 s%d, s%d, 7' % (sGRP, sCG))
        a('s_cmp_lt_u32 s%d, 4' % sWV)
        a('s_cbranch_scc1 L_rolea')
        a('s_cmp_lt_u32 s%d, 8' % sCG)
        a('s_cbranch_scc1 L_pathAb')
        a('s_cmp_lt_u32 s%d, 11' % sCG)
        a('s_cbranch_scc1 L_pathFb')
        a('s_branch L_pathGb')
        a.label('L_rolea')
        a('s_cmp_lt_u32 s%d, 8' % sCG)
        a('s_cbranch_scc1 L_pathAa')

    @staticmethod
    def fstart(dst, g, tmp):
        return ['s_mul_i32 s%d, s%d, 5' % (dst, g), 's_min_u32 s%d, s%d, 3' % (tmp, g), 's_add_u32 s%d, s%d, s%d' % (dst, dst, tmp)]

    def gelu_ops(self, accb, pkb, ets):
        ops = []
        if 'epi' in self.no:
            return ops
        for q in range(0, 16, 8):
            et = ets[q // 8]
            xs = [accb + q + 2 * i for i in range(4)]
            ts = [et + 2 * i for i in range(4)]
            for x, t in zip(xs, ts):
                ops.append('v_pk_mul_f32 %s, %s, %s' % (vr(t, 2), vr(x, 2), vr(x, 2)))
            for x, t in zip(xs, ts):
                ops.append('v_pk_fma_f32 %s, %s, s[%d:%d], %s' % (vr(t, 2), vr(t, 2), sC1, sC1 + 1, vr(self.vC0, 2)))
            for x, t in zip(xs, ts):
                ops.append('v_pk_mul_f32 %s, %s, %s' % (vr(t, 2), vr(t, 2), vr(x, 2)))
            for i in range(8):
                ops.append('v_exp_f32 v%d, v%d' % (et + i, et + i))
            for t in ts:
                ops.append('v_pk_add_f32 %s, %s, s[%d:%d]' % (vr(t, 2), vr(t, 2), sONE, sONE + 1))
            for i in range(8):
                ops.append('v_rcp_f32 v%d, v%d' % (et + i, et + i))
            for x, t in zip(xs, ts):
                ops.append('v_pk_mul_f32 %s, %s, %s' % (vr(t, 2), vr(t, 2), vr(x, 2)))
            for j, t in enumerate(ts):
                ops.append('v_cvt_pk_bf16_f32 v%d, v%d, v%d' % (pkb + q // 2 + j, t, t + 1))
        return ops

    def phi_ops(self, accb, pkb):
        et = self.et
        ops = []
        if 'epi' in self.no:
            return ops
        for q in range(0, 16, 8):
            ops += ['v_pk_mul_f32 %s, %s, s[%d:%d]' % (vr(et + i, 2), vr(accb + q + i, 2), sC1, sC1 + 1) for i in range(0, 8, 2)]
            ops += ['v_exp_f32 v%d, v%d clamp' % (et + i, et + i) for i in range(8)]
            ops += ['v_max_f32 v%d, 0x%x, v%d' % (accb + q + i, f2u(1e-6), accb + q + i) for i in range(8)]
            ops += ['v_pk_add_f32 %s, %s, %s' % (vr(et + i, 2), vr(et + i, 2), vr(accb + q + i, 2)) for i in range(0, 8, 2)]
            ops += ['v_cvt_pk_bf16_f32 v%d, v%d, v%d' % (pkb + q // 2 + j, et + 2 * j, et + 2 * j + 1) for j in range(4)]
        return ops

    def st_op(self, pkb, unit_rel, g, tag):
        return [('s_add_u32 s%d, s%d, %d' % (sT2, sUST, unit_rel * UNIT), None),
                ('buffer_store_dwordx4 %s, v%d, %s, s%d offen offset:%d' % (vr(pkb, 4), self.vActSt, srd(S_WS), sT2, 1024 * g), tag)]

    def with_stores(self, ops, pkb, unit_rel, tag):
        if 'st' in self.no:
            return ops
        st = [self.st_op(pkb + 4 * g, unit_rel, g, tag) for g in range(2)]
        out = []
        done = False
        for i, op in enumerate(ops):
            out.append(op)
            if not done and i >= 2 and ops[i - 2].startswith('v_cvt_pk_bf16_f32 v%d,' % (pkb + 3)):
                out.append(st[0])
                done = True
        if not done:
            out.append(st[0])
        out.append(st[1])
        return out

    def check(self, a, load, cmps):
        ok = self.newlabel('ok')
        rt = self.newlabel('retry')
        a.force_wait('lgkmcnt(0)')
        for c in cmps:
            a(c)
            a('s_cbranch_scc0 ' + rt + 'i')
        a.label(ok)
        s = a.fork()
        s.lines = []
        s.label(rt + 'i')
        s('s_mov_b32 s%d, %d' % (sSPIN, self.o.spin))
        s.label(rt)
        if self.o.diag:
            a.nchk = getattr(a, 'nchk', 0) + 1
            s('s_add_u32 s%d, s%d, %d' % (sRC, sRC, 1 << (3 * (a.nchk - 1))))
        s('s_sub_u32 s%d, s%d, 1' % (sSPIN, sSPIN))
        s('s_cbranch_scc1 ' + ok)
        if self.o.sleep:
            s('s_sleep %d' % self.o.sleep)
        load(s)
        s.force_wait('lgkmcnt(0)')
        for c in cmps:
            s(c)
            s('s_cbranch_scc0 ' + rt)
        s('s_branch ' + ok)
        self.ool += s.lines

    def path(self, var, role):
        o = self.o
        a = self.a.fork()
        a.stampn = []
        a.stpool = list(range(44, 64, 2))
        a.label('L_path' + var + role)
        a.lgmax = 12 if o.diag else 15
        isA = var == 'A'
        isb = role == 'b'
        ch = 1 if isb else 0
        gate = var == 'G'
        nt = 2 if gate else 3
        S_B1 = S_WA if gate else S_M1
        stride = 3072 if isA else 2752
        S_W = S_WA if isA else S_WF
        woff = [1024, 2048, 0] if isA else [0, 128, 256]
        cs = o.csA if isA else o.csF
        defer = o.dlA if isA else o.dlF
        t0, t1, t2, t3 = [self.vTmp + i for i in range(4)]

        def acc(p):
            return self.acc + 16 * p

        def fin(d, size):
            a('s_mov_b32 s%d, 0x%x' % (d + 2, size))
            a('s_mov_b32 s%d, 0x20000' % (d + 3))

        cur = dict(w=0)

        def x_items(c):
            def f(i):
                def g():
                    if i == 0 and c:
                        a('s_add_u32 m0, s%d, %d' % (sXQ, (c & 3) * XS))
                        a('s_movk_i32 s%d, %d' % (sT0, c * 128))
                    a('buffer_load_dwordx4 v%d, %s, %s offen offset:%d lds' % (self.vXd + i, srd(S_X), ('s%d' % sT0) if c else '0', 1024 * i), tag=('x', c))
                return g
            return [f(0), f(1)]

        def w_item(c, p):
            def g():
                a('s_add_u32 m0, s%d, %d' % (sWQ, (c & 3) * WSL + 8192 * p - woff[p]))
                if c and cur['w'] != c:
                    a('s_mov_b32 s%d, %d' % (sT1, 64 * c * stride))
                    cur['w'] = c
                a('buffer_load_dwordx4 v%d, %s, %s offen offset:%d lds' % (self.vWd + (1 if not isA and p == 2 else 0), srd(S_W), ('s%d' % sT1) if c else '0', woff[p]),
                  tag=('w2',) if (p == 2 and defer and c >= cs) else ('w', c))
            return g

        def w_items(c):
            return [w_item(c, p) for p in range(2 if (defer and c >= cs) else 3)]

        for d, off in ((S_M1, 64 if gate else 40), (S_DBG, 80), (S_U, 48), (S_U2, 16), (S_OUT, 72), (S_M2, 56)):
            a._put('s_load_dwordx2 s[%d:%d], s[0:1], %d' % (d, d + 1, off))
        a('v_lshrrev_b32 v%d, 3, v1' % t0)
        a('v_and_b32 v%d, 7, v1' % t1)
        a('v_lshrrev_b32 v%d, 4, v1' % t2)
        a('v_xor_b32 v%d, v%d, v%d' % (t3, t1, t2))
        a('v_lshlrev_b32 v%d, 4, v%d' % (t3, t3))
        a('v_lshl_add_u32 v%d, v%d, 10, v%d' % (t3, t0, t3))
        a('s_lshl_b32 s%d, s%d, 3' % (sT2, sRB))
        a('s_add_u32 s%d, s%d, s%d' % (sT2, sT2, sWV))
        a('s_lshl_b32 s%d, s%d, 14' % (sT3, sT2))
        a('v_add_u32 v%d, s%d, v%d' % (self.vXd, sT3, t3))
        a('v_xor_b32 v%d, 64, v%d' % (self.vXd + 1, self.vXd))
        a('v_add_u32 v%d, %d, v%d' % (self.vXd + 1, 7168, self.vXd + 1))
        a('v_and_b32 v%d, 1, v%d' % (t2, t2))
        a('v_lshlrev_b32 v%d, 2, v%d' % (t2, t2))
        a('v_xor_b32 v%d, v%d, v%d' % (t1, t1, t2))
        a('v_lshlrev_b32 v%d, 4, v%d' % (t1, t1))
        a('s_lshl_b32 s%d, s%d, 11' % (sXQ, sWV))
        a('s_lshl_b32 s%d, s%d, 10' % (sP, sWV))
        a('s_add_u32 s%d, s%d, %d' % (sWQ, sP, W_BASE))
        a('s_mov_b32 m0, s%d' % sXQ)
        fin(S_X, 2048 * 1024)
        fin(S_W, 512 * stride)
        if isA:
            a('s_lshl_b32 s%d, s%d, 7' % (sCOL, sGRP))
        else:
            for tx in self.fstart(sCOL, sGRP, sT3):
                a(tx)
            a('s_lshl_b32 s%d, s%d, 6' % (sCOL, sCOL))
        a('s_mul_i32 s%d, s%d, %d' % (sT3, sWV, 8 * stride))
        a('s_add_u32 s%d, s%d, s%d' % (sT3, sT3, sCOL))
        a('v_mul_u32_u24 v%d, %d, v%d' % (self.vWd, stride, t0))
        if not isA:
            if var == 'G' or isb:
                a('v_and_b32 v%d, 0x%x, v%d' % (t2, 0x30 if var == 'G' else 0x70, t1))
            else:
                a('s_cmp_lt_u32 s%d, 3' % sGRP)
                a('s_cselect_b32 s%d, 0x70, 0x30' % sT2)
                a('v_and_b32 v%d, s%d, v%d' % (t2, sT2, t1))
            a('v_add3_u32 v%d, v%d, v%d, s%d' % (self.vWd + 1, self.vWd, t2, sT3))
        a('v_add3_u32 v%d, v%d, v%d, s%d' % (self.vWd, self.vWd, t1, sT3))
        a('v_lshl_add_u32 v%d, v%d, 10, v%d' % (self.vUd, t0, t1))
        if gate:
            a('v_and_b32 v%d, 31, v1' % t2)
            a('v_lshlrev_b32 v%d, 5, v%d' % (t2, t2))
            a('v_lshrrev_b32 v%d, 5, v1' % t3)
            a('v_lshl_add_u32 v%d, v%d, 4, v%d' % (t2, t3, t2))
            fin(S_M1, 1024)
        a._put('s_waitcnt lgkmcnt(0)')
        self.stamp(a, 'karg')
        for f in x_items(0) + w_items(0):
            f()
        if gate:
            a('buffer_load_dwordx4 %s, v%d, %s, 0 offen' % (vr(self.gw, 4), t2, srd(S_M1)), tag='g')
            a._put('s_load_dwordx2 s[%d:%d], s[0:1], 40' % (S_B1, S_B1 + 1))
        pubpath = (var + role) == 'Aa'
        if pubpath:
            skip = self.newlabel('nopub')
            a('s_or_b32 s%d, s2, s%d' % (sT3, sWV))
            a('s_cbranch_scc1 ' + skip)
            a('s_mov_b32 s%d, 0x%x' % (sT3, EOFF))
            a._put('s_load_dword s%d, s[%d:%d], s%d' % (sE, S_WS, S_WS + 1, sT3))
            a.label(skip)
            a.lgmax -= 1
        self.stamp(a, 'd0')
        a('s_and_b32 s%d, s%d, 3' % (sJ, sWV))
        a('v_and_b32 v%d, 31, v1' % t0)
        a('v_lshrrev_b32 v%d, 5, v1' % t1)
        a('v_bfe_u32 v%d, v1, 1, 3' % t2)
        a('v_xor_b32 v%d, v%d, v%d' % (t2, t2, t1))
        a('v_lshlrev_b32 v%d, 4, v%d' % (t2, t2))
        a('v_lshl_add_u32 v%d, v%d, 7, v%d' % (t2, t0, t2))
        a('s_lshl_b32 s%d, s%d, 12' % (sT2, sJ))
        a('v_add_u32 v%d, s%d, v%d' % (self.vXr, sT2, t2))
        for s in range(1, 4):
            a('v_xor_b32 v%d, %d, v%d' % (self.vXr + s, 32 * s, self.vXr))
        a('v_bfe_u32 v%d, v1, 2, 2' % t0)
        a('v_and_b32 v%d, 3, v1' % t2)
        a('v_lshlrev_b32 v%d, 3, v%d' % (t2, t2))
        a('v_bfe_u32 v%d, v1, 4, 1' % t3)
        a('v_lshl_add_u32 v%d, v%d, 5, v%d' % (t2, t3, t2))
        a('v_bfe_u32 v%d, v1, 3, 1' % t3)
        a('v_lshl_add_u32 v%d, v%d, 6, v%d' % (t2, t3, t2))
        a('v_lshl_add_u32 v%d, v%d, 7, v%d' % (t2, t0, t2))
        a('v_lshl_add_u32 v%d, v%d, 10, v%d' % (t3, t1, t2))
        a('v_xor_b32 v%d, 0x%x, v%d' % (self.vWr, W_BASE + 64 * ch, t3))
        a('v_add_u32 v%d, %d, v%d' % (self.vWr + 1, 2 * WSL, self.vWr))
        a('v_lshl_add_u32 v%d, v%d, 9, v%d' % (self.vUr, t1, t2))
        a('v_lshlrev_b32 v%d, 4, v1' % self.vL16)
        a('v_mov_b32 v%d, 0' % self.vZero)
        fin(S_WS, WS_SIZE)
        fin(S_DBG, 256)
        if gate:
            a._put('s_waitcnt lgkmcnt(0)')
        if o.diag:
            a('s_mov_b32 s%d, 0' % sRC)

        dq = []

        def D(name, *ops):
            dq.append((name, list(ops)))
        d0, d1, d2 = sD0, sD1, sD2
        if not isA:
            D('bias', 's_mov_b32 s%d, 0x%x' % (S_B1 + 2, 1376 * 2), 's_mov_b32 s%d, 0x20000' % (S_B1 + 3),
              'v_and_b32 v%d, 31, v1' % t2, 'v_lshlrev_b32 v%d, 1, v%d' % (t2, t2))
            for p in range(nt):
                D('bias', 'buffer_load_ushort v%d, v%d, %s, s%d offen offset:%d' % (self.vBias + 2 * p, t2, srd(S_B1), sCOL, 128 * p + 64 * ch))
            for i in range(6):
                if i != 2:
                    D('sel', 'v_mov_b32 v%d, 0' % (self.vSel + i))
            D('sel', 'v_xor_b32 v%d, 1, v%d' % (t3, t1), 'v_mul_u32_u24 v%d, 0x3f80, v%d' % (self.vSel + 2, t3))
            for i in range(3):
                D('sel', 'v_mov_b32 v%d, 0' % (self.vBias + 2 * i + 1))
        D('u', 's_lshl_b32 s%d, s%d, 2' % (sRT, sXCD), 's_and_b32 s%d, s%d, 3' % (d0, sIDX), 's_add_u32 s%d, s%d, s%d' % (sRT, sRT, d0))
        D('u', 's_lshr_b32 s%d, s%d, 2' % (sCT, sIDX), 's_lshl_b32 s%d, s%d, 7' % (d0, sCT), 'v_add_u32 v%d, s%d, v%d' % (self.vUd, d0, self.vUd))
        D('u', 's_mov_b32 s%d, 0x%x' % (S_U + 2, 1376 * 1024), 's_mov_b32 s%d, 0x20000' % (S_U + 3))
        D('u', 's_mov_b32 s%d, 0x%x' % (S_U2 + 2, 512 * 1024), 's_mov_b32 s%d, 0x20000' % (S_U2 + 3))
        D('u', *(self.fstart(d0, sWV, d1) + ['s_lshl_b32 s%d, s%d, 15' % (sUF, d0), 's_add_u32 s%d, s%d, 16' % (d0, d0), 's_lshl_b32 s%d, s%d, 17' % (sAF, d0)]))
        if not isb:
            D('u', 's_cmp_lt_u32 s%d, 3' % sWV, 's_cselect_b32 s%d, 0, 0x%x' % (sO5, OOB))
        D('u', 's_lshl_b32 s%d, s%d, 16' % (sUQ, sWV), 's_lshl_b32 s%d, s%d, 18' % (sAQ, sWV))
        D('epi', 's_lshl_b32 s%d, s%d, 2' % (d1, sRB), 's_add_u32 s%d, s%d, s%d' % (d1, d1, sJ), 's_lshl_b32 s%d, s%d, 11' % (d0, d1),
          'v_add_u32 v%d, s%d, v%d' % (self.vActSt, d0, self.vL16),
          *([] if not (isA or gate) else
            (['s_lshr_b32 s%d, s%d, 1' % (d0, sGRP), 's_lshl_b32 s%d, s%d, 13' % (d0, d0)] if isA else ['s_lshl_b32 s%d, s%d, 13' % (d0, sGRP)]) +
            ['s_lshl_b32 s%d, s%d, 7' % (d1, d1), 's_add_u32 s%d, s%d, s%d' % (d0, d0, d1),
             's_add_u32 s%d, s%d, 0x%x' % (d0, d0, GOFF + (4 * 8192 if isA else 0)), 'v_and_b32 v%d, 31, v1' % t0,
             'v_lshl_add_u32 v%d, v%d, 2, s%d' % (self.vMisc + 1, t0, d0)]))
        if isA:
            D('epi', 's_lshl_b32 s%d, s%d, 18' % (sUST, sGRP))
            D('epi', 's_mov_b32 s%d, 0x%x' % (sC1, f2u(LOG2E)), 's_mov_b32 s%d, 0x%x' % (sC1 + 1, f2u(LOG2E)))
            D('epi', 's_lshr_b32 s%d, s%d, 1' % (d0, sJ), 's_add_u32 s%d, s%d, s%d' % (d0, d0, sJ), 's_lshl_b32 s%d, s%d, 13' % (d0, d0),
              's_add_u32 s%d, s%d, %d' % (d0, d0, KVP[0] * 8192 + ch * 4096), 'v_add_u32 v%d, s%d, v%d' % (self.vMisc, d0, self.vL16))
            for j in range(8):
                D('epi', 'v_mov_b32 v%d, 0x3f803f80' % (self.et2 + j), 'v_mov_b32 v%d, 0x3f803f80' % (self.pk2 + j))
            ad, az = self.gw, self.gw + 1
            D('epi', 's_bfe_u32 s%d, s%d, 0x10001' % (d0, sWV), 's_lshl_b32 s%d, s%d, 8' % (d0, d0), 's_add_u32 s%d, s%d, s%d' % (d0, d0, sP),
              's_add_u32 s%d, s%d, %d' % (d0, d0, KVP[0] * 8192), 'v_lshl_add_u32 v%d, v1, 2, s%d' % (ad, d0), 's_xor_b32 s%d, s%d, 256' % (d0, d0),
              'v_bfe_u32 v%d, v1, 2, 1' % az, 'v_and_b32 v%d, 3, v1' % (az + 1), 'v_lshlrev_b32 v%d, 2, v%d' % (az + 1, az + 1),
              'v_lshl_add_u32 v%d, v%d, 9, v%d' % (az, az, az + 1), 'v_add_u32 v%d, s%d, v%d' % (az, d0, az))
            D('epi', 'v_cmp_gt_u32 vcc, 8, v1', 'v_lshlrev_b32 v%d, 2, v1' % (az + 1), 'v_mov_b32 v%d, 0x%x' % (az + 2, OOB),
              'v_cndmask_b32 v%d, v%d, v%d, vcc' % (az + 2, az + 2, az + 1))
            D('epi', 's_lshl_b32 s%d, s%d, 3' % (d0, sGRP), 's_add_u32 s%d, s%d, s%d' % (d0, d0, sWV),
              's_mul_i32 s%d, s%d, %d' % (sKVB, d0, QSTR), 's_add_u32 s%d, s%d, 0x%x' % (sKVB, sKVB, KVACC))
            D('epi', 'v_and_b32 v%d, 31, v1' % t0, 'v_lshlrev_b32 v%d, 4, v%d' % (self.vKV, t0), 'v_lshl_add_u32 v%d, v%d, 8, v%d' % (self.vKV, t1, self.vKV))
            D('epi', 'v_lshlrev_b32 v%d, 4, v%d' % (t2, t1), 'v_add_u32 v%d, 512, v%d' % (t2, t2), 'v_cmp_gt_u32 vcc, 16, v%d' % t0,
              's_mul_i32 s%d, s%d, %d' % (d0, sGRP, 4 * HSTR), 's_add_u32 s%d, s%d, 0x%x' % (d0, d0, KVACC + 2 * ch * HSTR),
              'v_cndmask_b32 v%d, v%d, v%d, vcc' % (self.vKV, t2, self.vKV), 'v_add_u32 v%d, s%d, v%d' % (self.vKV, d0, self.vKV))
        else:
            D('epi', 's_lshl_b32 s%d, s%d, 11' % (sUST, sCOL), 's_add_u32 s%d, s%d, %d' % (sUST, sUST, 16 * UNIT))
            D('epi', 's_mov_b32 s%d, 0x%x' % (sC1, f2u(GC1)), 's_mov_b32 s%d, 0x%x' % (sC1 + 1, f2u(GC1)))
            D('epi', 's_mov_b32 s%d, 1.0' % sONE, 's_mov_b32 s%d, 1.0' % (sONE + 1))
            D('epi', 'v_mov_b32 v%d, 0x%x' % (self.vC0, f2u(GC0)), 'v_mov_b32 v%d, 0x%x' % (self.vC0 + 1, f2u(GC0)))
        D('epi', 's_lshl_b32 s%d, s%d, 15' % (d2, sRB), 's_lshr_b32 s%d, s%d, 1' % (d0, sJ), 's_lshl_b32 s%d, s%d, 10' % (d0, d0),
          's_add_u32 s%d, s%d, s%d' % (d2, d2, d0), 's_and_b32 s%d, s%d, 1' % (d0, sJ), 's_lshl_b32 s%d, s%d, 2' % (d0, d0),
          's_add_u32 s%d, s%d, s%d' % (d2, d2, d0), 's_add_u32 s%d, s%d, 0x%x' % (d2, d2, FLAG))
        D('epi', 's_lshl_b32 s%d, s%d, 11' % (d0, sCG), 's_add_u32 s%d, s%d, s%d' % (d0, d0, d2), 'v_mov_b32 v%d, s%d' % (self.vFlagW, d0))
        if isA:
            D('epi', 's_lshr_b32 s%d, s%d, 1' % (d0, sGRP), 's_lshl_b32 s%d, s%d, 11' % (d0, d0), 's_add_u32 s%d, s%d, s%d' % (sGF, d0, d2),
              's_lshl_b32 s%d, s%d, 4' % (sKC, sGRP), 's_add_u32 s%d, s%d, s%d' % (sKC, sKC, sRB), 's_lshl_b32 s%d, s%d, 7' % (sKC, sKC),
              's_add_u32 s%d, s%d, 0x%x' % (sKC, sKC, CNT))
        D('p2', 's_and_b32 s%d, s%d, 1' % (d0, sWV), 's_lshl_b32 s%d, s%d, 6' % (d0, d0), 's_add_u32 s%d, s%d, s%d' % (d0, d0, sP),
          'v_xor_b32 v%d, s%d, v%d' % (self.vUr, d0, self.vUr), 'v_xor_b32 v%d, 64, v%d' % (self.vUr + 1, self.vUr))
        for i in range(2, 6):
            D('p2', 'v_add_u32 v%d, 0x10000, v%d' % (self.vUr + i, self.vUr + i - 2))
        D('p2', 's_mov_b32 s%d, 0x%x' % (S_OUT + 2, 2048 * 1024), 's_mov_b32 s%d, 0x20000' % (S_OUT + 3))
        D('p2', 's_lshl_b32 s%d, s%d, 1' % (d0, sRT), 's_lshr_b32 s%d, s%d, 1' % (d1, sJ), 's_add_u32 s%d, s%d, s%d' % (d0, d0, d1),
          's_lshl_b32 s%d, s%d, 11' % (d1, d0), 'v_add_u32 v%d, s%d, v%d' % (self.vActLd, d1, self.vL16),
          'v_xor_b32 v%d, 2048, v%d' % (self.vActLd + 1, self.vActLd),
          's_lshl_b32 s%d, s%d, 7' % (d0, d0), 's_lshr_b32 s%d, s%d, 1' % (d1, sWV), 's_lshl_b32 s%d, s%d, 13' % (d1, d1),
          's_add_u32 s%d, s%d, s%d' % (d0, d0, d1), 's_add_u32 s%d, s%d, 0x%x' % (d0, d0, GOFF + 4 * 8192), 'v_and_b32 v%d, 31, v1' % t0, 'v_lshl_add_u32 v%d, v%d, 2, s%d' % (self.vGa, t0, d0))
        D('p2', 's_lshr_b32 s%d, s%d, 1' % (d0, sRT), 's_lshl_b32 s%d, s%d, 15' % (d0, d0), 's_and_b32 s%d, s%d, 1' % (d1, sRT),
          's_lshl_b32 s%d, s%d, 10' % (d1, d1), 's_add_u32 s%d, s%d, s%d' % (d0, d0, d1), 's_add_u32 s%d, s%d, 0x%x' % (d0, d0, FLAG),
          's_add_u32 s%d, s%d, s%d' % (sFR, d0, sXQ))
        D('p2', 's_mov_b32 s%d, 0x400' % (S_M2 + 2), 's_mov_b32 s%d, 0x20000' % (S_M2 + 3), 's_lshl_b32 s%d, s%d, 7' % (d0, sCT),
          's_and_b32 s%d, s%d, 1' % (d1, sJ), 's_lshl_b32 s%d, s%d, 6' % (d1, d1), 's_add_u32 s%d, s%d, s%d' % (d0, d0, d1),
          'v_lshlrev_b32 v%d, 3, v%d' % (t2, t1),
          'buffer_load_dwordx2 %s, v%d, %s, s%d offen offset:%d' % (vr(self.vB2, 2), t2, srd(S_M2), d0, 32 * ch),
          'buffer_load_dwordx2 %s, v%d, %s, s%d offen offset:%d' % (vr(self.vB2 + 2, 2), t2, srd(S_M2), d0, 32 * ch + 16))

        def drain(k):
            while dq and k > 0:
                nm, ops = dq.pop(0)
                for tx in ops:
                    a(tx, tag='misc')
                k -= len(ops)

        def need(name):
            while any(nm == name for nm, _ in dq):
                drain(1)

        drain(o.sd0a if not isb else o.sd0b)
        for c in range(1, o.pre):
            for f in x_items(c) + w_items(c):
                f()
            self.stamp(a, 'd%d' % c)
        drain(o.sd1)
        self.stamp(a, 'setup')

        order = [u for u in o.order.split(',') if not (isb and u == 'F5')]
        NU = len(order)
        NP = 4 * NU

        ust = dict(ni=0, nr=0)
        upiece = {}
        freep = []

        def u_issue():
            if ust['ni'] >= NP or not freep:
                return False
            need('u')
            i = ust['ni']
            q, prev = freep.pop(0)
            if prev is not None:
                a.wait_lg(prev)
            upiece[i] = q
            ust['ni'] += 1
            if 'u' in self.no:
                return True
            u = order[i // 4]
            rs, sb = (S_U2, sUQ) if u[0] == 'Q' else (S_U, sUF)
            a('s_add_u32 m0, s%d, %d' % (sP, q * 8192))
            a('s_add_u32 s%d, s%d, %d' % (sT3, sb, (int(u[1]) * 32 + (i % 4) * 8) * 1024))
            if u == 'F5':
                a('s_add_u32 s%d, s%d, s%d' % (sT3, sT3, sO5))
            a('buffer_load_dwordx4 v%d, %s, s%d offen lds' % (self.vUd, srd(rs), sT3), tag=('u', i))
            return True

        ufr = {}

        def u_read(dst):
            h = ust['nr']
            assert 2 * h + 1 < ust['ni'], (var, role, h, ust)
            a.wait_vm(('u', 2 * h), ('u', 2 * h + 1))
            for t in range(2):
                for rd in range(2):
                    win, qq = divmod(upiece[2 * h + rd], 8)
                    a.ds('ds_read_b64_tr_b16 %s, v%d offset:%d' % (vr(dst + 4 * t + 2 * rd, 2), self.vUr + win * 2 + t, qq * 8192), tag=('ur', h))
            for rd in range(2):
                freep.append((upiece[2 * h + rd], ('ur', h)))
            ufr[h] = dst
            ust['nr'] += 1

        def free_pieces(qs):
            for q in qs:
                if not (isA and q in KVP):
                    freep.append((q, None))

        def early_pieces(c):
            s = c & 3
            return [8 + 3 * s, 9 + 3 * s]

        def late_pieces(c):
            s = c & 3
            return [2 * s, 2 * s + 1, 10 + 3 * s]

        PF = 2

        def fbuf(n):
            return self.fr + (n % 3) * 16

        def ntile(n):
            return min(nt, 3 if n // 4 < cs else 2)

        def xread(dst, n):
            c, s = divmod(n, 4)
            return 'ds_read_b128 %s, v%d offset:%d' % (vr(dst, 4), self.vXr + s, (c & 3) * XS)

        def wread(dst, n, p):
            c, s = divmod(n, 4)
            win, sl = divmod(c & 3, 2)
            return ['ds_read_b64_tr_b16 %s, v%d offset:%d' % (vr(dst + 2 * rd, 2), self.vWr + win, sl * WSL + p * 8192 + s * 2048 + rd * 512) for rd in range(2)]

        def reads_for(n):
            out = [[xread(fbuf(n), n)], [], []]
            if gate:
                out[2] = ['s_mov_b32 vcc_lo, 0x%x' % (1 << n), 's_mov_b32 vcc_hi, 0x%x' % (1 << n)]
                out[2] += ['v_cndmask_b32 v%d, 0, v%d, vcc' % (fbuf(n) + 12 + i, self.gw + i) for i in range(4)]
            for p in range(ntile(n)):
                if not ('rd' in self.no or ('rd2' in self.no and p)):
                    out[p] += wread(fbuf(n) + 4 + 4 * p, n, p)
            return out

        def rdemit(tx):
            if tx.startswith('ds_'):
                a.ds(tx, tag='fr')
            else:
                a(tx)

        def barrier_for(c):
            a.wait_both([('w', c), ('x', c)], ['fr'])
            a('s_barrier')

        def bar_n(c):
            return max(0, 4 * c - PF)

        def chunk_bar(cb):
            barrier_for(cb)
            if cb >= 5:
                free_pieces(early_pieces(cb - 1) + (late_pieces(cb - 1) if cb - 1 < cs else []))

        items = []
        for c in range(o.pre, 8):
            e = bar_n(c - 3) if c >= 4 else 0
            e = max(e, bar_n(c - o.lead) if c >= o.lead else 0)
            for f in x_items(c) + w_items(c):
                items.append([e, bar_n(c), f])
        if defer:
            for c in range(cs, 8):
                items.append([bar_n(c - 3), 32, w_item(c, 2)])

        def flag_store(level, tags):
            self.stamp(a, 'fw%d' % level)
            a.wait_vm(*tags)
            self.stamp(a, 'fa%d' % level)
            self.dstore(a, 'buffer_store_dword v%d, v%d, %s, 0 offen offset:%d' % (self.vEpoch, self.vFlagW, srd(S_WS), 128 * (2 * level + ch)), 'flag')

        def ep_load(aa):
            aa._put('s_buffer_load_dword s%d, %s, 0%s' % (sE, srd(S_DBG), '' if aa is a else ' glc'))

        def ep_done():
            self.check(a, ep_load, ['s_cmp_lg_u32 s%d, 0' % sE])
            a('s_mov_b32 s%d, s%d' % (sE + 1, sE))
            a('v_mov_b32 v%d, s%d' % (self.vEpoch, sE))
        vIn = self.vG

        def in_load(aa):
            aa('s_lshl_b32 s%d, s%d, 2' % (sT2, sGRP))
            aa._put('s_buffer_load_dword s%d, %s, s%d offset:128%s' % (sIN, srd(S_DBG), sT2, '' if aa is a else ' glc'))

        in_cmp = ['s_cmp_eq_u32 s%d, 1' % sIN]
        pslot = {}
        pfree = list(PSLOT)

        def keys_of(k):
            out = []
            for x in k:
                if x == 'q':
                    out += ['x', 'y']
                elif not (x == '5' and isb):
                    out.append(x)
            return out

        def key_load(aa, x):
            r = pslot[x]
            glc = '' if (aa is a and x in o.soft) else ' glc'
            if x == 'k':
                if aa is not a and o.ksleep:
                    aa('s_sleep %d' % o.ksleep)
                for i in range(2):
                    aa._put('s_buffer_load_dwordx8 s[%d:%d], %s, s%d offset:%d%s' % (KSL[i], KSL[i] + 7, srd(S_WS), sKC, 32 * i, glc))
            elif x == 'G':
                aa._put('s_buffer_load_dword s%d, %s, s%d offset:%d%s' % (r, srd(S_WS), sGF, 12 * 2048 + 5 * 128, glc))
            else:
                off = 128 * 'xy'.index(x) if x in 'xy' else 8 * 2048 + 128 * int(x)
                aa._put('s_buffer_load_dwordx2 s[%d:%d], %s, s%d offset:%d%s' % (r, r + 1, srd(S_WS), sFR, off, glc))

        def key_cmp(x):
            r = pslot[x]
            if x == 'k':
                return ['s_cmp_eq_u64 s[%d:%d], s[%d:%d]' % (b + i, b + i + 1, sE, sE + 1) for b in KSL for i in range(0, 8, 2)]
            if x == 'G':
                return ['s_cmp_eq_u32 s%d, s%d' % (r, sE)]
            return ['s_cmp_eq_u64 s[%d:%d], s[%d:%d]' % (r, r + 1, sE, sE + 1)]

        def poll_issue(k):
            for x in keys_of(k):
                if x not in pslot:
                    if x == 'k':
                        assert len(pfree) == 4
                        pslot[x] = None
                        del pfree[:]
                    elif x == 'G':
                        pslot[x] = sIN
                    else:
                        pslot[x] = pfree.pop(0)
                key_load(a, x)

        def gate_on(k):
            ks = keys_of(k)
            if ks:
                poll_issue([x for x in ks if x not in pslot])

                def load(aa):
                    for x in ks:
                        key_load(aa, x)
                self.check(a, load, sum([key_cmp(x) for x in ks], []))
                for x in ks:
                    r = pslot.pop(x)
                    pfree.extend(PSLOT if x == 'k' else [] if x == 'G' else [r])
            if 'k' in k:
                a.stpool += [28, 30, 32, 34]
            self.stamp(a, 'P' + k[0])

        def kv_init():
            skip = self.newlabel('noinit')
            z, u2, u3 = self.pk, self.pk + 4, self.pk + 5
            a('s_or_b32 s%d, s%d, s%d' % (sT3, sRB, sJ))
            a('s_cbranch_scc1 ' + skip)
            for i in range(4):
                a('v_mov_b32 v%d, 0' % (z + i))
            a('s_mul_i32 s%d, s%d, %d' % (sT2, sGRP, 4 * HSTR))
            a('s_add_u32 s%d, s%d, 0x%x' % (sT2, sT2, KVACC))
            for i in range(4):
                a('buffer_store_dwordx4 %s, v%d, %s, s%d offen offset:%d sc1' % (vr(z, 4), self.vL16, srd(S_WS), sT2, 1024 * i), count=False)
            a('s_add_u32 s%d, s%d, 4096' % (sT2, sT2))
            a('s_mov_b32 exec_hi, 0')
            a('buffer_store_dwordx4 %s, v%d, %s, s%d offen sc1' % (vr(z, 4), self.vL16, srd(S_WS), sT2), count=False)
            a('s_mov_b64 exec, -1')
            a.label(skip)
            a.nop(2)

        def init_pub():
            skip = self.newlabel('nopub')
            a('s_or_b32 s%d, s%d, s%d' % (sT3, sRB, sJ))
            a('s_cbranch_scc1 ' + skip)
            a('v_mov_b32 v%d, 1' % vIn)
            a('s_lshl_b32 s%d, s%d, 2' % (sT2, sGRP))
            a('buffer_store_dword v%d, v%d, %s, s%d offen offset:128 sc1' % (vIn, self.vZero, srd(S_DBG), sT2), count=False)
            a.label(skip)

        def epoch_pub():
            skip = self.newlabel('nopub')
            a('s_or_b32 s%d, s2, s%d' % (sT3, sWV))
            a('s_cbranch_scc1 ' + skip)
            a._put('s_waitcnt lgkmcnt(0)')
            a('s_or_b32 s%d, s%d, 1' % (sE, sE))
            a('s_add_u32 s%d, s%d, 2' % (sE, sE))
            a('v_mov_b32 v%d, s%d' % (vIn, sE))
            a('s_mov_b32 s%d, 0x%x' % (sT3, EOFF))
            a('buffer_store_dword v%d, v%d, %s, 0 offen sc1' % (vIn, self.vZero, srd(S_DBG)), count=False)
            a('buffer_store_dword v%d, v%d, %s, s%d offen sc1' % (vIn, self.vZero, srd(S_WS), sT3), count=False)
            a.label(skip)
            a.lgmax += 1

        def bias_mfma(p):
            def f():
                need('bias')
                need('sel')
                bb, sel = [(0, 2), (0, 0), (2, 0)][p]
                a(MFMA % (vr(acc(p), 16), vr(self.vBias + bb, 4), vr(self.vSel + sel, 4), vr(acc(p), 16)))
            return f

        extra = {n: [] for n in range(33)}
        extra[o.ep_issue].append(lambda: ep_load(a))
        extra[o.ep_check].append(ep_done)
        if isA and isb:
            extra[bar_n(o.pre) + 1].append(init_pub)
        if isA:
            extra[o.ep_check + 1].append(lambda: in_load(a))
        else:
            for p in range(nt):
                extra[o.bias_n + p].append(bias_mfma(p))

        if pubpath:
            epoch_pub()
        if isA and isb:
            kv_init()
        barrier_for(0)
        self.stamp(a, 'first')
        for n in range(PF):
            for grp in reads_for(n):
                for tx in grp:
                    rdemit(tx)
        credit = 0.0
        for n in range(32):
            c, s = divmod(n, 4)
            if s == 0:
                self.stamp(a, 'c%d' % c)
            nn = n + PF
            if nn % 4 == 0 and nn < 32:
                chunk_bar(nn // 4)
            rd = reads_for(nn) if nn < 32 else [[], [], []]
            credit = min(credit + (o.rate if items else o.urate), 3.0)
            np_ = 3 if gate else ntile(n)
            for p in range(np_):
                xf = vr(fbuf(n), 4)
                wf = vr(fbuf(n) + 4 + 4 * p, 4)
                d = vr(acc(p), 16)
                A_, B_ = (xf, wf) if (isA and p < 2) else (wf, xf)
                if 'mf' not in self.no:
                    a(MFMA % (d, A_, B_, '0' if n == 0 else d))
                for tx in rd[p] + (rd[2] if p == np_ - 1 and p < 2 else []):
                    rdemit(tx)
                k = 0
                while k < (1 if p < np_ - 1 else 3):
                    if items:
                        e, dl, f = items[0]
                        must = dl - n <= (len([x for x in items if x[1] == dl]) + 3) // 4
                        if e <= n and (credit >= 1 or must):
                            assert n < dl, (var, role, n, dl)
                            items.pop(0)
                            f()
                            credit -= 1
                            k += 1
                        else:
                            break
                    elif credit >= 1 and n >= o.ustart and u_issue():
                        credit -= 1
                        k += 1
                    else:
                        break
                drain(o.sdr)
            for it in extra[n]:
                it()
        assert not items
        drain(1000)
        self.stamp(a, 'mm1')

        def emit(op):
            if callable(op):
                op()
            elif isinstance(op, list):
                for tx, tg in op:
                    if tx.startswith('buffer_store'):
                        self.dstore(a, tx, tg)
                    else:
                        a(tx, tag=tg)
            elif op.startswith('ds_'):
                a.ds(op)
            else:
                a(op)

        def kvres(hb):
            return self.kvres + 16 * hb

        def kv_write():
            for hb in range(2):
                src = kvres(hb) + 8 * hb
                for q in range(2):
                    a.ds('ds_write_b128 v%d, %s offset:%d' % (self.vMisc, vr(src + 4 * q, 4), hb * 2048 + q * 1024), tag='kvw')

        kad, kaz = self.gw, self.gw + 1

        def kv_reduce():
            ad, az = kad, kaz
            d = self.kvres
            po = [(q - KVP[0]) * 32 for q in KVP]
            for r in range(4):
                a.ds('ds_read2st64_b32 %s, v%d offset0:%d offset1:%d' % (vr(d + 2 * r, 2), ad, po[r], po[r] + 2), tag='kvr')
            for r in range(0, 4, 2):
                a.ds('ds_read2st64_b32 %s, v%d offset0:%d offset1:%d' % (vr(d + 8 + r, 2), az, po[r], po[r + 1]), tag='kvr')
            for q in KVP:
                freep.append((q, 'kvr'))

        def kv_atomics():
            az = kaz
            d = self.kvres
            a('v_pk_add_f32 %s, %s, %s' % (vr(d, 2), vr(d, 2), vr(d + 2, 2)))
            a('v_pk_add_f32 %s, %s, %s' % (vr(d + 4, 2), vr(d + 4, 2), vr(d + 6, 2)))
            a('v_pk_add_f32 %s, %s, %s' % (vr(d + 8, 2), vr(d + 8, 2), vr(d + 10, 2)))
            a('v_pk_add_f32 %s, %s, %s' % (vr(d, 2), vr(d, 2), vr(d + 4, 2)))
            a('v_add_f32 v%d, v%d, v%d' % (d + 8, d + 8, d + 9))
            self.check(a, in_load, in_cmp)
            for k in range(2):
                a('buffer_atomic_add_f32 v%d, v%d, %s, s%d offen offset:%d' % (d + k, az + 1, srd(S_WS), sKVB, k * 256), tag='kva')
            a('buffer_atomic_add_f32 v%d, v%d, %s, s%d offen offset:512' % (d + 8, az + 2, srd(S_WS), sKVB), tag='kva')
            self.stamp(a, 'kva')
            blocks.extend([kvres(1), kvres(0)])

        def kv_count():
            if not isb:
                a('s_lshl_b32 s%d, s%d, 11' % (sT2, sGRP))
                a('s_lshl_b32 s%d, s%d, 2' % (sT0, sRB))
                a('s_add_u32 s%d, s%d, s%d' % (sT2, sT2, sT0))
                a('s_add_u32 s%d, s%d, 0x%x' % (sT2, sT2, CNT))
                a('v_lshlrev_b32 v%d, 7, v1' % t2)
            self.stamp(a, 'fw1')
            a.wait_vm('kva')
            self.stamp(a, 'fa1')
            a('s_barrier')
            if not isb:
                skip = self.newlabel('nokc')
                a('s_cmp_lg_u32 s%d, 0' % sWV)
                a('s_cbranch_scc1 ' + skip)
                a('s_mov_b64 exec, 0xffff')
                a('buffer_store_dword v%d, v%d, %s, s%d offen sc1' % (self.vEpoch, t2, srd(S_WS), sT2), count=False)
                a('s_mov_b64 exec, -1')
                a.label(skip)
            self.stamp(a, 'kc')

        nring = 3
        ring0 = self.ring0
        blocks = [] if isA else [kvres(0), kvres(1)]
        marks = []
        s2 = dict(rd=4 * cs, mm=4 * cs)
        if nt < 3:
            s2 = dict(rd=32, mm=32)

        def rel(b):
            return lambda: blocks.append(b)

        def s2_done():
            assert s2['mm'] == 32, 'stage 2 not finished'
        if isA:
            vmA, vmB = self.et2, self.pk2
            vq = self.phi_ops(acc(0), self.pk) + [rel(acc(0))]
            vq += ['s_mov_b32 exec_lo, 0xffff', 's_mov_b32 exec_hi, 0xffff']
            vq[-2:] = [[(x, None) for x in vq[-2:]] + [('v_cvt_pk_bf16_f32 v%d, v%d, v%d' % (vmA + j, acc(1) + 2 * j, acc(1) + 2 * j + 1), None) for j in range(8)] +
                       [('s_not_b64 exec, exec', None)] + [('v_cvt_pk_bf16_f32 v%d, v%d, v%d' % (vmB + j, acc(1) + 2 * j, acc(1) + 2 * j + 1), None) for j in range(8)] +
                       [('s_mov_b64 exec, -1', None)]]
            for vm, hb in ((vmA, 0), (vmB, 1)):
                for g in range(2):
                    vq.append(MFMA % (vr(kvres(hb), 16), vr(self.pk + 4 * g, 4), vr(vm + 4 * g, 4), '0' if g == 0 else vr(kvres(hb), 16)))
            vq += [rel(acc(1))]
            marks.append(len(vq))
            marks.append(len(vq))
            qpk = self.pk2
            vq += [s2_done] + self.phi_ops(acc(2), qpk) + [rel(acc(2))]
            marks.append(len(vq))
            late = [lambda: flag_store(0, ['st0'])]
            vq += [rel(self.et)]
        else:
            vq = []
            if gate:
                x, e = acc(2), self.vGv
                for w in (8, 4, 2):
                    vq += ['v_pk_add_f32 %s, %s, %s' % (vr(x + k, 2), vr(x + k, 2), vr(x + w + k, 2)) for k in range(0, w, 2)]
                vq += ['v_add_f32 v%d, v%d, v%d' % (x, x, x + 1),
                       'v_mov_b32 v%d, v%d' % (x + 1, x),
                       'v_permlane32_swap_b32 v%d, v%d' % (x, x + 1),
                       'v_add_f32 v%d, v%d, v%d' % (x, x, x + 1),
                       'v_mul_f32 v%d, 0x%x, v%d' % (e, f2u(LOG2E), x),
                       'v_min_f32 v%d, 0x%x, v%d' % (e, f2u(86.0), e),
                       'v_exp_f32 v%d, v%d' % (e, e),
                       [('buffer_store_dword v%d, v%d, %s, 0 offen' % (e, self.vMisc + 1, srd(S_WS)), 'stG')],
                       rel(acc(2))]
                gmark = len(vq)
            for p in range(nt):
                pkb = self.pk2 if p == 1 else self.pk
                if p == 2:
                    vq.append(s2_done)
                vq += self.with_stores(self.gelu_ops(acc(p), pkb, [self.et, self.et2]), pkb, 2 * p + ch, 'st%d' % p)
                vq += [lambda p=p: self.stamp(a, 'st%d' % p), rel(acc(p))]
                marks.append(len(vq))
            late = [lambda p=p: flag_store(p, ['st%d' % p]) for p in range(nt)]
            if nt < 3:
                marks.append(len(vq))
            vq += [rel(self.et), rel(self.et2)]
        def ka_done():
            assert not isA or 'ka' in did
        vq += [ka_done, rel(self.vXr), lambda: self.stamp(a, 'epi')]
        est = dict(i=0, nf=0)

        def epi_to(j, pace=0):
            k = 0
            while est['i'] < min(j, len(vq)):
                emit(vq[est['i']])
                est['i'] += 1
                k += 1
                if pace and k % pace == 0:
                    u_issue()

        def s2buf(n):
            return self.fr + 8 * (n % 6)

        def s2_read(k):
            while k > 0 and s2['rd'] < 32:
                n = s2['rd']
                assert n - s2['mm'] < 5
                for tx in [xread(s2buf(n), n)] + wread(s2buf(n) + 4, n, 2):
                    a.ds(tx, tag='fr')
                s2['rd'] += 1
                k -= 1

        def s2_steps(cnt, k):
            lim = marks[1]
            for _ in range(cnt):
                if s2['mm'] < 32:
                    n = s2['mm']
                    s2_read(n + o.s2pf + 1 - s2['rd'])
                    d = vr(acc(2), 16)
                    a(MFMA % (d, vr(s2buf(n) + 4, 4), vr(s2buf(n), 4), d))
                    s2['mm'] += 1
                    fill()
                epi_to(min(est['i'] + k, lim))

        def acc2(t, rt):
            return self.acc2 + 16 * (rt * 2 + t)

        ringc = [0]

        def u_read_next():
            if ust['nr'] < 2 * NU:
                u_read(ring0 + 8 * (ringc[0] % nring))
                ringc[0] += 1

        ablk = {}

        def act_load(u):
            if u not in order:
                return
            sb, idx = (sAQ if u[0] == 'Q' else sAF), int(u[1])
            ablk[u] = blocks.pop(0)
            if idx:
                a('s_add_u32 s%d, s%d, %d' % (sT1, sb, idx * UNIT))
            if u == 'F5':
                a('s_add_u32 s%d, s%d, s%d' % (sT1, sT1, sO5))
            for g in range(2):
                for rt in range(2):
                    if 'actl' not in self.no:
                        a('buffer_load_dwordx4 %s, v%d, %s, s%d offen offset:%d sc1' % (
                            vr(ablk[u] + 8 * g + 4 * rt, 4), self.vActLd + rt, srd(S_WS), sT1 if idx else sb, 1024 * g), tag=('act', u))

        def g_load():
            a('buffer_load_dword v%d, v%d, %s, 0 offen sc1' % (self.vG, self.vGa, srd(S_WS)), tag='g')

        kvb = []

        def kv_load():
            kvb.append(blocks.pop(0))
            for h in range(2):
                for q in range(2):
                    a('buffer_load_dwordx4 %s, v%d, %s, 0 offen offset:%d sc1' % (vr(kvb[0] + 8 * h + 4 * q, 4), self.vKV, srd(S_WS), h * HSTR + q * QSTR), tag='kv')

        def o_make():
            assert est['i'] == len(vq)
            nd = [blocks.pop(0), blocks.pop(0)]
            for h in range(2):
                b = kvb[0] + 8 * h
                for k in range(4):
                    a('v_cvt_pk_bf16_f32 v%d, v%d, v%d' % (b + k, b + 2 * k, b + 2 * k + 1))
            for h in range(2):
                a(MFMA % (vr(nd[h], 16), vr(kvb[0] + 8 * h, 4), vr(qpk + 4 * h, 4), '0'))
            for h in range(2):
                b = nd[h]
                den = b + 8
                a('v_add_f32 v%d, 0x%x, v%d' % (den, f2u(1e-6), den))
                a('v_rcp_f32 v%d, v%d' % (den, den))
                a('v_mul_f32 v%d, v%d, v%d' % (den, den, self.vGv))
                a('v_mov_b32 v%d, v%d' % (den + 1, den))
                for k in range(0, 8, 2):
                    a('v_pk_mul_f32 %s, %s, %s' % (vr(b + k, 2), vr(b + k, 2), vr(den, 2)))
                ob = self.et2 + 4 * h
                for k in range(4):
                    a('v_cvt_pk_bf16_f32 v%d, v%d, v%d' % (ob + k, b + 2 * k, b + 2 * k + 1))
                emit(self.st_op(ob, ch, h, 'st0'))
            blocks.extend(nd + kvb + [self.et2])
            self.stamp(a, 'st0')

        def fill():
            u_issue()

        def f_unit(u):
            if u not in order:
                return
            m = order.index(u)
            assert m == ust.get('cons', 0) and est['i'] == len(vq)
            ust['cons'] = m + 1
            for g in range(2):
                h = 2 * m + g
                while ust['nr'] <= min(h + o.upf, 2 * NU - 1) and 2 * ust['nr'] + 1 < ust['ni'] or ust['nr'] <= h:
                    while 2 * ust['nr'] + 1 >= ust['ni']:
                        assert u_issue()
                    u_read_next()
                for rt in range(2):
                    for t in range(2):
                        dd = vr(acc2(t, rt), 16)
                        a(MFMA % (dd, vr(ufr[h] + 4 * t, 4), vr(ablk[u] + 8 * g + 4 * rt, 4), '0' if h == 0 else dd))
                        fill()
            blocks.append(ablk[u])

        did = set()
        V = 'A' if isA else 'F'
        for tok in (getattr(o, 'head' + V + role) + ' ' + (getattr(o, 'script' + V + role) or getattr(o, 'script' + V))).split():
            if tok == 'f':
                if late:
                    assert ('o' in did) if isA else est['i'] >= marks[est['nf']]
                    est['nf'] += 1
                    late.pop(0)()
            elif tok == 'fG':
                if gate:
                    assert est['i'] >= gmark
                    flag_store(2, ['stG'])
                did.add(tok)
            elif tok == 'B8':
                a.wait_both([('w2',)], ['fr', 'kvw'])
                a('s_barrier')
                free_pieces(early_pieces(7) + (late_pieces(7) if cs > 7 else []))
                a.stpool += [40, 42] + ([] if isA else [28, 30, 32, 34])
                if 'kw' in did:
                    did.add('kwb')
                did.add(tok)
                self.stamp(a, tok)
            elif tok == 'B9':
                assert s2['rd'] == 32 and 'B8' in did
                if cs < 8:
                    a.wait_lg('fr', 'kvw')
                    a('s_barrier')
                    if 'kw' in did:
                        did.add('kwb')
                for c in range(cs, 8):
                    free_pieces(late_pieces(c))
                did.add(tok)
                self.stamp(a, tok)
            elif tok[0] == 'e':
                tk, pace = (tok.split('/') + ['0'])[:2]
                epi_to(len(vq) if tk == 'e' else est['i'] + int(tk[2:]) if tk[1] == '+' else marks[int(tk[1:])], int(pace))
            elif tok[0] == 'm':
                assert 'B8' in did or not defer
                cnt, k = tok[1:].split(':')
                s2_steps(int(cnt), int(k))
            elif tok[0] == 'R':
                assert 'B8' in did or not defer
                s2_read(int(tok[1:]))
            elif tok in ('kw', 'kr', 'ka', 'kc'):
                assert est['i'] >= marks[0] and (tok == 'kw' or 'kwb' in did)
                {'kw': kv_write, 'kr': kv_reduce, 'ka': kv_atomics, 'kc': kv_count}[tok]()
                did.add(tok)
            elif tok == 'o':
                o_make()
                did.add(tok)
            elif tok[0] == 'p':
                assert 'B8' in did
                poll_issue(tok[1:])
            elif tok[0] == 'u':
                for _ in range(int(tok[1:] or 1)):
                    u_issue()
            elif tok == 'U':
                while u_issue():
                    pass
            elif tok[0] == 's':
                a('s_setprio %s' % tok[1:])
            elif tok == 'r':
                if 2 * ust['nr'] + 1 < ust['ni'] and ust['nr'] < 2 * ust.get('cons', 0) + nring:
                    u_read_next()
            elif tok[0] == 'g':
                gate_on(tok[1:])
            elif tok[0] == 'l':
                k = tok[1:]
                if k == 'g':
                    g_load()
                elif k == 'k':
                    kv_load()
                elif k == 'G':
                    a('buffer_load_dword v%d, v%d, %s, 0 offen sc1' % (self.vGv, self.vMisc + 1, srd(S_WS)), tag='g')
                else:
                    act_load(k)
            elif tok[0] == 't':
                self.stamp(a, tok)
            elif tok == 'w':
                a.wait_all(lg=False)
            elif tok[0] in 'FQ':
                f_unit(tok)
                self.stamp(a, tok)
            else:
                raise ValueError(tok)
        assert not late and ust['nr'] == 2 * NU and 'B9' in did and (not isA or 'kc' in did) and (not gate or 'fG' in did)
        self.stamp(a, 'mm')
        if o.wb and not isb:
            L = self.newlabel('wb')
            a('s_cmp_lt_u32 s%d, %d' % (sIDX, o.wb))
            a('s_cselect_b32 s%d, s%d, 1' % (sT0, sWV))
            a('s_cmp_lg_u32 s%d, 0' % sT0)
            a('s_cbranch_scc1 ' + L)
            a._put('buffer_wbl2 sc1')
            a.label(L)
        rho = ch

        def kidx(n, hh):
            return max(2 * n + hh - 1, 0)
        a('v_add_u32 v%d, s%d, v%d' % (t2, sP, self.vL16))
        a('v_add_u32 v%d, 0x10000, v%d' % (t3, t2))
        a.wait_all(vm=False)
        for n in (1, 0, 2, 3):
            for hh in range(2):
                if n == 0 and hh == rho:
                    continue
                k = kidx(n, hh)
                for q in range(2):
                    a.ds('ds_write_b128 v%d, %s offset:%d' % (t3 if k >= 4 else t2, vr(self.acc2 + 16 * n + 8 * hh + 4 * q, 4), ((2 * k + q) & 7) * 8192), tag='red')
        a('s_lshl_b32 s%d, s%d, 10' % (sT0, sJ))
        a('v_add_u32 v%d, s%d, v%d' % (t2, sT0, self.vL16))
        for n in range(4):
            a('v_xor_b32 v%d, 0x%x, v%d' % (self.vUr + n, kidx(n, rho) * 16384 + n * 1024, t2))
        a('s_lshl_b32 s%d, s%d, 1' % (sT0, sRT))
        a('s_lshr_b32 s%d, s%d, 1' % (sT1, sJ))
        a('s_add_u32 s%d, s%d, s%d' % (sT0, sT0, sT1))
        a('s_lshl_b32 s%d, s%d, 15' % (sT0, sT0))
        a('s_lshl_b32 s%d, s%d, 7' % (sT1, sCT))
        a('s_add_u32 s%d, s%d, s%d' % (sT0, sT0, sT1))
        a('s_and_b32 s%d, s%d, 1' % (sT1, sJ))
        a('s_lshl_b32 s%d, s%d, 6' % (sT1, sT1))
        a('s_add_u32 s%d, s%d, s%d' % (sT0, sT0, sT1))
        a('v_lshrrev_b32 v%d, 5, v1' % t3)
        a('v_lshlrev_b32 v%d, 4, v%d' % (t3, t3))
        a('v_and_b32 v%d, 31, v1' % t1)
        a('v_lshl_add_u32 v%d, v%d, 10, v%d' % (t3, t1, t3))
        a('v_add_f32 v%d, 1.0, v%d' % (self.vG, self.vG))
        a('v_rcp_f32 v%d, v%d' % (self.vG, self.vG))
        own = self.acc2 + 8 * rho
        ob = 164
        for k in range(4):
            a('v_lshlrev_b32 v%d, 16, v%d' % (ob + 2 * k, self.vB2 + k))
            a('v_and_b32 v%d, 0xffff0000, v%d' % (ob + 2 * k + 1, self.vB2 + k))
        for k in range(0, 8, 2):
            a('v_pk_add_f32 %s, %s, %s' % (vr(own + k, 2), vr(own + k, 2), vr(ob + k, 2)))
        a('v_mov_b32 v%d, v%d' % (self.vG + 1, self.vG))
        a.wait_lg('red')
        self.stamp(a, 'wr')
        a('s_barrier')
        self.stamp(a, 'bar')
        rb_ = 100
        srcs = [(rs, n) for rs in range(2) for n in range(4) if not (rs == rho and n == 0)]
        for q in range(2):
            for i, (rs, n) in enumerate(srcs):
                a.ds('ds_read_b128 %s, v%d offset:%d' % (vr(rb_ + 8 * i + 4 * q, 4), self.vUr + n, rs * 4096 + q * 8192))
        for q in range(2):
            for i in range(7):
                for k in range(4 * q, 4 * q + 4, 2):
                    a('v_pk_add_f32 %s, %s, %s' % (vr(own + k, 2), vr(own + k, 2), vr(rb_ + 8 * i + k, 2)))
            for k in range(4 * q, 4 * q + 4, 2):
                a('v_pk_mul_f32 %s, %s, %s' % (vr(own + k, 2), vr(own + k, 2), vr(self.vG, 2)))
            for k in range(2 * q, 2 * q + 2):
                a('v_cvt_pk_bf16_f32 v%d, v%d, v%d' % (ob + k, own + 2 * k, own + 2 * k + 1))
        a('v_permlane32_swap_b32 v%d, v%d' % (ob, ob + 2))
        a('v_permlane32_swap_b32 v%d, v%d' % (ob + 1, ob + 3))
        a('buffer_store_dwordx4 %s, v%d, %s, s%d offen offset:%d%s' % (vr(ob, 4), t3, srd(S_OUT), sT0, 32 * rho, o.outpol))
        if o.diag:
            self.stamp(a, 'end')
            a._put('s_memrealtime s[86:87]')
            a.force_wait('lgkmcnt(0)')
            names = o.stamps.split(',')
            a('v_mov_b32 v%d, 0' % self.vStamp)
            for nm, r in a.stampn:
                a('s_sub_u32 s%d, s%d, s100' % (r, r))
                a('v_writelane_b32 v%d, s%d, %d' % (self.vStamp, r, names.index(nm)))
            a('v_writelane_b32 v%d, s%d, 26' % (self.vStamp, sRC))
            a('v_writelane_b32 v%d, s86, 31' % self.vStamp)
            a('v_writelane_b32 v%d, s98, 29' % self.vStamp)
            a('s_mov_b32 s%d, %d' % (sT0, 'FGA'.index(var) * 2 + ch))
            a('v_writelane_b32 v%d, s%d, 30' % (self.vStamp, sT0))
            a('s_getreg_b32 s%d, hwreg(HW_REG_XCC_ID)' % sT0)
            a('v_writelane_b32 v%d, s%d, 28' % (self.vStamp, sT0))
            a('s_lshl_b32 s%d, s2, 3' % sT0)
            a('s_add_u32 s%d, s%d, s%d' % (sT0, sT0, sWV))
            a('s_lshl_b32 s%d, s%d, 7' % (sT0, sT0))
            a('s_add_u32 s%d, s%d, 0x%x' % (sT0, sT0, STAMP))
            a('v_lshlrev_b32 v%d, 2, v1' % t2)
            a('v_cmp_gt_u32 vcc, 32, v1')
            a('v_mov_b32 v%d, 0x40000000' % t3)
            a('v_cndmask_b32 v%d, v%d, v%d, vcc' % (t2, t3, t2))
            a('buffer_store_dword v%d, v%d, %s, s%d offen' % (self.vStamp, t2, srd(S_WS), sT0))
            self.stampnames = names
        a('s_endpgm')
        for l in self.ool:
            a.raw(l)
        self.ool = []
        if o.verbose:
            print(var + role, 'insts', a.ninst, 'nop states', a.nnop, a.stats)

    def build(self):
        self.prologue()
        for pth in ['Fa', 'Aa', 'Ab', 'Fb', 'Gb']:
            self.path(pth[0], pth[1])
        self.a.label('L_end')
        self.a.raw('    s_endpgm')
        ref = open('cdna_kernels/%s.s.ref' % NAME).read().split('\n')
        head = [l for l in ref if l.startswith(';') and '@launch' not in l]
        out = '\n'.join(head) + '\n; generated by tools/gen4.py\n'
        out += '; @launch grid=(256,1,1) block=(512,1,1) lds=163840\n'
        out += '.amdgcn_target "amdgcn-amd-amdhsa--gfx950"\n.text\n.globl %s_kernel\n.p2align 8\n.type %s_kernel,@function\n' % (NAME, NAME)
        out += self.a.text()
        out += '''.section .rodata,"a"
.p2align 6
.amdhsa_kernel %s_kernel
  .amdhsa_next_free_vgpr 256
  .amdhsa_next_free_sgpr 102
  .amdhsa_accum_offset 256
  .amdhsa_group_segment_fixed_size 0
  .amdhsa_kernarg_size 96
  .amdhsa_user_sgpr_count 2
  .amdhsa_user_sgpr_kernarg_segment_ptr 1
  .amdhsa_system_sgpr_workgroup_id_x 1
.end_amdhsa_kernel
''' % NAME
        return out


def parse(argv=None):
    ap = argparse.ArgumentParser()
    ap.add_argument('-o', default='cdna_kernels/%s.s' % NAME)
    ap.add_argument('--diag', action='store_true')
    ap.add_argument('--verbose', action='store_true')
    ap.add_argument('--pre', type=int, default=2)
    ap.add_argument('--lead', type=int, default=3)
    ap.add_argument('--rate', type=float, default=1.5)
    ap.add_argument('--urate', type=float, default=1.25)
    ap.add_argument('--ustart', type=int, default=0)
    ap.add_argument('--csA', type=int, default=4)
    ap.add_argument('--csF', type=int, default=8)
    ap.add_argument('--dlA', type=int, default=1)
    ap.add_argument('--dlF', type=int, default=0)
    ap.add_argument('--sd0a', type=int, default=30)
    ap.add_argument('--sd0b', type=int, default=0)
    ap.add_argument('--sd1', type=int, default=20)
    ap.add_argument('--sdr', type=int, default=2)
    ap.add_argument('--bias_n', type=int, default=17)
    ap.add_argument('--ep_issue', type=int, default=14)
    ap.add_argument('--ep_check', type=int, default=17)
    ap.add_argument('--s2pf', type=int, default=2)
    ap.add_argument('--upf', type=int, default=2)
    ap.add_argument('--order', default='F0,F2,F4,F1,F3,F5,Q0,Q1')
    ap.add_argument('--scriptF', default='g02 f lF0 lF2 g4 lF4 p1 F0 g1 lF1 p3 F2 g3 lF3 p5 F4 g5 lF5 F1 pq F3 gq lQ0 lQ1 lg F5 Q0 Q1')
    ap.add_argument('--scriptA', default='g024 f lF0 lF2 lF4 p1 F0 g1 lF1 p3 F2 g3 lF3 p5 F4 g5 lF5 F1 pq F3 gq lQ0 lQ1 lg F5 Q0 Q1')
    for v in ('Fa', 'Fb', 'Aa', 'Ab'):
        ap.add_argument('--script' + v, default='')
    ap.add_argument('--headFa', default='e+30 B8 B9 e0/16 e+50/16 f r r r e1/16 e+50/16 f e/16')
    ap.add_argument('--headFb', default='e+18 B8 B9 U e+40 fG r r r e0/12 e+50/12 f e1/12 e+50 f e')
    ap.add_argument('--headAa', default='e+30 B8 m16:3 e0 kw B9 kr u2 ka e/8 kc u6 gkG lk lG u4 o')
    ap.add_argument('--headAb', default='e+30 B8 m16:3 e0 kw B9 kr u2 ka e/8 kc u6 gkG lk lG u4 o')
    ap.add_argument('--outpol', default='')
    ap.add_argument('--spin', type=int, default=20000)
    ap.add_argument('--sleep', type=int, default=1)
    ap.add_argument('--stamps', default='mm1,B8,B9,epi,kc,Pk,st0,fa0,P0,P4,P1,P3,P5,Pq,mm,end')
    ap.add_argument('--no', default='')
    ap.add_argument('--loc', type=int, default=0)
    ap.add_argument('--spol', default=' sc1')
    ap.add_argument('--dual', type=int, default=0)
    ap.add_argument('--wb', type=int, default=0)
    ap.add_argument('--soft', default='')
    ap.add_argument('--ksleep', type=int, default=0)
    ap.add_argument('--dotp', type=int, default=0)
    return ap.parse_args(argv)


if __name__ == '__main__':
    o = parse()
    g = Gen(o)
    txt = g.build()
    open(o.o, 'w').write(txt)
    if o.diag:
        print('stamps:', g.stampnames)
        open(o.o[:-2] + '.stamps', 'w').write(' '.join(g.stampnames))
    print('wrote', o.o, len(txt), 'bytes')
```

```python
import sys, os, struct, argparse
sys.path.insert(0, os.path.dirname(os.path.abspath(__file__)))
from asmlib import Asm

NAME = "gated_mix__linear_attn_block__dense_activation_gelu__prompt"

UNIT = 131072
KVACC = 0x780000
HSTR, QSTR = 1152, 576
CNT = 0x78A000
GOFF = 0x790000
STAMP = 0x7C0000
FLAG = 0x800000
EOFF = 0x900000
WS_SIZE = 0x900080
OOB = 0x40000000

W_BASE = 65536
XS, WSL = 16384, 24576
KVP = [8, 9, 11, 12]
NCNT = 32


def f2u(x):
    return struct.unpack('<I', struct.pack('<f', x))[0]


LOG2E = 1.4426950408889634
GC0 = -2.0 * 0.7978845608028654 * LOG2E
GC1 = GC0 * 0.044715

S_X, S_WA, S_WS, S_U, S_OUT, S_DBG, S_M1, S_M2, S_U2, S_WF = 4, 8, 12, 16, 20, 24, 28, 32, 36, 40
sWV, sJ, sRB, sCG, sGRP, sRT, sCT, sP, sXQ, sWQ = range(64, 74)
sT0, sT1, sT2, sT3, sT4 = range(74, 79)
sD0, sD1, sD2 = 79, 80, 81
sC1, sONE = 82, 84
sUST, sUF, sUQ, sAF, sAQ, sO5 = range(86, 92)
sXCD, sIDX = 92, 93
sE, sFR, sRC = 94, 96, 97
sKVB = sT4
sCOL = 3
sSPIN, sIN = 0, 1
sGF, sKC = sONE, sONE + 1
PSLOT = [4, 6, 8, 10]
KSL = [4, 28]


def srd(n):
    return 's[%d:%d]' % (n, n + 3)


def vr(b, n):
    return 'v[%d:%d]' % (b, b + n - 1)


MFMA = 'v_mfma_f32_32x32x16_bf16 %s, %s, %s, %s'


class Gen:
    def __init__(self, opt):
        self.o = opt
        self.a = Asm()
        self.lbl = 0
        self.no = set(opt.no.split(','))
        self.vL16, self.vStamp, self.vUd = 2, 3, 4
        self.vUr = 5
        self.vActLd = 11
        self.vFlagW, self.vEpoch = 13, 17
        self.vG = 18
        self.vTmp = 20
        self.vB2 = 24
        self.vActSt = 28
        self.vGa = 29
        self.vGv = 30
        self.vKV = 32
        self.vZero = 33
        self.vMisc = 34
        self.acc2 = 36
        self.fr = 36
        self.vBias = 84
        self.vSel = 90
        self.vXd = 96
        self.vWd = 98
        self.acc = 100
        self.et = 148
        self.pk = 156
        self.et2 = 164
        self.pk2 = 172
        self.vXr = 180
        self.vWr = 184
        self.vC0 = 186
        self.gw = 188
        self.kvres = 196
        self.ring0 = 228
        self.ool = []

    def newlabel(self, s):
        self.lbl += 1
        return 'L%s_%d' % (s, self.lbl)

    def stamp(self, a, name):
        if not self.o.diag or name not in self.o.stamps.split(','):
            return
        r = a.stpool.pop(0)
        a.stampn.append((name, r))
        a._put('s_memtime s[%d:%d]' % (r, r + 1))

    def dstore(self, a, text, tag):
        if not self.o.dual:
            a(text + self.o.spol, tag=tag)
            return
        L = self.newlabel('ds')
        a('s_cmp_lg_u32 s%d, 0' % sMODE)
        a(text, tag=tag)
        st = a.lines.pop()
        a._put('s_cbranch_scc1 %ss' % L)
        a.lines.append(st)
        a.label(L + 'b')
        self.ool += [L + 's:', '    ' + text + ' sc1', '    s_branch %sb' % L]

    def prologue(self):
        a, o = self.a, self.o
        a.label(NAME + '_kernel')
        a('s_cmp_ge_u32 s2, 256')
        a('s_cbranch_scc1 L_end')
        for d, off in ((S_X, 0), (S_WA, 8), (S_WF, 32), (S_WS, 88)):
            a._put('s_load_dwordx2 s[%d:%d], s[0:1], %d' % (d, d + 1, off))
        if o.diag:
            a._put('s_memtime s[100:101]')
            a._put('s_memrealtime s[98:99]')
        a('v_lshrrev_b32 v1, 6, v0')
        a('s_and_b32 s%d, s2, 7' % sXCD)
        a('v_readfirstlane_b32 s%d, v1' % sWV)
        a('s_lshr_b32 s%d, s2, 3' % sIDX)
        a('v_and_b32 v1, 63, v0')
        if o.loc:
            a('s_lshl_b32 s%d, s%d, 1' % (sRB, sXCD))
            a('s_and_b32 s%d, s%d, 1' % (sT2, sIDX))
            a('s_add_u32 s%d, s%d, s%d' % (sRB, sRB, sT2))
            a('s_lshr_b32 s%d, s%d, 1' % (sCG, sIDX))
        else:
            a('s_and_b32 s%d, s%d, 1' % (sRB, sXCD))
            a('s_lshl_b32 s%d, s%d, 3' % (sRB, sRB))
            a('s_and_b32 s%d, s%d, 7' % (sT2, sIDX))
            a('s_add_u32 s%d, s%d, s%d' % (sRB, sRB, sT2))
            a('s_lshr_b32 s%d, s%d, 1' % (sCG, sXCD))
            if o.swap:
                a('s_xor_b32 s%d, s%d, %d' % (sCG, sCG, o.swap))
            a('s_lshl_b32 s%d, s%d, 2' % (sCG, sCG))
            a('s_lshr_b32 s%d, s%d, 3' % (sT2, sIDX))
            a('s_add_u32 s%d, s%d, s%d' % (sCG, sCG, sT2))
        a('s_and_b32 s%d, s%d, 7' % (sGRP, sCG))
        a('s_cmp_lt_u32 s%d, 4' % sWV)
        a('s_cbranch_scc1 L_rolea')
        a('s_cmp_lt_u32 s%d, 8' % sCG)
        a('s_cbranch_scc1 L_pathAb')
        a('s_cmp_lt_u32 s%d, 11' % sCG)
        a('s_cbranch_scc1 L_pathFb')
        a('s_branch L_pathGb')
        a.label('L_rolea')
        a('s_cmp_lt_u32 s%d, 8' % sCG)
        a('s_cbranch_scc1 L_pathAa')

    @staticmethod
    def fstart(dst, g, tmp):
        return ['s_mul_i32 s%d, s%d, 5' % (dst, g), 's_min_u32 s%d, s%d, 3' % (tmp, g), 's_add_u32 s%d, s%d, s%d' % (dst, dst, tmp)]

    def gelu_ops(self, accb, pkb, ets):
        ops = []
        if 'epi' in self.no:
            return ops
        for q in range(0, 16, 8):
            et = ets[q // 8]
            xs = [accb + q + 2 * i for i in range(4)]
            ts = [et + 2 * i for i in range(4)]
            for x, t in zip(xs, ts):
                ops.append('v_pk_mul_f32 %s, %s, %s' % (vr(t, 2), vr(x, 2), vr(x, 2)))
            for x, t in zip(xs, ts):
                ops.append('v_pk_fma_f32 %s, %s, s[%d:%d], %s' % (vr(t, 2), vr(t, 2), sC1, sC1 + 1, vr(self.vC0, 2)))
            for x, t in zip(xs, ts):
                ops.append('v_pk_mul_f32 %s, %s, %s' % (vr(t, 2), vr(t, 2), vr(x, 2)))
            for i in range(8):
                ops.append('v_exp_f32 v%d, v%d' % (et + i, et + i))
            for t in ts:
                ops.append('v_pk_add_f32 %s, %s, s[%d:%d]' % (vr(t, 2), vr(t, 2), sONE, sONE + 1))
            for i in range(8):
                ops.append('v_rcp_f32 v%d, v%d' % (et + i, et + i))
            for x, t in zip(xs, ts):
                ops.append('v_pk_mul_f32 %s, %s, %s' % (vr(t, 2), vr(t, 2), vr(x, 2)))
            for j, t in enumerate(ts):
                ops.append('v_cvt_pk_bf16_f32 v%d, v%d, v%d' % (pkb + q // 2 + j, t, t + 1))
        return ops

    def phi_ops(self, accb, pkb):
        et = self.et
        ops = []
        if 'epi' in self.no:
            return ops
        for q in range(0, 16, 8):
            ops += ['v_pk_mul_f32 %s, %s, s[%d:%d]' % (vr(et + i, 2), vr(accb + q + i, 2), sC1, sC1 + 1) for i in range(0, 8, 2)]
            ops += ['v_exp_f32 v%d, v%d clamp' % (et + i, et + i) for i in range(8)]
            ops += ['v_max_f32 v%d, 0x%x, v%d' % (accb + q + i, f2u(1e-6), accb + q + i) for i in range(8)]
            ops += ['v_pk_add_f32 %s, %s, %s' % (vr(et + i, 2), vr(et + i, 2), vr(accb + q + i, 2)) for i in range(0, 8, 2)]
            ops += ['v_cvt_pk_bf16_f32 v%d, v%d, v%d' % (pkb + q // 2 + j, et + 2 * j, et + 2 * j + 1) for j in range(4)]
        return ops

    def st_op(self, pkb, unit_rel, g, tag):
        return [('s_add_u32 s%d, s%d, %d' % (sT2, sUST, unit_rel * UNIT), None),
                ('buffer_store_dwordx4 %s, v%d, %s, s%d offen offset:%d' % (vr(pkb, 4), self.vActSt, srd(S_WS), sT2, 1024 * g), tag)]

    def with_stores(self, ops, pkb, unit_rel, tag):
        if 'st' in self.no:
            return ops
        st = [self.st_op(pkb + 4 * g, unit_rel, g, tag) for g in range(2)]
        out = []
        done = False
        for i, op in enumerate(ops):
            out.append(op)
            if not done and i >= 2 and ops[i - 2].startswith('v_cvt_pk_bf16_f32 v%d,' % (pkb + 3)):
                out.append(st[0])
                done = True
        if not done:
            out.append(st[0])
        out.append(st[1])
        return out

    def check(self, a, load, cmps):
        ok = self.newlabel('ok')
        rt = self.newlabel('retry')
        a.force_wait('lgkmcnt(0)')
        for c in cmps:
            a(c)
            a('s_cbranch_scc0 ' + rt + 'i')
        a.label(ok)
        s = a.fork()
        s.lines = []
        s.label(rt + 'i')
        s('s_mov_b32 s%d, %d' % (sSPIN, self.o.spin))
        s.label(rt)
        if self.o.diag:
            a.nchk = getattr(a, 'nchk', 0) + 1
            s('s_add_u32 s%d, s%d, %d' % (sRC, sRC, 1 << (3 * (a.nchk - 1))))
        s('s_sub_u32 s%d, s%d, 1' % (sSPIN, sSPIN))
        s('s_cbranch_scc1 ' + ok)
        if self.o.sleep:
            s('s_sleep %d' % self.o.sleep)
        load(s)
        s.force_wait('lgkmcnt(0)')
        for c in cmps:
            s(c)
            s('s_cbranch_scc0 ' + rt)
        s('s_branch ' + ok)
        self.ool += s.lines

    def path(self, var, role):
        o = self.o
        a = self.a.fork()
        a.stampn = []
        a.stpool = list(range(44, 64, 2))
        a.label('L_path' + var + role)
        a.lgmax = 12 if o.diag else 15
        isA = var == 'A'
        isb = role == 'b'
        ch = 1 if isb else 0
        gate = var == 'G'
        nt = 2 if gate else 3
        S_B1 = S_WA if gate else S_M1
        stride = 3072 if isA else 2752
        S_W = S_WA if isA else S_WF
        woff = [1024, 2048, 0] if isA else [0, 128, 256]
        cs = o.csA if isA else o.csF
        defer = o.dlA if isA else o.dlF
        xr = o.xr and cs < 8
        assert not xr or cs >= 4
        t0, t1, t2, t3 = [self.vTmp + i for i in range(4)]

        def acc(p):
            return self.acc + 16 * p

        def fin(d, size):
            a('s_mov_b32 s%d, 0x%x' % (d + 2, size))
            a('s_mov_b32 s%d, 0x20000' % (d + 3))

        cur = dict(w=0)

        def x_items(c):
            def f(i):
                def g():
                    if i == 0 and c:
                        a('s_add_u32 m0, s%d, %d' % (sXQ, (c & 3) * XS))
                        a('s_movk_i32 s%d, %d' % (sT0, c * 128))
                    a('buffer_load_dwordx4 v%d, %s, %s offen offset:%d lds' % (self.vXd + i, srd(S_X), ('s%d' % sT0) if c else '0', 1024 * i), tag=('x', c))
                return g
            return [f(0), f(1)]

        def w_item(c, p):
            def g():
                a('s_add_u32 m0, s%d, %d' % (sWQ, (c & 3) * WSL + 8192 * p - woff[p]))
                if c and cur['w'] != c:
                    a('s_mov_b32 s%d, %d' % (sT1, 64 * c * stride))
                    cur['w'] = c
                a('buffer_load_dwordx4 v%d, %s, %s offen offset:%d lds' % (self.vWd + (1 if not isA and p == 2 else 0), srd(S_W), ('s%d' % sT1) if c else '0', woff[p]),
                  tag=('w2',) if (p == 2 and defer and c >= cs) else ('w', c))
            return g

        def w_items(c):
            return [w_item(c, p) for p in range(2 if (defer and c >= cs) else 3)]

        for d, off in ((S_M1, 64 if gate else 40), (S_DBG, 80), (S_U, 48), (S_U2, 16), (S_OUT, 72), (S_M2, 56)):
            a._put('s_load_dwordx2 s[%d:%d], s[0:1], %d' % (d, d + 1, off))
        a('v_lshrrev_b32 v%d, 3, v1' % t0)
        a('v_and_b32 v%d, 7, v1' % t1)
        a('v_lshrrev_b32 v%d, 4, v1' % t2)
        a('v_xor_b32 v%d, v%d, v%d' % (t3, t1, t2))
        a('v_lshlrev_b32 v%d, 4, v%d' % (t3, t3))
        a('v_lshl_add_u32 v%d, v%d, 10, v%d' % (t3, t0, t3))
        a('s_lshl_b32 s%d, s%d, 3' % (sT2, sRB))
        a('s_add_u32 s%d, s%d, s%d' % (sT2, sT2, sWV))
        a('s_lshl_b32 s%d, s%d, 14' % (sT3, sT2))
        a('v_add_u32 v%d, s%d, v%d' % (self.vXd, sT3, t3))
        a('v_xor_b32 v%d, 64, v%d' % (self.vXd + 1, self.vXd))
        a('v_add_u32 v%d, %d, v%d' % (self.vXd + 1, 7168, self.vXd + 1))
        a('v_and_b32 v%d, 1, v%d' % (t2, t2))
        a('v_lshlrev_b32 v%d, 2, v%d' % (t2, t2))
        a('v_xor_b32 v%d, v%d, v%d' % (t1, t1, t2))
        a('v_lshlrev_b32 v%d, 4, v%d' % (t1, t1))
        a('s_lshl_b32 s%d, s%d, 11' % (sXQ, sWV))
        a('s_lshl_b32 s%d, s%d, 10' % (sP, sWV))
        a('s_add_u32 s%d, s%d, %d' % (sWQ, sP, W_BASE))
        a('s_mov_b32 m0, s%d' % sXQ)
        fin(S_X, 2048 * 1024)
        fin(S_W, 512 * stride)
        if isA:
            a('s_lshl_b32 s%d, s%d, 7' % (sCOL, sGRP))
        else:
            for tx in self.fstart(sCOL, sGRP, sT3):
                a(tx)
            a('s_lshl_b32 s%d, s%d, 6' % (sCOL, sCOL))
        a('s_mul_i32 s%d, s%d, %d' % (sT3, sWV, 8 * stride))
        a('s_add_u32 s%d, s%d, s%d' % (sT3, sT3, sCOL))
        a('v_mul_u32_u24 v%d, %d, v%d' % (self.vWd, stride, t0))
        if not isA:
            if var == 'G' or isb:
                a('v_and_b32 v%d, 0x%x, v%d' % (t2, 0x30 if var == 'G' else 0x70, t1))
            else:
                a('s_cmp_lt_u32 s%d, 3' % sGRP)
                a('s_cselect_b32 s%d, 0x70, 0x30' % sT2)
                a('v_and_b32 v%d, s%d, v%d' % (t2, sT2, t1))
            a('v_add3_u32 v%d, v%d, v%d, s%d' % (self.vWd + 1, self.vWd, t2, sT3))
        a('v_add3_u32 v%d, v%d, v%d, s%d' % (self.vWd, self.vWd, t1, sT3))
        a('v_lshl_add_u32 v%d, v%d, 10, v%d' % (self.vUd, t0, t1))
        if gate:
            a('v_and_b32 v%d, 31, v1' % t2)
            a('v_lshlrev_b32 v%d, 5, v%d' % (t2, t2))
            a('v_lshrrev_b32 v%d, 5, v1' % t3)
            a('v_lshl_add_u32 v%d, v%d, 4, v%d' % (t2, t3, t2))
            fin(S_M1, 1024)
        a._put('s_waitcnt lgkmcnt(0)')
        self.stamp(a, 'karg')
        for f in x_items(0) + w_items(0):
            f()
        if gate:
            a('buffer_load_dwordx4 %s, v%d, %s, 0 offen' % (vr(self.gw, 4), t2, srd(S_M1)), tag='g')
            a._put('s_load_dwordx2 s[%d:%d], s[0:1], 40' % (S_B1, S_B1 + 1))
        pubpath = (var + role) == ('Fa' if o.swap & 2 else 'Aa')
        if pubpath:
            skip = self.newlabel('nopub')
            a('s_or_b32 s%d, s2, s%d' % (sT3, sWV))
            a('s_cbranch_scc1 ' + skip)
            a('s_mov_b32 s%d, 0x%x' % (sT3, EOFF))
            a._put('s_load_dword s%d, s[%d:%d], s%d' % (sE, S_WS, S_WS + 1, sT3))
            a.label(skip)
            a.lgmax -= 1
        self.stamp(a, 'd0')
        a('s_and_b32 s%d, s%d, 3' % (sJ, sWV))
        a('v_and_b32 v%d, 31, v1' % t0)
        a('v_lshrrev_b32 v%d, 5, v1' % t1)
        a('v_bfe_u32 v%d, v1, 1, 3' % t2)
        a('v_xor_b32 v%d, v%d, v%d' % (t2, t2, t1))
        a('v_lshlrev_b32 v%d, 4, v%d' % (t2, t2))
        a('v_lshl_add_u32 v%d, v%d, 7, v%d' % (t2, t0, t2))
        a('s_lshl_b32 s%d, s%d, 12' % (sT2, sJ))
        a('v_add_u32 v%d, s%d, v%d' % (self.vXr, sT2, t2))
        for s in range(1, 4):
            a('v_xor_b32 v%d, %d, v%d' % (self.vXr + s, 32 * s, self.vXr))
        a('v_bfe_u32 v%d, v1, 2, 2' % t0)
        a('v_and_b32 v%d, 3, v1' % t2)
        a('v_lshlrev_b32 v%d, 3, v%d' % (t2, t2))
        a('v_bfe_u32 v%d, v1, 4, 1' % t3)
        a('v_lshl_add_u32 v%d, v%d, 5, v%d' % (t2, t3, t2))
        a('v_bfe_u32 v%d, v1, 3, 1' % t3)
        a('v_lshl_add_u32 v%d, v%d, 6, v%d' % (t2, t3, t2))
        a('v_lshl_add_u32 v%d, v%d, 7, v%d' % (t2, t0, t2))
        a('v_lshl_add_u32 v%d, v%d, 10, v%d' % (t3, t1, t2))
        a('v_xor_b32 v%d, 0x%x, v%d' % (self.vWr, W_BASE + 64 * ch, t3))
        a('v_add_u32 v%d, %d, v%d' % (self.vWr + 1, 2 * WSL, self.vWr))
        a('v_lshl_add_u32 v%d, v%d, 9, v%d' % (self.vUr, t1, t2))
        a('v_lshlrev_b32 v%d, 4, v1' % self.vL16)
        a('v_mov_b32 v%d, 0' % self.vZero)
        fin(S_WS, WS_SIZE)
        fin(S_DBG, 256)
        if gate:
            a._put('s_waitcnt lgkmcnt(0)')
        if o.diag:
            a('s_mov_b32 s%d, 0' % sRC)

        dq = []

        def D(name, *ops):
            dq.append((name, list(ops)))
        d0, d1, d2 = sD0, sD1, sD2
        if not isA:
            D('bias', 's_mov_b32 s%d, 0x%x' % (S_B1 + 2, 1376 * 2), 's_mov_b32 s%d, 0x20000' % (S_B1 + 3),
              'v_and_b32 v%d, 31, v1' % t2, 'v_lshlrev_b32 v%d, 1, v%d' % (t2, t2))
            for p in range(nt):
                D('bias', 'buffer_load_ushort v%d, v%d, %s, s%d offen offset:%d' % (self.vBias + 2 * p, t2, srd(S_B1), sCOL, 128 * p + 64 * ch))
            for i in range(6):
                if i != 2:
                    D('sel', 'v_mov_b32 v%d, 0' % (self.vSel + i))
            D('sel', 'v_xor_b32 v%d, 1, v%d' % (t3, t1), 'v_mul_u32_u24 v%d, 0x3f80, v%d' % (self.vSel + 2, t3))
            for i in range(3):
                D('sel', 'v_mov_b32 v%d, 0' % (self.vBias + 2 * i + 1))
        D('u', 's_lshl_b32 s%d, s%d, 2' % (sRT, sXCD), 's_and_b32 s%d, s%d, 3' % (d0, sIDX), 's_add_u32 s%d, s%d, s%d' % (sRT, sRT, d0))
        D('u', 's_lshr_b32 s%d, s%d, 2' % (sCT, sIDX), 's_lshl_b32 s%d, s%d, 7' % (d0, sCT), 'v_add_u32 v%d, s%d, v%d' % (self.vUd, d0, self.vUd))
        D('u', 's_mov_b32 s%d, 0x%x' % (S_U + 2, 1376 * 1024), 's_mov_b32 s%d, 0x20000' % (S_U + 3))
        D('u', 's_mov_b32 s%d, 0x%x' % (S_U2 + 2, 512 * 1024), 's_mov_b32 s%d, 0x20000' % (S_U2 + 3))
        D('u', *(self.fstart(d0, sWV, d1) + ['s_lshl_b32 s%d, s%d, 15' % (sUF, d0), 's_add_u32 s%d, s%d, 16' % (d0, d0), 's_lshl_b32 s%d, s%d, 17' % (sAF, d0)]))
        if not isb:
            D('u', 's_cmp_lt_u32 s%d, 3' % sWV, 's_cselect_b32 s%d, 0, 0x%x' % (sO5, OOB))
        D('u', 's_lshl_b32 s%d, s%d, 16' % (sUQ, sWV), 's_lshl_b32 s%d, s%d, 18' % (sAQ, sWV))
        D('epi', 's_lshl_b32 s%d, s%d, 2' % (d1, sRB), 's_add_u32 s%d, s%d, s%d' % (d1, d1, sJ), 's_lshl_b32 s%d, s%d, 11' % (d0, d1),
          'v_add_u32 v%d, s%d, v%d' % (self.vActSt, d0, self.vL16),
          *([] if not (isA or gate) else
            (['s_lshr_b32 s%d, s%d, 1' % (d0, sGRP), 's_lshl_b32 s%d, s%d, 13' % (d0, d0)] if isA else ['s_lshl_b32 s%d, s%d, 13' % (d0, sGRP)]) +
            ['s_lshl_b32 s%d, s%d, 7' % (d1, d1), 's_add_u32 s%d, s%d, s%d' % (d0, d0, d1),
             's_add_u32 s%d, s%d, 0x%x' % (d0, d0, GOFF + (4 * 8192 if isA else 0)), 'v_and_b32 v%d, 31, v1' % t0,
             'v_lshl_add_u32 v%d, v%d, 2, s%d' % (self.vMisc + 1, t0, d0)]))
        if isA:
            D('epi', 's_lshl_b32 s%d, s%d, 18' % (sUST, sGRP))
            D('epi', 's_mov_b32 s%d, 0x%x' % (sC1, f2u(LOG2E)), 's_mov_b32 s%d, 0x%x' % (sC1 + 1, f2u(LOG2E)))
            D('epi', 's_lshr_b32 s%d, s%d, 1' % (d0, sJ), 's_add_u32 s%d, s%d, s%d' % (d0, d0, sJ), 's_lshl_b32 s%d, s%d, 13' % (d0, d0),
              's_add_u32 s%d, s%d, %d' % (d0, d0, KVP[0] * 8192 + ch * 4096), 'v_add_u32 v%d, s%d, v%d' % (self.vMisc, d0, self.vL16))
            for j in range(8):
                D('epi', 'v_mov_b32 v%d, 0x3f803f80' % (self.et2 + j), 'v_mov_b32 v%d, 0x3f803f80' % (self.pk2 + j))
            ad, az = self.gw, self.gw + 1
            D('epi', 's_bfe_u32 s%d, s%d, 0x10001' % (d0, sWV), 's_lshl_b32 s%d, s%d, 8' % (d0, d0), 's_add_u32 s%d, s%d, s%d' % (d0, d0, sP),
              's_add_u32 s%d, s%d, %d' % (d0, d0, KVP[0] * 8192), 'v_lshl_add_u32 v%d, v1, 2, s%d' % (ad, d0), 's_xor_b32 s%d, s%d, 256' % (d0, d0),
              'v_bfe_u32 v%d, v1, 2, 1' % az, 'v_and_b32 v%d, 3, v1' % (az + 1), 'v_lshlrev_b32 v%d, 2, v%d' % (az + 1, az + 1),
              'v_lshl_add_u32 v%d, v%d, 9, v%d' % (az, az, az + 1), 'v_add_u32 v%d, s%d, v%d' % (az, d0, az))
            D('epi', 'v_cmp_gt_u32 vcc, 8, v1', 'v_lshlrev_b32 v%d, 2, v1' % (az + 1), 'v_mov_b32 v%d, 0x%x' % (az + 2, OOB),
              'v_cndmask_b32 v%d, v%d, v%d, vcc' % (az + 2, az + 2, az + 1))
            D('epi', 's_lshl_b32 s%d, s%d, 3' % (d0, sGRP), 's_add_u32 s%d, s%d, s%d' % (d0, d0, sWV),
              's_mul_i32 s%d, s%d, %d' % (sKVB, d0, QSTR), 's_add_u32 s%d, s%d, 0x%x' % (sKVB, sKVB, KVACC))
            D('epi', 'v_and_b32 v%d, 31, v1' % t0, 'v_lshlrev_b32 v%d, 4, v%d' % (self.vKV, t0), 'v_lshl_add_u32 v%d, v%d, 8, v%d' % (self.vKV, t1, self.vKV))
            D('epi', 'v_lshlrev_b32 v%d, 4, v%d' % (t2, t1), 'v_add_u32 v%d, 512, v%d' % (t2, t2), 'v_cmp_gt_u32 vcc, 16, v%d' % t0,
              's_mul_i32 s%d, s%d, %d' % (d0, sGRP, 4 * HSTR), 's_add_u32 s%d, s%d, 0x%x' % (d0, d0, KVACC + 2 * ch * HSTR),
              'v_cndmask_b32 v%d, v%d, v%d, vcc' % (self.vKV, t2, self.vKV), 'v_add_u32 v%d, s%d, v%d' % (self.vKV, d0, self.vKV))
        else:
            D('epi', 's_lshl_b32 s%d, s%d, 11' % (sUST, sCOL), 's_add_u32 s%d, s%d, %d' % (sUST, sUST, 16 * UNIT))
            D('epi', 's_mov_b32 s%d, 0x%x' % (sC1, f2u(GC1)), 's_mov_b32 s%d, 0x%x' % (sC1 + 1, f2u(GC1)))
            D('epi', 's_mov_b32 s%d, 1.0' % sONE, 's_mov_b32 s%d, 1.0' % (sONE + 1))
            D('epi', 'v_mov_b32 v%d, 0x%x' % (self.vC0, f2u(GC0)), 'v_mov_b32 v%d, 0x%x' % (self.vC0 + 1, f2u(GC0)))
        D('epi', 's_lshl_b32 s%d, s%d, 15' % (d2, sRB), 's_lshr_b32 s%d, s%d, 1' % (d0, sJ), 's_lshl_b32 s%d, s%d, 10' % (d0, d0),
          's_add_u32 s%d, s%d, s%d' % (d2, d2, d0), 's_and_b32 s%d, s%d, 1' % (d0, sJ), 's_lshl_b32 s%d, s%d, 2' % (d0, d0),
          's_add_u32 s%d, s%d, s%d' % (d2, d2, d0), 's_add_u32 s%d, s%d, 0x%x' % (d2, d2, FLAG))
        D('epi', 's_lshl_b32 s%d, s%d, 11' % (d0, sCG), 's_add_u32 s%d, s%d, s%d' % (d0, d0, d2), 'v_mov_b32 v%d, s%d' % (self.vFlagW, d0))
        if isA:
            D('epi', 's_lshr_b32 s%d, s%d, 1' % (d0, sGRP), 's_lshl_b32 s%d, s%d, 11' % (d0, d0), 's_add_u32 s%d, s%d, s%d' % (sGF, d0, d2),
              's_lshl_b32 s%d, s%d, 4' % (sKC, sGRP), 's_add_u32 s%d, s%d, s%d' % (sKC, sKC, sRB), 's_lshl_b32 s%d, s%d, 7' % (sKC, sKC),
              's_add_u32 s%d, s%d, 0x%x' % (sKC, sKC, CNT))
        D('p2', 's_and_b32 s%d, s%d, 1' % (d0, sWV), 's_lshl_b32 s%d, s%d, 6' % (d0, d0), 's_add_u32 s%d, s%d, s%d' % (d0, d0, sP),
          'v_xor_b32 v%d, s%d, v%d' % (self.vUr, d0, self.vUr), 'v_xor_b32 v%d, 64, v%d' % (self.vUr + 1, self.vUr))
        for i in range(2, 6):
            D('p2', 'v_add_u32 v%d, 0x10000, v%d' % (self.vUr + i, self.vUr + i - 2))
        D('p2', 's_mov_b32 s%d, 0x%x' % (S_OUT + 2, 2048 * 1024), 's_mov_b32 s%d, 0x20000' % (S_OUT + 3))
        D('p2', 's_lshl_b32 s%d, s%d, 1' % (d0, sRT), 's_lshr_b32 s%d, s%d, 1' % (d1, sJ), 's_add_u32 s%d, s%d, s%d' % (d0, d0, d1),
          's_lshl_b32 s%d, s%d, 11' % (d1, d0), 'v_add_u32 v%d, s%d, v%d' % (self.vActLd, d1, self.vL16),
          'v_xor_b32 v%d, 2048, v%d' % (self.vActLd + 1, self.vActLd),
          's_lshl_b32 s%d, s%d, 7' % (d0, d0), 's_lshr_b32 s%d, s%d, 1' % (d1, sWV), 's_lshl_b32 s%d, s%d, 13' % (d1, d1),
          's_add_u32 s%d, s%d, s%d' % (d0, d0, d1), 's_add_u32 s%d, s%d, 0x%x' % (d0, d0, GOFF + 4 * 8192), 'v_and_b32 v%d, 31, v1' % t0, 'v_lshl_add_u32 v%d, v%d, 2, s%d' % (self.vGa, t0, d0))
        D('p2', 's_lshr_b32 s%d, s%d, 1' % (d0, sRT), 's_lshl_b32 s%d, s%d, 15' % (d0, d0), 's_and_b32 s%d, s%d, 1' % (d1, sRT),
          's_lshl_b32 s%d, s%d, 10' % (d1, d1), 's_add_u32 s%d, s%d, s%d' % (d0, d0, d1), 's_add_u32 s%d, s%d, 0x%x' % (d0, d0, FLAG),
          's_add_u32 s%d, s%d, s%d' % (sFR, d0, sXQ))
        D('p2', 's_mov_b32 s%d, 0x400' % (S_M2 + 2), 's_mov_b32 s%d, 0x20000' % (S_M2 + 3), 's_lshl_b32 s%d, s%d, 7' % (d0, sCT),
          's_and_b32 s%d, s%d, 1' % (d1, sJ), 's_lshl_b32 s%d, s%d, 6' % (d1, d1), 's_add_u32 s%d, s%d, s%d' % (d0, d0, d1),
          'v_lshlrev_b32 v%d, 3, v%d' % (t2, t1),
          'buffer_load_dwordx2 %s, v%d, %s, s%d offen offset:%d' % (vr(self.vB2, 2), t2, srd(S_M2), d0, 32 * ch),
          'buffer_load_dwordx2 %s, v%d, %s, s%d offen offset:%d' % (vr(self.vB2 + 2, 2), t2, srd(S_M2), d0, 32 * ch + 16))

        def drain(k):
            while dq and k > 0:
                nm, ops = dq.pop(0)
                for tx in ops:
                    a(tx, tag='misc')
                k -= len(ops)

        def need(name):
            while any(nm == name for nm, _ in dq):
                drain(1)

        drain(o.sd0a if not isb else o.sd0b)
        for c in range(1, o.pre):
            for f in x_items(c) + w_items(c):
                f()
            self.stamp(a, 'd%d' % c)
        drain(o.sd1)
        self.stamp(a, 'setup')

        order = [u for u in o.order.split(',') if not (isb and u == 'F5')]
        NU = len(order)
        NP = 4 * NU

        ust = dict(ni=0, nr=0)
        upiece = {}
        freep = []

        def u_issue():
            if ust['ni'] >= NP or not freep:
                return False
            need('u')
            i = ust['ni']
            q, prev = freep.pop(0)
            if prev is not None:
                a.wait_lg(prev)
            upiece[i] = q
            ust['ni'] += 1
            if 'u' in self.no:
                return True
            u = order[i // 4]
            rs, sb = (S_U2, sUQ) if u[0] == 'Q' else (S_U, sUF)
            a('s_add_u32 m0, s%d, %d' % (sP, q * 8192))
            a('s_add_u32 s%d, s%d, %d' % (sT3, sb, (int(u[1]) * 32 + (i % 4) * 8) * 1024))
            if u == 'F5':
                a('s_add_u32 s%d, s%d, s%d' % (sT3, sT3, sO5))
            a('buffer_load_dwordx4 v%d, %s, s%d offen lds' % (self.vUd, srd(rs), sT3), tag=('u', i))
            return True

        ufr = {}

        def u_read(dst):
            h = ust['nr']
            assert 2 * h + 1 < ust['ni'], (var, role, h, ust)
            a.wait_vm(('u', 2 * h), ('u', 2 * h + 1))
            for t in range(2):
                for rd in range(2):
                    win, qq = divmod(upiece[2 * h + rd], 8)
                    a.ds('ds_read_b64_tr_b16 %s, v%d offset:%d' % (vr(dst + 4 * t + 2 * rd, 2), self.vUr + win * 2 + t, qq * 8192), tag=('ur', h))
            for rd in range(2):
                freep.append((upiece[2 * h + rd], ('ur', h)))
            ufr[h] = dst
            ust['nr'] += 1

        def free_pieces(qs):
            for q in qs:
                if not (isA and q in KVP):
                    freep.append((q, None))

        def early_pieces(c):
            s = c & 3
            return [8 + 3 * s, 9 + 3 * s] + ([2 * s, 2 * s + 1] if xr else [])

        def late_pieces(c):
            s = c & 3
            return ([] if xr else [2 * s, 2 * s + 1]) + [10 + 3 * s]

        PF = 2

        def fbuf(n):
            return self.fr + (n % 3) * 16

        def xbuf(n):
            return 192 + 4 * (n - 4 * cs) if (xr and nt == 3 and n >= 4 * cs) else fbuf(n)

        def ntile(n):
            return min(nt, 3 if n // 4 < cs else 2)

        def xread(dst, n):
            c, s = divmod(n, 4)
            return 'ds_read_b128 %s, v%d offset:%d' % (vr(dst, 4), self.vXr + s, (c & 3) * XS)

        def wread(dst, n, p):
            c, s = divmod(n, 4)
            win, sl = divmod(c & 3, 2)
            return ['ds_read_b64_tr_b16 %s, v%d offset:%d' % (vr(dst + 2 * rd, 2), self.vWr + win, sl * WSL + p * 8192 + s * 2048 + rd * 512) for rd in range(2)]

        def reads_for(n):
            out = [[xread(xbuf(n), n)], [], []]
            if gate:
                out[2] = ['s_mov_b32 vcc_lo, 0x%x' % (1 << n), 's_mov_b32 vcc_hi, 0x%x' % (1 << n)]
                out[2] += ['v_cndmask_b32 v%d, 0, v%d, vcc' % (fbuf(n) + 12 + i, self.gw + i) for i in range(4)]
            for p in range(ntile(n)):
                if not ('rd' in self.no or ('rd2' in self.no and p)):
                    out[p] += wread(fbuf(n) + 4 + 4 * p, n, p)
            return out

        def rdemit(tx):
            if tx.startswith('ds_'):
                a.ds(tx, tag='fr')
            else:
                a(tx)

        def barrier_for(c):
            a.wait_both([('w', c), ('x', c)], ['fr'])
            a('s_barrier')

        def bar_n(c):
            return max(0, 4 * c - PF)

        def chunk_bar(cb):
            barrier_for(cb)
            if cb >= 5:
                free_pieces(early_pieces(cb - 1) + (late_pieces(cb - 1) if cb - 1 < cs else []))

        items = []
        for c in range(o.pre, 8):
            e = bar_n(c - 3) if c >= 4 else 0
            e = max(e, bar_n(c - o.lead) if c >= o.lead else 0)
            for f in x_items(c) + w_items(c):
                items.append([e, bar_n(c), f])
        if defer:
            for c in range(cs, 8):
                items.append([bar_n(c - 3), 32, w_item(c, 2)])

        def flag_store(level, tags):
            self.stamp(a, 'fw%d' % level)
            a.wait_vm(*tags)
            self.stamp(a, 'fa%d' % level)
            self.dstore(a, 'buffer_store_dword v%d, v%d, %s, 0 offen offset:%d' % (self.vEpoch, self.vFlagW, srd(S_WS), 128 * (2 * level + ch)), 'flag')

        def ep_load(aa):
            aa._put('s_buffer_load_dword s%d, %s, 0%s' % (sE, srd(S_DBG), '' if aa is a else ' glc'))

        def ep_done():
            self.check(a, ep_load, ['s_cmp_lg_u32 s%d, 0' % sE])
            a('s_mov_b32 s%d, s%d' % (sE + 1, sE))
            a('v_mov_b32 v%d, s%d' % (self.vEpoch, sE))
        vIn = self.vG

        def in_load(aa):
            aa('s_lshl_b32 s%d, s%d, 2' % (sT2, sGRP))
            aa._put('s_buffer_load_dword s%d, %s, s%d offset:128%s' % (sIN, srd(S_DBG), sT2, '' if aa is a else ' glc'))

        in_cmp = ['s_cmp_eq_u32 s%d, 1' % sIN]
        pslot = {}
        pfree = list(PSLOT)

        def keys_of(k):
            out = []
            for x in k:
                if x == 'q':
                    out += ['x', 'y']
                elif not (x == '5' and isb):
                    out.append(x)
            return out

        def key_load(aa, x):
            r = pslot[x]
            glc = '' if (aa is a and x in o.soft) else ' glc'
            if x == 'k':
                if aa is not a and o.ksleep:
                    aa('s_sleep %d' % o.ksleep)
                for i in range(2):
                    aa._put('s_buffer_load_dwordx8 s[%d:%d], %s, s%d offset:%d%s' % (KSL[i], KSL[i] + 7, srd(S_WS), sKC, 32 * i, glc))
            elif x == 'G':
                aa._put('s_buffer_load_dword s%d, %s, s%d offset:%d%s' % (r, srd(S_WS), sGF, 12 * 2048 + 5 * 128, glc))
            else:
                off = 128 * 'xy'.index(x) if x in 'xy' else 8 * 2048 + 128 * int(x)
                aa._put('s_buffer_load_dwordx2 s[%d:%d], %s, s%d offset:%d%s' % (r, r + 1, srd(S_WS), sFR, off, glc))

        def key_cmp(x):
            r = pslot[x]
            if x == 'k':
                return ['s_cmp_eq_u64 s[%d:%d], s[%d:%d]' % (b + i, b + i + 1, sE, sE + 1) for b in KSL for i in range(0, 8, 2)]
            if x == 'G':
                return ['s_cmp_eq_u32 s%d, s%d' % (r, sE)]
            return ['s_cmp_eq_u64 s[%d:%d], s[%d:%d]' % (r, r + 1, sE, sE + 1)]

        def poll_issue(k):
            for x in keys_of(k):
                if x not in pslot:
                    if x == 'k':
                        assert len(pfree) == 4
                        pslot[x] = None
                        del pfree[:]
                    elif x == 'G':
                        pslot[x] = sIN
                    else:
                        pslot[x] = pfree.pop(0)
                key_load(a, x)

        def gate_on(k):
            ks = keys_of(k)
            if ks:
                poll_issue([x for x in ks if x not in pslot])

                def load(aa):
                    for x in ks:
                        key_load(aa, x)
                self.check(a, load, sum([key_cmp(x) for x in ks], []))
                for x in ks:
                    r = pslot.pop(x)
                    pfree.extend(PSLOT if x == 'k' else [] if x == 'G' else [r])
            if 'k' in k:
                a.stpool += [28, 30, 32, 34]
            self.stamp(a, 'P' + k[0])

        def kv_init():
            skip = self.newlabel('noinit')
            z, u2, u3 = self.pk, self.pk + 4, self.pk + 5
            a('s_or_b32 s%d, s%d, s%d' % (sT3, sRB, sJ))
            a('s_cbranch_scc1 ' + skip)
            for i in range(4):
                a('v_mov_b32 v%d, 0' % (z + i))
            a('s_mul_i32 s%d, s%d, %d' % (sT2, sGRP, 4 * HSTR))
            a('s_add_u32 s%d, s%d, 0x%x' % (sT2, sT2, KVACC))
            for i in range(4):
                a('buffer_store_dwordx4 %s, v%d, %s, s%d offen offset:%d sc1' % (vr(z, 4), self.vL16, srd(S_WS), sT2, 1024 * i), count=False)
            a('s_add_u32 s%d, s%d, 4096' % (sT2, sT2))
            a('s_mov_b32 exec_hi, 0')
            a('buffer_store_dwordx4 %s, v%d, %s, s%d offen sc1' % (vr(z, 4), self.vL16, srd(S_WS), sT2), count=False)
            a('s_mov_b64 exec, -1')
            a.label(skip)
            a.nop(2)

        def init_pub():
            skip = self.newlabel('nopub')
            a('s_or_b32 s%d, s%d, s%d' % (sT3, sRB, sJ))
            a('s_cbranch_scc1 ' + skip)
            a('v_mov_b32 v%d, 1' % vIn)
            a('s_lshl_b32 s%d, s%d, 2' % (sT2, sGRP))
            a('buffer_store_dword v%d, v%d, %s, s%d offen offset:128 sc1' % (vIn, self.vZero, srd(S_DBG), sT2), count=False)
            a.label(skip)

        def epoch_pub():
            skip = self.newlabel('nopub')
            a('s_or_b32 s%d, s2, s%d' % (sT3, sWV))
            a('s_cbranch_scc1 ' + skip)
            a._put('s_waitcnt lgkmcnt(0)')
            a('s_or_b32 s%d, s%d, 1' % (sE, sE))
            a('s_add_u32 s%d, s%d, 2' % (sE, sE))
            a('v_mov_b32 v%d, s%d' % (vIn, sE))
            a('s_mov_b32 s%d, 0x%x' % (sT3, EOFF))
            a('buffer_store_dword v%d, v%d, %s, 0 offen sc1' % (vIn, self.vZero, srd(S_DBG)), count=False)
            a('buffer_store_dword v%d, v%d, %s, s%d offen sc1' % (vIn, self.vZero, srd(S_WS), sT3), count=False)
            a.label(skip)
            a.lgmax += 1

        def bias_mfma(p):
            def f():
                need('bias')
                need('sel')
                bb, sel = [(0, 2), (0, 0), (2, 0)][p]
                a(MFMA % (vr(acc(p), 16), vr(self.vBias + bb, 4), vr(self.vSel + sel, 4), vr(acc(p), 16)))
            return f

        extra = {n: [] for n in range(33)}
        def touch():
            need('u')
            a('s_lshl_b32 s%d, s%d, 3' % (sT2, sIDX))
            a('s_add_u32 s%d, s%d, s%d' % (sT2, sT2, sWV))
            a('v_mov_b32 v%d, 0x%x' % (self.vGv, OOB))
            a('v_lshlrev_b32 v%d, 10, v1' % (self.vGv + 1))
            a('v_cmp_gt_u32 vcc, 6, v1')
            a('s_mul_i32 s%d, s%d, 6144' % (sT3, sT2))
            a('v_cndmask_b32 v%d, v%d, v%d, vcc' % (self.vKV if not isA else self.vG + 1, self.vGv, self.vGv + 1))
            a('v_cmp_gt_u32 vcc, 2, v1')
            a('s_lshl_b32 s%d, s%d, 11' % (sT2, sT2))
            a('v_cndmask_b32 v%d, v%d, v%d, vcc' % (self.vGv + 1, self.vGv, self.vGv + 1))
            a('buffer_load_dword v%d, v%d, %s, s%d offen offset:%d' % (self.vGv, self.vKV if not isA else self.vG + 1, srd(S_U), sT3, 128 * o.tstrip), tag='touch')
            a('buffer_load_dword v%d, v%d, %s, s%d offen offset:%d' % (self.vGv + 1, self.vGv + 1, srd(S_U2), sT2, 128 * o.tstrip), tag='touch')
        if o.tn >= 0:
            extra[o.tn].append(touch)
        extra[o.ep_issue].append(lambda: ep_load(a))
        extra[o.ep_check].append(ep_done)
        if isA and isb:
            extra[bar_n(o.pre) + 1].append(init_pub)
        if isA:
            extra[o.ep_check + 1].append(lambda: in_load(a))
        else:
            for p in range(nt):
                extra[o.bias_n + p].append(bias_mfma(p))

        if pubpath:
            epoch_pub()
        if isA and isb:
            kv_init()
        barrier_for(0)
        self.stamp(a, 'first')
        for n in range(PF):
            for grp in reads_for(n):
                for tx in grp:
                    rdemit(tx)
        credit = 0.0
        for n in range(32):
            c, s = divmod(n, 4)
            if s == 0:
                self.stamp(a, 'c%d' % c)
            nn = n + PF
            if nn % 4 == 0 and nn < 32:
                chunk_bar(nn // 4)
            rd = reads_for(nn) if nn < 32 else [[], [], []]
            credit = min(credit + (o.rate if items else o.urate), 3.0)
            np_ = 3 if gate else ntile(n)
            for p in range(np_):
                xf = vr(xbuf(n), 4)
                wf = vr(fbuf(n) + 4 + 4 * p, 4)
                d = vr(acc(p), 16)
                A_, B_ = (xf, wf) if (isA and p < 2) else (wf, xf)
                if 'mf' not in self.no:
                    a(MFMA % (d, A_, B_, '0' if n == 0 else d))
                for tx in rd[p] + (rd[2] if p == np_ - 1 and p < 2 else []):
                    rdemit(tx)
                k = 0
                while k < (1 if p < np_ - 1 else 3):
                    if items:
                        e, dl, f = items[0]
                        must = dl - n <= (len([x for x in items if x[1] == dl]) + 3) // 4
                        if e <= n and (credit >= 1 or must):
                            assert n < dl, (var, role, n, dl)
                            items.pop(0)
                            f()
                            credit -= 1
                            k += 1
                        else:
                            break
                    elif credit >= 1 and n >= o.ustart and u_issue():
                        credit -= 1
                        k += 1
                    else:
                        break
                drain(o.sdr)
            for it in extra[n]:
                it()
        assert not items
        drain(1000)
        self.stamp(a, 'mm1')

        def emit(op):
            if callable(op):
                op()
            elif isinstance(op, list):
                for tx, tg in op:
                    if tx.startswith('buffer_store'):
                        self.dstore(a, tx, tg)
                    else:
                        a(tx, tag=tg)
            elif op.startswith('ds_'):
                a.ds(op)
            else:
                a(op)

        kvres0 = self.fr if xr else self.kvres

        def kvres(hb):
            return kvres0 + 16 * hb

        def kv_write():
            for hb in range(2):
                src = kvres(hb) + 8 * hb
                for q in range(2):
                    a.ds('ds_write_b128 v%d, %s offset:%d' % (self.vMisc, vr(src + 4 * q, 4), hb * 2048 + q * 1024), tag='kvw')

        kad, kaz = self.gw, self.gw + 1

        def kv_reduce():
            ad, az = kad, kaz
            d = kvres0
            po = [(q - KVP[0]) * 32 for q in KVP]
            for r in range(4):
                a.ds('ds_read2st64_b32 %s, v%d offset0:%d offset1:%d' % (vr(d + 2 * r, 2), ad, po[r], po[r] + 2), tag='kvr')
            for r in range(0, 4, 2):
                a.ds('ds_read2st64_b32 %s, v%d offset0:%d offset1:%d' % (vr(d + 8 + r, 2), az, po[r], po[r + 1]), tag='kvr')
            for q in KVP:
                freep.append((q, 'kvr'))

        def kv_atomics():
            az = kaz
            d = kvres0
            a('v_pk_add_f32 %s, %s, %s' % (vr(d, 2), vr(d, 2), vr(d + 2, 2)))
            a('v_pk_add_f32 %s, %s, %s' % (vr(d + 4, 2), vr(d + 4, 2), vr(d + 6, 2)))
            a('v_pk_add_f32 %s, %s, %s' % (vr(d + 8, 2), vr(d + 8, 2), vr(d + 10, 2)))
            a('v_pk_add_f32 %s, %s, %s' % (vr(d, 2), vr(d, 2), vr(d + 4, 2)))
            a('v_add_f32 v%d, v%d, v%d' % (d + 8, d + 8, d + 9))
            self.check(a, in_load, in_cmp)
            for k in range(2):
                a('buffer_atomic_add_f32 v%d, v%d, %s, s%d offen offset:%d' % (d + k, az + 1, srd(S_WS), sKVB, k * 256), tag='kva')
            a('buffer_atomic_add_f32 v%d, v%d, %s, s%d offen offset:512' % (d + 8, az + 2, srd(S_WS), sKVB), tag='kva')
            self.stamp(a, 'kva')
            if not xr:
                blocks.extend([kvres(1), kvres(0)])

        def kv_count(b9=False):
            if not isb:
                a('s_lshl_b32 s%d, s%d, 11' % (sT2, sGRP))
                a('s_lshl_b32 s%d, s%d, 2' % (sT0, sRB))
                a('s_add_u32 s%d, s%d, s%d' % (sT2, sT2, sT0))
                a('s_add_u32 s%d, s%d, 0x%x' % (sT2, sT2, CNT))
                a('v_lshlrev_b32 v%d, 7, v1' % t2)
            self.stamp(a, 'fw1')
            if b9:
                a.wait_both(['kva'], ['fr'])
            else:
                a.wait_vm('kva')
            self.stamp(a, 'fa1')
            a('s_barrier')
            if not isb:
                skip = self.newlabel('nokc')
                a('s_cmp_lg_u32 s%d, 0' % sWV)
                a('s_cbranch_scc1 ' + skip)
                a('s_mov_b64 exec, 0xffff')
                a('buffer_store_dword v%d, v%d, %s, s%d offen sc1' % (self.vEpoch, t2, srd(S_WS), sT2), count=False)
                a('s_mov_b64 exec, -1')
                a.label(skip)
            self.stamp(a, 'kc')

        nring = 3
        ring0 = self.ring0
        blocks = [] if (isA or (xr and nt == 3)) else [self.kvres, self.kvres + 16]
        marks = []
        s2 = dict(rd=4 * cs, mm=4 * cs)
        if nt < 3:
            s2 = dict(rd=32, mm=32)

        def rel(b):
            return lambda: blocks.append(b)

        def s2_done():
            assert s2['mm'] == 32, 'stage 2 not finished'
        if isA:
            vmA, vmB = self.et2, self.pk2
            vq = self.phi_ops(acc(0), self.pk) + [rel(acc(0))]
            vq += ['s_mov_b32 exec_lo, 0xffff', 's_mov_b32 exec_hi, 0xffff']
            vq[-2:] = [[(x, None) for x in vq[-2:]] + [('v_cvt_pk_bf16_f32 v%d, v%d, v%d' % (vmA + j, acc(1) + 2 * j, acc(1) + 2 * j + 1), None) for j in range(8)] +
                       [('s_not_b64 exec, exec', None)] + [('v_cvt_pk_bf16_f32 v%d, v%d, v%d' % (vmB + j, acc(1) + 2 * j, acc(1) + 2 * j + 1), None) for j in range(8)] +
                       [('s_mov_b64 exec, -1', None)]]
            for vm, hb in ((vmA, 0), (vmB, 1)):
                for g in range(2):
                    vq.append(MFMA % (vr(kvres(hb), 16), vr(self.pk + 4 * g, 4), vr(vm + 4 * g, 4), '0' if g == 0 else vr(kvres(hb), 16)))
            vq += [rel(acc(1))]
            marks.append(len(vq))
            marks.append(len(vq))
            qpk = self.pk2
            vq += [s2_done] + self.phi_ops(acc(2), qpk) + [rel(acc(2))]
            marks.append(len(vq))
            late = [lambda: flag_store(0, ['st0'])]
            vq += [rel(self.et)]
        else:
            vq = []
            if gate:
                x, e = acc(2), self.vGv
                for w in (8, 4, 2):
                    vq += ['v_pk_add_f32 %s, %s, %s' % (vr(x + k, 2), vr(x + k, 2), vr(x + w + k, 2)) for k in range(0, w, 2)]
                vq += ['v_add_f32 v%d, v%d, v%d' % (x, x, x + 1),
                       'v_mov_b32 v%d, v%d' % (x + 1, x),
                       'v_permlane32_swap_b32 v%d, v%d' % (x, x + 1),
                       'v_add_f32 v%d, v%d, v%d' % (x, x, x + 1),
                       'v_mul_f32 v%d, 0x%x, v%d' % (e, f2u(LOG2E), x),
                       'v_min_f32 v%d, 0x%x, v%d' % (e, f2u(86.0), e),
                       'v_exp_f32 v%d, v%d' % (e, e),
                       [('buffer_store_dword v%d, v%d, %s, 0 offen' % (e, self.vMisc + 1, srd(S_WS)), 'stG')],
                       rel(acc(2))]
                gmark = len(vq)
            for p in range(nt):
                pkb = self.pk2 if p == 1 else self.pk
                if p == 2:
                    vq.append(s2_done)
                vq += self.with_stores(self.gelu_ops(acc(p), pkb, [self.et, self.et2]), pkb, 2 * p + ch, 'st%d' % p)
                vq += [lambda p=p: self.stamp(a, 'st%d' % p), rel(acc(p))]
                marks.append(len(vq))
            late = [lambda p=p: flag_store(p, ['st%d' % p]) for p in range(nt)]
            if nt < 3:
                marks.append(len(vq))
            vq += [rel(self.et), rel(self.et2)]
        def ka_done():
            assert not isA or 'ka' in did
        vq += [ka_done, rel(self.vXr), lambda: self.stamp(a, 'epi')]
        est = dict(i=0, nf=0)

        def epi_to(j, pace=0):
            k = 0
            while est['i'] < min(j, len(vq)):
                emit(vq[est['i']])
                est['i'] += 1
                k += 1
                if pace and k % pace == 0:
                    u_issue()

        def s2buf(n):
            return (self.fr + 28 + 4 * (n % 4)) if xr else self.fr + 8 * (n % 6)

        def s2_read(k):
            while k > 0 and s2['rd'] < 32:
                n = s2['rd']
                assert n - s2['mm'] < (4 if xr else 5)
                for tx in ([] if xr else [xread(s2buf(n), n)]) + wread(s2buf(n) + 4, n, 2):
                    a.ds(tx, tag='fr')
                s2['rd'] += 1
                k -= 1

        def s2_steps(cnt, k):
            lim = marks[1]
            for _ in range(cnt):
                if s2['mm'] < 32:
                    n = s2['mm']
                    s2_read(n + o.s2pf + 1 - s2['rd'])
                    d = vr(acc(2), 16)
                    a(MFMA % (d, vr(s2buf(n) + 4, 4), vr(xbuf(n) if xr else s2buf(n), 4), d))
                    s2['mm'] += 1
                    if xr and s2['mm'] == 32:
                        blocks.extend([self.kvres, self.kvres + 16])
                    fill()
                epi_to(min(est['i'] + k, lim))

        def acc2(t, rt):
            return self.acc2 + 16 * (rt * 2 + t)

        ringc = [0]

        def u_read_next():
            assert s2['mm'] == 32 or not xr
            if ust['nr'] < 2 * NU:
                u_read(ring0 + 8 * (ringc[0] % nring))
                ringc[0] += 1

        ablk = {}

        def act_load(u, aa=None, cond=None):
            if u not in order:
                return
            sb, idx = (sAQ if u[0] == 'Q' else sAF), int(u[1])
            if aa is None:
                aa = a
                ablk[u] = blocks.pop(0)
            if idx:
                aa('s_add_u32 s%d, s%d, %d' % (sT1, sb, idx * UNIT))
                sb = sT1
            if u == 'F5':
                aa('s_add_u32 s%d, s%d, s%d' % (sT1, sT1, sO5))
            if cond is not None:
                aa('s_or_b32 s%d, s%d, s%d' % (sT1, sb, cond))
                sb = sT1
            for g in range(2):
                for rt in range(2):
                    if 'actl' not in self.no:
                        aa('buffer_load_dwordx4 %s, v%d, %s, s%d offen offset:%d sc1' % (
                            vr(ablk[u] + 8 * g + 4 * rt, 4), self.vActLd + rt, srd(S_WS), sb, 1024 * g), tag=('act', u))

        def ukey(u):
            return u[1] if u[0] == 'F' else 'xy'[int(u[1])]
        cond = {}
        cfree = [sD0, sD1, sD2, sWQ]

        def cond_load(u):
            if u not in order:
                return
            x = ukey(u)
            if x not in pslot:
                poll_issue([x])
            a.force_wait('lgkmcnt(0)')
            a(key_cmp(x)[0])
            cond[u] = cfree.pop(0)
            a('s_cselect_b32 s%d, 0, 0x%x' % (cond[u], OOB))
            pfree.append(pslot.pop(x))
            act_load(u, cond=cond[u])

        def cond_fix(u):
            if u not in cond:
                return
            x = ukey(u)
            pslot[x] = pfree.pop(0)
            ok, rt = self.newlabel('cok'), self.newlabel('cfix')
            a('s_cmp_eq_u32 s%d, 0' % cond[u])
            cfree.append(cond.pop(u))
            a('s_cbranch_scc0 ' + rt + 'i')
            a.label(ok)
            s = a.fork()
            s.lines = []
            s.vm = []
            s.label(rt + 'i')
            s('s_mov_b32 s%d, %d' % (sSPIN, o.spin))
            s.label(rt)
            if o.diag:
                a.nchk = getattr(a, 'nchk', 0) + 1
                s('s_add_u32 s%d, s%d, %d' % (sRC, sRC, 1 << (3 * (a.nchk - 1))))
            key_load(s, x)
            s('s_sub_u32 s%d, s%d, 1' % (sSPIN, sSPIN))
            s('s_cbranch_scc1 ' + rt + 'g')
            s.force_wait('lgkmcnt(0)')
            s(key_cmp(x)[0])
            s('s_cbranch_scc0 ' + rt)
            s.label(rt + 'g')
            act_load(u, aa=s)
            s.force_wait('vmcnt(0) lgkmcnt(0)')
            s('s_branch ' + ok)
            self.ool += s.lines
            pfree.append(pslot.pop(x))
            self.stamp(a, 'P' + ('q' if x == 'y' else x))

        def g_load():
            a('buffer_load_dword v%d, v%d, %s, 0 offen sc1' % (self.vG, self.vGa, srd(S_WS)), tag='g')

        kvb = []

        def kv_load():
            kvb.append(blocks.pop(0))
            for h in range(2):
                for q in range(2):
                    a('buffer_load_dwordx4 %s, v%d, %s, 0 offen offset:%d sc1' % (vr(kvb[0] + 8 * h + 4 * q, 4), self.vKV, srd(S_WS), h * HSTR + q * QSTR), tag='kv')

        def o_make():
            assert est['i'] == len(vq)
            nd = [blocks.pop(0), blocks.pop(0)]
            for h in range(2):
                b = kvb[0] + 8 * h
                for k in range(4):
                    a('v_cvt_pk_bf16_f32 v%d, v%d, v%d' % (b + k, b + 2 * k, b + 2 * k + 1))
            for h in range(2):
                a(MFMA % (vr(nd[h], 16), vr(kvb[0] + 8 * h, 4), vr(qpk + 4 * h, 4), '0'))
            for h in range(2):
                b = nd[h]
                den = b + 8
                a('v_add_f32 v%d, 0x%x, v%d' % (den, f2u(1e-6), den))
                a('v_rcp_f32 v%d, v%d' % (den, den))
                a('v_mul_f32 v%d, v%d, v%d' % (den, den, self.vGv))
                a('v_mov_b32 v%d, v%d' % (den + 1, den))
                for k in range(0, 8, 2):
                    a('v_pk_mul_f32 %s, %s, %s' % (vr(b + k, 2), vr(b + k, 2), vr(den, 2)))
                ob = self.et2 + 4 * h
                for k in range(4):
                    a('v_cvt_pk_bf16_f32 v%d, v%d, v%d' % (ob + k, b + 2 * k, b + 2 * k + 1))
                emit(self.st_op(ob, ch, h, 'st0'))
            blocks.extend(nd + kvb + [self.et2])
            self.stamp(a, 'st0')

        def fill():
            u_issue()

        def f_unit(u, ek=0):
            if u not in order:
                return
            cond_fix(u)
            m = order.index(u)
            assert m == ust.get('cons', 0) and s2['mm'] == 32 and (not isA or 'ka' in did)
            ust['cons'] = m + 1
            for g in range(2):
                h = 2 * m + g
                while ust['nr'] <= min(h + o.upf, 2 * NU - 1) and 2 * ust['nr'] + 1 < ust['ni'] or ust['nr'] <= h:
                    while 2 * ust['nr'] + 1 >= ust['ni']:
                        assert u_issue()
                    u_read_next()
                for rt in range(2):
                    for t in range(2):
                        dd = vr(acc2(t, rt), 16)
                        a(MFMA % (dd, vr(ufr[h] + 4 * t, 4), vr(ablk[u] + 8 * g + 4 * rt, 4), '0' if h == 0 else dd))
                        fill()
                        epi_to(est['i'] + ek)
            blocks.append(ablk[u])

        did = set()
        V = 'A' if isA else 'F'
        for tok in (getattr(o, 'head' + V + role) + ' ' + (getattr(o, 'script' + V + role) or getattr(o, 'script' + V))).split():
            if tok == 'f':
                if late:
                    assert ('o' in did) if isA else est['i'] >= marks[est['nf']]
                    est['nf'] += 1
                    late.pop(0)()
            elif tok == 'fG':
                if gate:
                    assert est['i'] >= gmark
                    flag_store(2, ['stG'])
                did.add(tok)
            elif tok == 'B8':
                a.wait_both([('w2',)], ['fr', 'kvw'])
                a('s_barrier')
                free_pieces(early_pieces(7) + (late_pieces(7) if cs > 7 else []))
                a.stpool += [40, 42] + ([] if isA else [28, 30, 32, 34])
                if 'kw' in did:
                    did.add('kwb')
                did.add(tok)
                self.stamp(a, tok)
            elif tok == 'B9k':
                assert s2['rd'] == 32 and 'B8' in did and 'ka' in did
                kv_count(True)
                for c in range(cs, 8):
                    free_pieces(late_pieces(c))
                did.update(['B9', 'kc'])
            elif tok == 'Gk':
                a.wait_all(vm=False)
                if not isb:
                    skip = self.newlabel('nopoll')
                    a('s_cmp_lg_u32 s%d, 0' % sWV)
                    a('s_cbranch_scc1 ' + skip)
                    sv = list(a.stpool)
                    st = self.o.stamps
                    self.o.stamps = ''
                    gate_on('k')
                    self.o.stamps = st
                    a.label(skip)
                else:
                    a.stpool += [28, 30, 32, 34]
                a('s_barrier')
                self.stamp(a, 'Pk')
            elif tok == 'Bk':
                assert 'kw' in did and 'B8' in did
                a.wait_lg('kvw')
                a('s_barrier')
                did.add('kwb')
                self.stamp(a, tok)
            elif tok == 'B9':
                assert s2['rd'] == 32 and 'B8' in did
                if cs < 8:
                    a.wait_lg('fr', 'kvw')
                    a('s_barrier')
                    if 'kw' in did:
                        did.add('kwb')
                for c in range(cs, 8):
                    free_pieces(late_pieces(c))
                did.add(tok)
                self.stamp(a, tok)
            elif tok[0] == 'e':
                tk, pace = (tok.split('/') + ['0'])[:2]
                epi_to(len(vq) if tk == 'e' else est['i'] + int(tk[2:]) if tk[1] == '+' else marks[int(tk[1:])], int(pace))
            elif tok[0] == 'm':
                assert 'B8' in did or not defer
                cnt, k = tok[1:].split(':')
                s2_steps(int(cnt), int(k))
            elif tok[0] == 'R':
                assert 'B8' in did or not defer
                s2_read(int(tok[1:]))
            elif tok in ('kw', 'kr', 'ka', 'kc'):
                assert est['i'] >= marks[0] and (tok == 'kw' or 'kwb' in did)
                {'kw': kv_write, 'kr': kv_reduce, 'ka': kv_atomics, 'kc': kv_count}[tok]()
                did.add(tok)
            elif tok == 'o':
                o_make()
                did.add(tok)
            elif tok[0] == 'p':
                assert 'B8' in did
                poll_issue(tok[1:])
            elif tok[0] == 'u':
                for _ in range(int(tok[1:] or 1)):
                    u_issue()
            elif tok == 'U':
                while u_issue():
                    pass
            elif tok[0] == 's':
                a('s_setprio %s' % tok[1:])
            elif tok == 'r':
                if 2 * ust['nr'] + 1 < ust['ni'] and ust['nr'] < 2 * ust.get('cons', 0) + nring:
                    u_read_next()
            elif tok[0] == 'g':
                gate_on(tok[1:])
            elif tok[0] == 'l':
                k = tok[1:]
                if k == 'g':
                    g_load()
                elif k == 'k':
                    kv_load()
                elif k == 'G':
                    a('buffer_load_dword v%d, v%d, %s, 0 offen sc1' % (self.vGv, self.vMisc + 1, srd(S_WS)), tag='g')
                else:
                    act_load(k)
            elif tok[0] == 'c':
                cond_load(tok[1:])
            elif tok[0] == 'v':
                cond_fix(tok[1:])
            elif tok[0] == 't':
                self.stamp(a, tok)
            elif tok == 'w':
                a.wait_all(lg=False)
            elif tok[0] in 'FQ':
                tk, ek = (tok.split(':') + ['0'])[:2]
                f_unit(tk, int(ek))
                self.stamp(a, tk)
            else:
                raise ValueError(tok)
        assert est['i'] == len(vq) and not late and ust['nr'] == 2 * NU and 'B9' in did and (not isA or 'kc' in did) and (not gate or 'fG' in did)
        self.stamp(a, 'mm')
        if o.wb and not isb:
            L = self.newlabel('wb')
            a('s_cmp_lt_u32 s%d, %d' % (sIDX, o.wb))
            a('s_cselect_b32 s%d, s%d, 1' % (sT0, sWV))
            a('s_cmp_lg_u32 s%d, 0' % sT0)
            a('s_cbranch_scc1 ' + L)
            a._put('buffer_wbl2 sc1')
            a.label(L)
        rho = ch

        def kidx(n, hh):
            return max(2 * n + hh - 1, 0)
        a('v_add_u32 v%d, s%d, v%d' % (t2, sP, self.vL16))
        a('v_add_u32 v%d, 0x10000, v%d' % (t3, t2))
        a.wait_all(vm=False)
        for n in (1, 0, 2, 3):
            for hh in range(2):
                if n == 0 and hh == rho:
                    continue
                k = kidx(n, hh)
                for q in range(2):
                    a.ds('ds_write_b128 v%d, %s offset:%d' % (t3 if k >= 4 else t2, vr(self.acc2 + 16 * n + 8 * hh + 4 * q, 4), ((2 * k + q) & 7) * 8192), tag='red')
        a('s_lshl_b32 s%d, s%d, 10' % (sT0, sJ))
        a('v_add_u32 v%d, s%d, v%d' % (t2, sT0, self.vL16))
        for n in range(4):
            a('v_xor_b32 v%d, 0x%x, v%d' % (self.vUr + n, kidx(n, rho) * 16384 + n * 1024, t2))
        a('s_lshl_b32 s%d, s%d, 1' % (sT0, sRT))
        a('s_lshr_b32 s%d, s%d, 1' % (sT1, sJ))
        a('s_add_u32 s%d, s%d, s%d' % (sT0, sT0, sT1))
        a('s_lshl_b32 s%d, s%d, 15' % (sT0, sT0))
        a('s_lshl_b32 s%d, s%d, 7' % (sT1, sCT))
        a('s_add_u32 s%d, s%d, s%d' % (sT0, sT0, sT1))
        a('s_and_b32 s%d, s%d, 1' % (sT1, sJ))
        a('s_lshl_b32 s%d, s%d, 6' % (sT1, sT1))
        a('s_add_u32 s%d, s%d, s%d' % (sT0, sT0, sT1))
        a('v_lshrrev_b32 v%d, 5, v1' % t3)
        a('v_lshlrev_b32 v%d, 4, v%d' % (t3, t3))
        a('v_and_b32 v%d, 31, v1' % t1)
        a('v_lshl_add_u32 v%d, v%d, 10, v%d' % (t3, t1, t3))
        a('v_add_f32 v%d, 1.0, v%d' % (self.vG, self.vG))
        a('v_rcp_f32 v%d, v%d' % (self.vG, self.vG))
        own = self.acc2 + 8 * rho
        ob = 164
        for k in range(4):
            a('v_lshlrev_b32 v%d, 16, v%d' % (ob + 2 * k, self.vB2 + k))
            a('v_and_b32 v%d, 0xffff0000, v%d' % (ob + 2 * k + 1, self.vB2 + k))
        for k in range(0, 8, 2):
            a('v_pk_add_f32 %s, %s, %s' % (vr(own + k, 2), vr(own + k, 2), vr(ob + k, 2)))
        a('v_mov_b32 v%d, v%d' % (self.vG + 1, self.vG))
        a.wait_lg('red')
        self.stamp(a, 'wr')
        a('s_barrier')
        self.stamp(a, 'bar')
        rb_ = 100
        srcs = [(rs, n) for rs in range(2) for n in range(4) if not (rs == rho and n == 0)]
        for q in range(2):
            for i, (rs, n) in enumerate(srcs):
                a.ds('ds_read_b128 %s, v%d offset:%d' % (vr(rb_ + 8 * i + 4 * q, 4), self.vUr + n, rs * 4096 + q * 8192))
        for q in range(2):
            for i in range(7):
                for k in range(4 * q, 4 * q + 4, 2):
                    a('v_pk_add_f32 %s, %s, %s' % (vr(own + k, 2), vr(own + k, 2), vr(rb_ + 8 * i + k, 2)))
            for k in range(4 * q, 4 * q + 4, 2):
                a('v_pk_mul_f32 %s, %s, %s' % (vr(own + k, 2), vr(own + k, 2), vr(self.vG, 2)))
            for k in range(2 * q, 2 * q + 2):
                a('v_cvt_pk_bf16_f32 v%d, v%d, v%d' % (ob + k, own + 2 * k, own + 2 * k + 1))
        a('v_permlane32_swap_b32 v%d, v%d' % (ob, ob + 2))
        a('v_permlane32_swap_b32 v%d, v%d' % (ob + 1, ob + 3))
        a('buffer_store_dwordx4 %s, v%d, %s, s%d offen offset:%d%s' % (vr(ob, 4), t3, srd(S_OUT), sT0, 32 * rho, o.outpol))
        if o.diag:
            self.stamp(a, 'end')
            a._put('s_memrealtime s[86:87]')
            a.force_wait('lgkmcnt(0)')
            names = o.stamps.split(',')
            a('v_mov_b32 v%d, 0' % self.vStamp)
            for nm, r in a.stampn:
                a('s_sub_u32 s%d, s%d, s100' % (r, r))
                a('v_writelane_b32 v%d, s%d, %d' % (self.vStamp, r, names.index(nm)))
            a('v_writelane_b32 v%d, s%d, 26' % (self.vStamp, sRC))
            a('v_writelane_b32 v%d, s86, 31' % self.vStamp)
            a('v_writelane_b32 v%d, s98, 29' % self.vStamp)
            a('s_mov_b32 s%d, %d' % (sT0, 'FGA'.index(var) * 2 + ch))
            a('v_writelane_b32 v%d, s%d, 30' % (self.vStamp, sT0))
            a('s_getreg_b32 s%d, hwreg(HW_REG_XCC_ID)' % sT0)
            a('v_writelane_b32 v%d, s%d, 28' % (self.vStamp, sT0))
            a('s_lshl_b32 s%d, s2, 3' % sT0)
            a('s_add_u32 s%d, s%d, s%d' % (sT0, sT0, sWV))
            a('s_lshl_b32 s%d, s%d, 7' % (sT0, sT0))
            a('s_add_u32 s%d, s%d, 0x%x' % (sT0, sT0, STAMP))
            a('v_lshlrev_b32 v%d, 2, v1' % t2)
            a('v_cmp_gt_u32 vcc, 32, v1')
            a('v_mov_b32 v%d, 0x40000000' % t3)
            a('v_cndmask_b32 v%d, v%d, v%d, vcc' % (t2, t3, t2))
            a('buffer_store_dword v%d, v%d, %s, s%d offen' % (self.vStamp, t2, srd(S_WS), sT0))
            self.stampnames = names
        a('s_endpgm')
        for l in self.ool:
            a.raw(l)
        self.ool = []
        if o.verbose:
            print(var + role, 'insts', a.ninst, 'nop states', a.nnop, a.stats)

    def build(self):
        self.prologue()
        for pth in ['Fa', 'Aa', 'Ab', 'Fb', 'Gb']:
            self.path(pth[0], pth[1])
        self.a.label('L_end')
        self.a.raw('    s_endpgm')
        ref = open('cdna_kernels/%s.s.ref' % NAME).read().split('\n')
        head = [l for l in ref if l.startswith(';') and '@launch' not in l]
        out = '\n'.join(head) + '\n; generated by tools/gen4.py\n'
        out += '; @launch grid=(256,1,1) block=(512,1,1) lds=163840\n'
        out += '.amdgcn_target "amdgcn-amd-amdhsa--gfx950"\n.text\n.globl %s_kernel\n.p2align 8\n.type %s_kernel,@function\n' % (NAME, NAME)
        out += self.a.text()
        out += '''.section .rodata,"a"
.p2align 6
.amdhsa_kernel %s_kernel
  .amdhsa_next_free_vgpr 256
  .amdhsa_next_free_sgpr 102
  .amdhsa_accum_offset 256
  .amdhsa_group_segment_fixed_size 0
  .amdhsa_kernarg_size 96
  .amdhsa_user_sgpr_count 2
  .amdhsa_user_sgpr_kernarg_segment_ptr 1
  .amdhsa_system_sgpr_workgroup_id_x 1
.end_amdhsa_kernel
''' % NAME
        return out


def parse(argv=None):
    ap = argparse.ArgumentParser()
    ap.add_argument('-o', default='cdna_kernels/%s.s' % NAME)
    ap.add_argument('--diag', action='store_true')
    ap.add_argument('--verbose', action='store_true')
    ap.add_argument('--pre', type=int, default=2)
    ap.add_argument('--lead', type=int, default=3)
    ap.add_argument('--rate', type=float, default=1.5)
    ap.add_argument('--urate', type=float, default=1.25)
    ap.add_argument('--ustart', type=int, default=0)
    ap.add_argument('--csA', type=int, default=4)
    ap.add_argument('--csF', type=int, default=8)
    ap.add_argument('--dlA', type=int, default=1)
    ap.add_argument('--dlF', type=int, default=0)
    ap.add_argument('--sd0a', type=int, default=30)
    ap.add_argument('--sd0b', type=int, default=0)
    ap.add_argument('--sd1', type=int, default=20)
    ap.add_argument('--sdr', type=int, default=2)
    ap.add_argument('--bias_n', type=int, default=17)
    ap.add_argument('--ep_issue', type=int, default=14)
    ap.add_argument('--ep_check', type=int, default=17)
    ap.add_argument('--s2pf', type=int, default=2)
    ap.add_argument('--upf', type=int, default=2)
    ap.add_argument('--order', default='F0,F2,F4,F1,F3,F5,Q0,Q1')
    ap.add_argument('--scriptF', default='g02 f lF0 lF2 g4 lF4 p1 F0 g1 lF1 p3 F2 g3 lF3 p5 F4 g5 lF5 F1 pq F3 gq lQ0 lQ1 lg F5 Q0 Q1')
    ap.add_argument('--scriptA', default='g024 f lF0 lF2 lF4 p1 F0 g1 lF1 p3 F2 g3 lF3 p5 F4 g5 lF5 F1 pq F3 gq lQ0 lQ1 lg F5 Q0 Q1')
    for v in ('Fa', 'Fb', 'Aa', 'Ab'):
        ap.add_argument('--script' + v, default='')
    ap.add_argument('--headFa', default='e+30 B8 B9 e0/16 e+50/16 f r r r e1/16 e+50/16 f e/16')
    ap.add_argument('--headFb', default='e+18 B8 B9 U e+40 fG r r r e0/12 e+50/12 f e1/12 e+50 f e')
    ap.add_argument('--headAa', default='e+30 B8 m16:3 e0 kw B9 kr u2 ka e/8 kc u6 gkG lk lG u4 o')
    ap.add_argument('--headAb', default='e+30 B8 m16:3 e0 kw B9 kr u2 ka e/8 kc u6 gkG lk lG u4 o')
    ap.add_argument('--outpol', default='')
    ap.add_argument('--spin', type=int, default=20000)
    ap.add_argument('--sleep', type=int, default=1)
    ap.add_argument('--stamps', default='mm1,B8,B9,epi,kc,Pk,st0,fa0,P0,P4,P1,P3,P5,Pq,mm,end')
    ap.add_argument('--no', default='')
    ap.add_argument('--loc', type=int, default=0)
    ap.add_argument('--spol', default=' sc1')
    ap.add_argument('--dual', type=int, default=0)
    ap.add_argument('--wb', type=int, default=0)
    ap.add_argument('--soft', default='')
    ap.add_argument('--ksleep', type=int, default=0)
    ap.add_argument('--dotp', type=int, default=0)
    ap.add_argument('--swap', type=int, default=0)
    ap.add_argument('--xr', type=int, default=0)
    ap.add_argument('--tn', type=int, default=-1)
    ap.add_argument('--tstrip', type=int, default=3)
    return ap.parse_args(argv)


if __name__ == '__main__':
    o = parse()
    g = Gen(o)
    txt = g.build()
    open(o.o, 'w').write(txt)
    if o.diag:
        print('stamps:', g.stampnames)
        open(o.o[:-2] + '.stamps', 'w').write(' '.join(g.stampnames))
    print('wrote', o.o, len(txt), 'bytes')
```

```python
import sys, os, struct, argparse
sys.path.insert(0, os.path.dirname(os.path.abspath(__file__)))
from asmlib import Asm

NAME = "gated_mix__linear_attn_block__dense_activation_gelu__prompt"

UNIT = 131072
KVACC = 0x780000
HSTR, QSTR = 1152, 576
CNT = 0x78A000
GOFF = 0x790000
STAMP = 0x7C0000
FLAG = 0x800000
EOFF = 0x900000
WS_SIZE = 0x900080
OOB = 0x40000000

W_BASE = 65536
XS, WSL = 16384, 24576
KVP = [8, 9, 11, 12]
NCNT = 32


def f2u(x):
    return struct.unpack('<I', struct.pack('<f', x))[0]


LOG2E = 1.4426950408889634
GC0 = -2.0 * 0.7978845608028654 * LOG2E
GC1 = GC0 * 0.044715

S_X, S_WA, S_M1, S_M2, S_WF, S_DBG, S_U, S_OUT, S_WS, S_U2 = 4, 8, 12, 16, 20, 24, 28, 32, 36, 40
sWV, sJ, sRB, sCG, sGRP, sRT, sCT, sP, sXQ, sWQ = range(64, 74)
sT0, sT1, sT2, sT3, sT4 = range(74, 79)
sD0, sD1, sD2 = 79, 80, 81
sC1, sONE = 82, 84
sUST, sUF, sUQ, sAF, sAQ, sO5 = range(86, 92)
sXCD, sIDX = 92, 93
sE, sFR, sRC = 94, 96, 97
sKVB = sT4
sCOL = 3
sROT, sROT2 = 62, 63
sSPIN, sIN = 0, 1
sIN2 = 63
sGF, sKC = sONE, sONE + 1
sFL, sQL = 4, 20


def srd(n):
    return 's[%d:%d]' % (n, n + 3)


def vr(b, n):
    return 'v[%d:%d]' % (b, b + n - 1)


MFMA = 'v_mfma_f32_32x32x16_bf16 %s, %s, %s, %s'


class Gen:
    def __init__(self, opt):
        self.o = opt
        self.a = Asm()
        self.lbl = 0
        self.no = set(opt.no.split(','))
        self.vL16, self.vStamp, self.vUd = 2, 3, 4
        self.vUr = 5
        self.vActLd = 11
        self.vFlagW, self.vEpoch = 13, 17
        self.vG = 18
        self.vTmp = 20
        self.vB2 = 24
        self.vActSt = 28
        self.vGa = 29
        self.vGv = 30
        self.vKV = 32
        self.vZero = 33
        self.vMisc = 34
        self.acc2 = 36
        self.fr = 36
        self.vBias = 84
        self.vSel = 90
        self.vXd = 96
        self.vWd = 98
        self.acc = 100
        self.et = 148
        self.pk = 156
        self.et2 = 164
        self.pk2 = 172
        self.vXr = 180
        self.vWr = 184
        self.vC0 = 186
        self.gw = 188
        self.kvres = 196
        self.ring0 = 228
        self.ool = []

    def newlabel(self, s):
        self.lbl += 1
        return 'L%s_%d' % (s, self.lbl)

    def stamp(self, a, name):
        if not self.o.diag:
            return
        for nm, ins in (('R' + name, 's_memrealtime'), (name, 's_memtime')):
            if nm in self.o.stamps.split(','):
                if not a.stpool:
                    a.force_wait('lgkmcnt(0)')
                    self.flush(a)
                r = a.stpool.pop(0)
                a.stampn.append((nm, r))
                a._put('%s s[%d:%d]' % (ins, r, r + 1))

    def flush(self, a):
        names = self.o.stamps.split(',')
        for nm, r in a.stampn:
            a('v_writelane_b32 v%d, s%d, %d' % (self.vStamp, r, names.index(nm)))
            a.stpool.append(r)
        a.stampn = []

    def dstore(self, a, text, tag):
        if not self.o.dual:
            a(text + self.o.spol, tag=tag)
            return
        L = self.newlabel('ds')
        a('s_cmp_lg_u32 s%d, 0' % sMODE)
        a(text, tag=tag)
        st = a.lines.pop()
        a._put('s_cbranch_scc1 %ss' % L)
        a.lines.append(st)
        a.label(L + 'b')
        self.ool += [L + 's:', '    ' + text + ' sc1', '    s_branch %sb' % L]

    def prologue(self):
        a, o = self.a, self.o
        a.label(NAME + '_kernel')
        a('s_cmp_ge_u32 s2, 256')
        a('s_cbranch_scc1 L_end')
        for d, off in ((S_X, 0), (S_WA, 8), (S_WF, 32), (S_WS, 88)):
            a._put('s_load_dwordx2 s[%d:%d], s[0:1], %d' % (d, d + 1, off))
        if o.diag:
            a._put('s_memtime s[100:101]')
            a._put('s_memrealtime s[98:99]')
        a('v_lshrrev_b32 v1, 6, v0')
        a('s_and_b32 s%d, s2, 7' % sXCD)
        a('v_readfirstlane_b32 s%d, v1' % sWV)
        a('s_lshr_b32 s%d, s2, 3' % sIDX)
        a('v_and_b32 v1, 63, v0')
        if o.loc:
            a('s_lshl_b32 s%d, s%d, 1' % (sRB, sXCD))
            a('s_and_b32 s%d, s%d, 1' % (sT2, sIDX))
            a('s_add_u32 s%d, s%d, s%d' % (sRB, sRB, sT2))
            a('s_lshr_b32 s%d, s%d, 1' % (sCG, sIDX))
        else:
            a('s_and_b32 s%d, s%d, 1' % (sRB, sXCD))
            a('s_lshl_b32 s%d, s%d, 3' % (sRB, sRB))
            a('s_and_b32 s%d, s%d, 7' % (sT2, sIDX))
            a('s_add_u32 s%d, s%d, s%d' % (sRB, sRB, sT2))
            if o.mix:
                a('s_and_b32 s%d, s%d, 6' % (sCG, sXCD))
                a('s_bfe_u32 s%d, s%d, 0x10003' % (sT2, sIDX))
                a('s_add_u32 s%d, s%d, s%d' % (sCG, sCG, sT2))
                a('s_lshr_b32 s%d, s%d, 1' % (sT2, sIDX))
                a('s_and_b32 s%d, s%d, 8' % (sT2, sT2))
                a('s_add_u32 s%d, s%d, s%d' % (sCG, sCG, sT2))
                if o.swap:
                    a('s_xor_b32 s%d, s%d, %d' % (sCG, sCG, 4 * o.swap))
            else:
                a('s_lshr_b32 s%d, s%d, 1' % (sCG, sXCD))
                if o.swap:
                    a('s_xor_b32 s%d, s%d, %d' % (sCG, sCG, o.swap))
                a('s_lshl_b32 s%d, s%d, 2' % (sCG, sCG))
                a('s_lshr_b32 s%d, s%d, 3' % (sT2, sIDX))
                a('s_add_u32 s%d, s%d, s%d' % (sCG, sCG, sT2))
        a('s_and_b32 s%d, s%d, 7' % (sGRP, sCG))
        a('s_cmp_lt_u32 s%d, 4' % sWV)
        a('s_cbranch_scc1 L_rolea')
        a('s_cmp_lt_u32 s%d, 8' % sCG)
        a('s_cbranch_scc1 L_pathAb')
        a('s_cmp_lt_u32 s%d, 11' % sCG)
        a('s_cbranch_scc1 L_pathFb')
        a('s_branch L_pathGb')
        a.label('L_rolea')
        a('s_cmp_lt_u32 s%d, 8' % sCG)
        a('s_cbranch_scc1 L_pathAa')

    @staticmethod
    def fstart(dst, g, tmp):
        return ['s_mul_i32 s%d, s%d, 5' % (dst, g), 's_min_u32 s%d, s%d, 3' % (tmp, g), 's_add_u32 s%d, s%d, s%d' % (dst, dst, tmp)]

    def gelu_ops(self, accb, pkb, ets):
        ops = []
        if 'epi' in self.no:
            return ops
        for q in range(0, 16, 8):
            et = ets[q // 8]
            xs = [accb + q + 2 * i for i in range(4)]
            ts = [et + 2 * i for i in range(4)]
            for x, t in zip(xs, ts):
                ops.append('v_pk_mul_f32 %s, %s, %s' % (vr(t, 2), vr(x, 2), vr(x, 2)))
            for x, t in zip(xs, ts):
                ops.append('v_pk_fma_f32 %s, %s, s[%d:%d], %s' % (vr(t, 2), vr(t, 2), sC1, sC1 + 1, vr(self.vC0, 2)))
            for x, t in zip(xs, ts):
                ops.append('v_pk_mul_f32 %s, %s, %s' % (vr(t, 2), vr(t, 2), vr(x, 2)))
            for i in range(8):
                ops.append('v_exp_f32 v%d, v%d' % (et + i, et + i))
            for t in ts:
                ops.append('v_pk_add_f32 %s, %s, s[%d:%d]' % (vr(t, 2), vr(t, 2), sONE, sONE + 1))
            for i in range(8):
                ops.append('v_rcp_f32 v%d, v%d' % (et + i, et + i))
            for x, t in zip(xs, ts):
                ops.append('v_pk_mul_f32 %s, %s, %s' % (vr(t, 2), vr(t, 2), vr(x, 2)))
            for j, t in enumerate(ts):
                ops.append('v_cvt_pk_bf16_f32 v%d, v%d, v%d' % (pkb + q // 2 + j, t, t + 1))
        return ops

    def phi_ops(self, accb, pkb):
        et = self.et
        ops = []
        if 'epi' in self.no:
            return ops
        for q in range(0, 16, 8):
            ops += ['v_pk_mul_f32 %s, %s, s[%d:%d]' % (vr(et + i, 2), vr(accb + q + i, 2), sC1, sC1 + 1) for i in range(0, 8, 2)]
            ops += ['v_exp_f32 v%d, v%d clamp' % (et + i, et + i) for i in range(8)]
            ops += ['v_max_f32 v%d, 0x%x, v%d' % (accb + q + i, f2u(1e-6), accb + q + i) for i in range(8)]
            ops += ['v_pk_add_f32 %s, %s, %s' % (vr(et + i, 2), vr(et + i, 2), vr(accb + q + i, 2)) for i in range(0, 8, 2)]
            ops += ['v_cvt_pk_bf16_f32 v%d, v%d, v%d' % (pkb + q // 2 + j, et + 2 * j, et + 2 * j + 1) for j in range(4)]
        return ops

    def st_op(self, pkb, unit_rel, g, tag):
        return [('s_add_u32 s%d, s%d, %d' % (sT2, sUST, unit_rel * UNIT), None),
                ('buffer_store_dwordx4 %s, v%d, %s, s%d offen offset:%d' % (vr(pkb, 4), self.vActSt, srd(S_WS), sT2, 1024 * g), tag)]

    def with_stores(self, ops, pkb, unit_rel, tag):
        if 'st' in self.no:
            return ops
        st = [self.st_op(pkb + 4 * g, unit_rel, g, tag) for g in range(2)]
        out = []
        done = False
        for i, op in enumerate(ops):
            out.append(op)
            if not done and i >= 2 and ops[i - 2].startswith('v_cvt_pk_bf16_f32 v%d,' % (pkb + 3)):
                out.append(st[0])
                done = True
        if not done:
            out.append(st[0])
        out.append(st[1])
        return out

    def check(self, a, load, cmps, wait=True):
        ok = self.newlabel('ok')
        rt = self.newlabel('retry')
        if wait:
            a.force_wait('lgkmcnt(0)')
            if self.o.diag and len(a.stpool) < 5 and not a.noflush:
                self.flush(a)
        for c in cmps:
            a(c)
            a('s_cbranch_scc0 ' + rt + 'i')
        a.label(ok)
        s = a.fork()
        s.lines = []
        s.label(rt + 'i')
        s('s_mov_b32 s%d, %d' % (sSPIN, self.o.spin))
        if not wait:
            s('s_branch ' + rt + 'w')
        s.label(rt)
        if self.o.diag:
            a.nchk = getattr(a, 'nchk', 0) + 1
            s('s_bitset1_b32 s%d, %d' % (sRC, a.nchk - 1))
        s('s_sub_u32 s%d, s%d, 1' % (sSPIN, sSPIN))
        s('s_cbranch_scc1 ' + ok)
        if self.o.sleep:
            s('s_sleep %d' % self.o.sleep)
        load(s)
        s.label(rt + 'w')
        s.force_wait('lgkmcnt(0)')
        for c in cmps:
            s(c)
            s('s_cbranch_scc0 ' + rt)
        s('s_branch ' + ok)
        self.ool += s.lines

    def path(self, var, role):
        o = self.o
        a = self.a.fork()
        a.stampn = []
        a.noflush = False
        a.stpool = list(range(44, 62, 2))
        a.label('L_path' + var + role)
        a.lgmax = 12 if o.diag else 15
        isA = var == 'A'
        isb = role == 'b'
        ch = 1 if isb else 0
        gate = var == 'G'
        nt = 2 if gate else 3
        S_B1 = S_WA if gate else S_M1
        stride = 3072 if isA else 2752
        S_W = S_WA if isA else S_WF
        woff = [1024, 2048, 0] if isA else [0, 128, 256]
        cs = o.csA if isA else o.csF
        defer = o.dlA if isA else o.dlF
        xr = o.xr and cs < 8
        assert not xr or cs >= 4
        t0, t1, t2, t3 = [self.vTmp + i for i in range(4)]
        co = o.co
        SU = set(x for x in o.sent.split(',') if x)
        mine = ['Q%d' % ch] if isA else ['F%d' % (2 * p + ch) for p in range(nt)]
        clrflag = any(u[0] == ('Q' if isA else 'F') and int(u[1]) % 2 == ch for u in SU)

        def acc(p):
            return self.acc + 16 * p

        def fin(d, size):
            a('s_mov_b32 s%d, 0x%x' % (d + 2, size))
            a('s_mov_b32 s%d, 0x20000' % (d + 3))

        cur = dict(w=0)

        def x_items(c):
            def f(i):
                def g():
                    if i == 0 and c:
                        a('s_add_u32 m0, s%d, %d' % (sXQ, (c & 3) * XS))
                        if o.rot1:
                            a('s_xor_b32 s%d, s%d, %d' % (sT0, sROT, c * 128))
                        else:
                            a('s_movk_i32 s%d, %d' % (sT0, c * 128))
                    a('buffer_load_dwordx4 v%d, %s, %s offen offset:%d lds' % (self.vXd + i, srd(S_X), ('s%d' % sT0) if c else ('s%d' % sROT) if o.rot1 else '0', 1024 * i), tag=('x', c))
                return g
            return [f(0), f(1)]

        def w_item(c, p):
            def g():
                a('s_add_u32 m0, s%d, %d' % (sWQ, (c & 3) * WSL + 8192 * p - woff[p]))
                if c and cur['w'] != c:
                    if o.rot1:
                        a('s_xor_b32 s%d, s%d, %d' % (sT1, sROT, c * 128))
                        a('s_mul_i32 s%d, s%d, %d' % (sT1, sT1, stride // 2))
                    else:
                        a('s_mov_b32 s%d, %d' % (sT1, 64 * c * stride))
                    cur['w'] = c
                a('buffer_load_dwordx4 v%d, %s, %s offen offset:%d lds' % (self.vWd + (1 if not isA and p == 2 else 0), srd(S_W), ('s%d' % sT1) if (c or o.rot1) else '0', woff[p]),
                  tag=('w2',) if (p == 2 and defer and c >= cs) else ('w', c))
            return g

        def w_items(c):
            return [w_item(c, p) for p in range(2 if (defer and c >= cs) else 3)]

        for d, off in ((S_M1, 64 if gate else 40), (S_DBG, 80), (S_U, 48), (S_U2, 16), (S_OUT, 72), (S_M2, 56)):
            a._put('s_load_dwordx2 s[%d:%d], s[0:1], %d' % (d, d + 1, off))
        a('v_lshrrev_b32 v%d, 3, v1' % t0)
        a('v_and_b32 v%d, 7, v1' % t1)
        a('v_lshrrev_b32 v%d, 4, v1' % t2)
        a('v_xor_b32 v%d, v%d, v%d' % (t3, t1, t2))
        a('v_lshlrev_b32 v%d, 4, v%d' % (t3, t3))
        a('v_lshl_add_u32 v%d, v%d, 10, v%d' % (t3, t0, t3))
        a('s_lshl_b32 s%d, s%d, 3' % (sT2, sRB))
        a('s_add_u32 s%d, s%d, s%d' % (sT2, sT2, sWV))
        a('s_lshl_b32 s%d, s%d, 14' % (sT3, sT2))
        a('v_add_u32 v%d, s%d, v%d' % (self.vXd, sT3, t3))
        a('v_xor_b32 v%d, 64, v%d' % (self.vXd + 1, self.vXd))
        a('v_add_u32 v%d, %d, v%d' % (self.vXd + 1, 7168, self.vXd + 1))
        a('v_and_b32 v%d, 1, v%d' % (t2, t2))
        a('v_lshlrev_b32 v%d, 2, v%d' % (t2, t2))
        a('v_xor_b32 v%d, v%d, v%d' % (t1, t1, t2))
        a('v_lshlrev_b32 v%d, 4, v%d' % (t1, t1))
        if o.rot1:
            a('s_xor_b32 s%d, s%d, s%d' % (sROT, sRB, sCG))
            a('s_and_b32 s%d, s%d, %d' % (sROT, sROT, o.rot1m))
            a('s_mul_i32 s%d, s%d, %d' % (sROT, sROT, 128 * o.rot1))
            a('s_mul_i32 s%d, s%d, %d' % (sT1, sROT, stride // 2))
        a('s_lshl_b32 s%d, s%d, 11' % (sXQ, sWV))
        a('s_lshl_b32 s%d, s%d, 10' % (sP, sWV))
        a('s_add_u32 s%d, s%d, %d' % (sWQ, sP, W_BASE))
        a('s_mov_b32 m0, s%d' % sXQ)
        fin(S_X, 2048 * 1024)
        fin(S_W, 512 * stride)
        if isA:
            a('s_lshl_b32 s%d, s%d, 7' % (sCOL, sGRP))
        else:
            for tx in self.fstart(sCOL, sGRP, sT3):
                a(tx)
            a('s_lshl_b32 s%d, s%d, 6' % (sCOL, sCOL))
        a('s_mul_i32 s%d, s%d, %d' % (sT3, sWV, 8 * stride))
        a('s_add_u32 s%d, s%d, s%d' % (sT3, sT3, sCOL))
        a('v_mul_u32_u24 v%d, %d, v%d' % (self.vWd, stride, t0))
        if not isA:
            if var == 'G' or isb:
                a('v_and_b32 v%d, 0x%x, v%d' % (t2, 0x30 if var == 'G' else 0x70, t1))
            else:
                a('s_cmp_lt_u32 s%d, 3' % sGRP)
                a('s_cselect_b32 s%d, 0x70, 0x30' % sT2)
                a('v_and_b32 v%d, s%d, v%d' % (t2, sT2, t1))
            a('v_add3_u32 v%d, v%d, v%d, s%d' % (self.vWd + 1, self.vWd, t2, sT3))
        a('v_add3_u32 v%d, v%d, v%d, s%d' % (self.vWd, self.vWd, t1, sT3))
        a('v_lshl_add_u32 v%d, v%d, 10, v%d' % (self.vUd, t0, t1))
        if gate:
            a('v_and_b32 v%d, 31, v1' % t2)
            a('v_lshlrev_b32 v%d, 5, v%d' % (t2, t2))
            a('v_lshrrev_b32 v%d, 5, v1' % t3)
            a('v_lshl_add_u32 v%d, v%d, 4, v%d' % (self.vGv, t3, t2))
            if o.rot1:
                a('v_xor_b32 v%d, s%d, v%d' % (self.vGv, sROT, self.vGv))
            fin(S_M1, 1024)
        pubpath = (var + role) == ('Fa' if o.swap & 2 else 'Aa')

        def first_loads():
            a._put('s_waitcnt lgkmcnt(0)')
            self.stamp(a, 'karg')
            for f in x_items(0) + w_items(0):
                f()
            if gate:
                a('buffer_load_dwordx4 %s, v%d, %s, 0 offen' % (vr(self.gw, 4), self.vGv, srd(S_M1)), tag='g')
                a._put('s_load_dwordx2 s[%d:%d], s[0:1], 40' % (S_B1, S_B1 + 1))
            if pubpath:
                skip = self.newlabel('nopub')
                a('s_or_b32 s%d, s2, s%d' % (sT3, sWV))
                a('s_cbranch_scc1 ' + skip)
                a('s_mov_b32 s%d, 0x%x' % (sT3, EOFF))
                a._put('s_load_dword s%d, s[%d:%d], s%d' % (sE, S_WS, S_WS + 1, sT3))
                a.label(skip)
                a.lgmax -= 1
            self.stamp(a, 'd0')
        if o.diag:
            a('s_mov_b32 s%d, 0' % sRC)
            a('v_mov_b32 v%d, 0' % self.vStamp)

        dq = []
        dqm = []

        def D(name, *ops):
            (dqm if any(x.startswith('buffer_') for x in ops) else dq).append((name, list(ops)))
        D('rd', 's_and_b32 s%d, s%d, 3' % (sJ, sWV), 'v_and_b32 v%d, 31, v1' % t0, 'v_lshrrev_b32 v%d, 5, v1' % t1,
          'v_bfe_u32 v%d, v1, 1, 3' % t2, 'v_xor_b32 v%d, v%d, v%d' % (t2, t2, t1), 'v_lshlrev_b32 v%d, 4, v%d' % (t2, t2),
          'v_lshl_add_u32 v%d, v%d, 7, v%d' % (t2, t0, t2), 's_lshl_b32 s%d, s%d, 12' % (sT2, sJ),
          'v_add_u32 v%d, s%d, v%d' % (self.vXr, sT2, t2))
        D('rd', *['v_xor_b32 v%d, %d, v%d' % (self.vXr + s, 32 * s, self.vXr) for s in range(1, 4)])
        D('rd', 'v_bfe_u32 v%d, v1, 2, 2' % t0, 'v_and_b32 v%d, 3, v1' % t2, 'v_lshlrev_b32 v%d, 3, v%d' % (t2, t2),
          'v_bfe_u32 v%d, v1, 4, 1' % t3, 'v_lshl_add_u32 v%d, v%d, 5, v%d' % (t2, t3, t2), 'v_bfe_u32 v%d, v1, 3, 1' % t3,
          'v_lshl_add_u32 v%d, v%d, 6, v%d' % (t2, t3, t2), 'v_lshl_add_u32 v%d, v%d, 7, v%d' % (t2, t0, t2),
          'v_lshl_add_u32 v%d, v%d, 10, v%d' % (t3, t1, t2),
          'v_xor_b32 v%d, 0x%x, v%d' % (self.vWr, W_BASE + 64 * ch, t3), 'v_add_u32 v%d, %d, v%d' % (self.vWr + 1, 2 * WSL, self.vWr),
          'v_lshl_add_u32 v%d, v%d, 9, v%d' % (self.vUr, t1, t2))
        D('rd', 'v_lshlrev_b32 v%d, 4, v1' % self.vL16, 'v_mov_b32 v%d, 0' % self.vZero,
          's_mov_b32 s%d, 0x%x' % (S_WS + 2, WS_SIZE), 's_mov_b32 s%d, 0x20000' % (S_WS + 3),
          's_mov_b32 s%d, 0x100' % (S_DBG + 2), 's_mov_b32 s%d, 0x20000' % (S_DBG + 3))
        d0, d1, d2 = sD0, sD1, sD2
        if not isA:
            D('bias', 's_mov_b32 s%d, 0x%x' % (S_B1 + 2, 1376 * 2), 's_mov_b32 s%d, 0x20000' % (S_B1 + 3),
              'v_and_b32 v%d, 31, v1' % t2, 'v_lshlrev_b32 v%d, 1, v%d' % (t2, t2), *((['s_waitcnt lgkmcnt(0)'] if gate else []) +
              ['buffer_load_ushort v%d, v%d, %s, s%d offen offset:%d' % (self.vBias + 2 * p, t2, srd(S_B1), sCOL, 128 * p + 64 * ch) for p in range(nt)]))
            for i in range(6):
                if i != 2:
                    D('sel', 'v_mov_b32 v%d, 0' % (self.vSel + i))
            D('sel', 'v_xor_b32 v%d, 1, v%d' % (t3, t1), 'v_mul_u32_u24 v%d, 0x3f80, v%d' % (self.vSel + 2, t3))
            for i in range(3):
                D('sel', 'v_mov_b32 v%d, 0' % (self.vBias + 2 * i + 1))
        D('u', 's_lshl_b32 s%d, s%d, 2' % (sRT, sXCD), 's_and_b32 s%d, s%d, 3' % (d0, sIDX), 's_add_u32 s%d, s%d, s%d' % (sRT, sRT, d0))
        D('u', 's_lshr_b32 s%d, s%d, 2' % (sCT, sIDX), 's_lshl_b32 s%d, s%d, 7' % (d0, sCT), 'v_add_u32 v%d, s%d, v%d' % (self.vUd, d0, self.vUd))
        D('u', 's_mov_b32 s%d, 0x%x' % (S_U + 2, 1376 * 1024), 's_mov_b32 s%d, 0x20000' % (S_U + 3))
        D('u', 's_mov_b32 s%d, 0x%x' % (S_U2 + 2, 512 * 1024), 's_mov_b32 s%d, 0x20000' % (S_U2 + 3))
        D('u', *(self.fstart(d0, sWV, d1) + ['s_lshl_b32 s%d, s%d, 15' % (sUF, d0), 's_add_u32 s%d, s%d, 16' % (d0, d0), 's_lshl_b32 s%d, s%d, 17' % (sAF, d0)]))
        if not isb:
            D('u', 's_cmp_lt_u32 s%d, 3' % sWV, 's_cselect_b32 s%d, 0, 0x%x' % (sO5, OOB))
        D('u', 's_lshl_b32 s%d, s%d, 16' % (sUQ, sWV), 's_lshl_b32 s%d, s%d, 18' % (sAQ, sWV))
        if SU:
            D('clr', *['v_mov_b32 v%d, -1' % (self.et + i) for i in range(4)])
        D('clr', 's_lshl_b32 s%d, s%d, 2' % (d1, sRB), 's_add_u32 s%d, s%d, s%d' % (d1, d1, sJ), 's_lshl_b32 s%d, s%d, 11' % (d0, d1),
          'v_add_u32 v%d, s%d, v%d' % (self.vActSt, d0, self.vL16),
          *([] if not ((isA and not co) or gate) else
            (['s_lshr_b32 s%d, s%d, 1' % (d0, sGRP), 's_lshl_b32 s%d, s%d, 13' % (d0, d0)] if isA else ['s_lshl_b32 s%d, s%d, 13' % (d0, sGRP)]) +
            ['s_lshl_b32 s%d, s%d, 7' % (d1, d1), 's_add_u32 s%d, s%d, s%d' % (d0, d0, d1),
             's_add_u32 s%d, s%d, 0x%x' % (d0, d0, GOFF + (4 * 8192 if isA else 0)), 'v_and_b32 v%d, 31, v1' % t0,
             'v_lshl_add_u32 v%d, v%d, 2, s%d' % (self.vMisc + 1, t0, d0)]))
        if isA:
            D('clr', 's_lshl_b32 s%d, s%d, 18' % (sUST, sGRP))
            D('epi', 's_mov_b32 s%d, 0x%x' % (sC1, f2u(LOG2E)), 's_mov_b32 s%d, 0x%x' % (sC1 + 1, f2u(LOG2E)))
            D('epi', 's_lshr_b32 s%d, s%d, 1' % (d0, sJ), 's_add_u32 s%d, s%d, s%d' % (d0, d0, sJ), 's_lshl_b32 s%d, s%d, 13' % (d0, d0),
              's_add_u32 s%d, s%d, %d' % (d0, d0, KVP[0] * 8192 + ch * 4096), 'v_add_u32 v%d, s%d, v%d' % (self.vMisc, d0, self.vL16))
            for j in range(8):
                D('epi', 'v_mov_b32 v%d, 0x3f803f80' % (self.et2 + j), 'v_mov_b32 v%d, 0x3f803f80' % (self.pk2 + j))
            ad, az = self.gw, self.gw + 1
            D('epi', 's_bfe_u32 s%d, s%d, 0x10001' % (d0, sWV), 's_lshl_b32 s%d, s%d, 8' % (d0, d0), 's_add_u32 s%d, s%d, s%d' % (d0, d0, sP),
              's_add_u32 s%d, s%d, %d' % (d0, d0, KVP[0] * 8192), 'v_lshl_add_u32 v%d, v1, 2, s%d' % (ad, d0), 's_xor_b32 s%d, s%d, 256' % (d0, d0),
              'v_bfe_u32 v%d, v1, 2, 1' % az, 'v_and_b32 v%d, 3, v1' % (az + 1), 'v_lshlrev_b32 v%d, 2, v%d' % (az + 1, az + 1),
              'v_lshl_add_u32 v%d, v%d, 9, v%d' % (az, az, az + 1), 'v_add_u32 v%d, s%d, v%d' % (az, d0, az))
            D('epi', 'v_cmp_gt_u32 vcc, 8, v1', 'v_lshlrev_b32 v%d, 2, v1' % (az + 1), 'v_mov_b32 v%d, 0x%x' % (az + 2, OOB),
              'v_cndmask_b32 v%d, v%d, v%d, vcc' % (az + 2, az + 2, az + 1))
            D('epi', 's_lshl_b32 s%d, s%d, 3' % (d0, sGRP), 's_add_u32 s%d, s%d, s%d' % (d0, d0, sWV),
              's_mul_i32 s%d, s%d, %d' % (sKVB, d0, QSTR), 's_add_u32 s%d, s%d, 0x%x' % (sKVB, sKVB, KVACC))
        else:
            D('clr', 's_lshl_b32 s%d, s%d, 11' % (sUST, sCOL), 's_add_u32 s%d, s%d, %d' % (sUST, sUST, 16 * UNIT))
            D('epi', 's_mov_b32 s%d, 0x%x' % (sC1, f2u(GC1)), 's_mov_b32 s%d, 0x%x' % (sC1 + 1, f2u(GC1)))
            D('epi', 's_mov_b32 s%d, 1.0' % sONE, 's_mov_b32 s%d, 1.0' % (sONE + 1))
            D('epi', 'v_mov_b32 v%d, 0x%x' % (self.vC0, f2u(GC0)), 'v_mov_b32 v%d, 0x%x' % (self.vC0 + 1, f2u(GC0)))
        if isA or co:
            D('epi', 'v_and_b32 v%d, 31, v1' % t0, 'v_lshlrev_b32 v%d, 4, v%d' % (self.vKV, t0), 'v_lshl_add_u32 v%d, v%d, 8, v%d' % (self.vKV, t1, self.vKV),
              'v_lshlrev_b32 v%d, 4, v%d' % (t2, t1), 'v_add_u32 v%d, 512, v%d' % (t2, t2), 'v_cmp_gt_u32 s[%d:%d], 16, v%d' % (d1, d2, t0),
              's_mul_i32 s%d, s%d, %d' % (d0, sWV if co else sGRP, 4 * HSTR), 's_add_u32 s%d, s%d, 0x%x' % (d0, d0, KVACC + (0 if co else 2 * ch * HSTR)),
              'v_cndmask_b32 v%d, v%d, v%d, s[%d:%d]' % (self.vKV, t2, self.vKV, d1, d2), 'v_add_u32 v%d, s%d, v%d' % (self.vKV, d0, self.vKV))
        D('epi', 's_lshl_b32 s%d, s%d, 15' % (d2, sRB), 's_lshr_b32 s%d, s%d, 1' % (d0, sJ), 's_lshl_b32 s%d, s%d, 10' % (d0, d0),
          's_add_u32 s%d, s%d, s%d' % (d2, d2, d0), 's_and_b32 s%d, s%d, 1' % (d0, sJ), 's_lshl_b32 s%d, s%d, 2' % (d0, d0),
          's_add_u32 s%d, s%d, s%d' % (d2, d2, d0), 's_add_u32 s%d, s%d, 0x%x' % (d2, d2, FLAG))
        D('epi', 's_lshl_b32 s%d, s%d, 11' % (d0, sCG), 's_add_u32 s%d, s%d, s%d' % (d0, d0, d2), 'v_mov_b32 v%d, s%d' % (self.vFlagW, d0))
        if gate and co:
            D('epi', 's_lshl_b32 s%d, s%d, 12' % (d0, sGRP), 's_add_u32 s%d, s%d, s%d' % (d0, d0, d2), 's_add_u32 s%d, s%d, %d' % (d0, d0, 24 - 4 * 4096),
              's_add_u32 s%d, s%d, %d' % (d1, d2, 11 * 2048 + 40), 's_cmp_eq_u32 s%d, 3' % sGRP, 's_cselect_b32 s%d, s%d, s%d' % (d0, d1, d0),
              's_cselect_b32 s%d, 0, 2048' % d1, 'v_and_b32 v%d, 1, v1' % t0, 'v_mul_u32_u24 v%d, s%d, v%d' % (t0, d1, t0),
              'v_add_u32 v%d, s%d, v%d' % (self.vMisc, d0, t0))
        if isA and not co:
            D('epi', 's_lshr_b32 s%d, s%d, 1' % (d0, sGRP), 's_lshl_b32 s%d, s%d, 11' % (d0, d0), 's_add_u32 s%d, s%d, s%d' % (sGF, d0, d2),
              's_lshl_b32 s%d, s%d, 4' % (sKC, sGRP), 's_add_u32 s%d, s%d, s%d' % (sKC, sKC, sRB), 's_lshl_b32 s%d, s%d, 7' % (sKC, sKC),
              's_add_u32 s%d, s%d, 0x%x' % (sKC, sKC, CNT))
        D('p2', 's_and_b32 s%d, s%d, 1' % (d0, sWV), 's_lshl_b32 s%d, s%d, 6' % (d0, d0), 's_add_u32 s%d, s%d, s%d' % (d0, d0, sP),
          'v_xor_b32 v%d, s%d, v%d' % (self.vUr, d0, self.vUr), 'v_xor_b32 v%d, 64, v%d' % (self.vUr + 1, self.vUr))
        for i in range(2, 6):
            D('p2', 'v_add_u32 v%d, 0x10000, v%d' % (self.vUr + i, self.vUr + i - 2))
        D('p2', 's_mov_b32 s%d, 0x%x' % (S_OUT + 2, 2048 * 1024), 's_mov_b32 s%d, 0x20000' % (S_OUT + 3))
        D('p2', 's_lshl_b32 s%d, s%d, 1' % (d0, sRT), 's_lshr_b32 s%d, s%d, 1' % (d1, sJ), 's_add_u32 s%d, s%d, s%d' % (d0, d0, d1),
          's_lshl_b32 s%d, s%d, 11' % (d1, d0), 'v_add_u32 v%d, s%d, v%d' % (self.vActLd, d1, self.vL16),
          'v_xor_b32 v%d, 2048, v%d' % (self.vActLd + 1, self.vActLd),
          's_lshl_b32 s%d, s%d, 7' % (d0, d0), 's_lshr_b32 s%d, s%d, 1' % (d1, sWV), 's_lshl_b32 s%d, s%d, 13' % (d1, d1),
          's_add_u32 s%d, s%d, s%d' % (d0, d0, d1), 's_add_u32 s%d, s%d, 0x%x' % (d0, d0, GOFF + 4 * 8192), 'v_and_b32 v%d, 31, v1' % t0, 'v_lshl_add_u32 v%d, v%d, 2, s%d' % (self.vGa, t0, d0))
        D('p2', 's_lshr_b32 s%d, s%d, 1' % (d0, sRT), 's_lshl_b32 s%d, s%d, 15' % (d0, d0), 's_and_b32 s%d, s%d, 1' % (d1, sRT),
          's_lshl_b32 s%d, s%d, 10' % (d1, d1), 's_add_u32 s%d, s%d, s%d' % (d0, d0, d1), 's_add_u32 s%d, s%d, 0x%x' % (d0, d0, FLAG),
          's_add_u32 s%d, s%d, s%d' % (sFR, d0, sXQ))
        D('p2', 's_mov_b32 s%d, 0x400' % (S_M2 + 2), 's_mov_b32 s%d, 0x20000' % (S_M2 + 3), 's_lshl_b32 s%d, s%d, 7' % (d0, sCT),
          's_and_b32 s%d, s%d, 1' % (d1, sJ), 's_lshl_b32 s%d, s%d, 6' % (d1, d1), 's_add_u32 s%d, s%d, s%d' % (d0, d0, d1),
          'v_lshlrev_b32 v%d, 3, v%d' % (t2, t1),
          'buffer_load_dwordx2 %s, v%d, %s, s%d offen offset:%d' % (vr(self.vB2, 2), t2, srd(S_M2), d0, 32 * ch),
          'buffer_load_dwordx2 %s, v%d, %s, s%d offen offset:%d' % (vr(self.vB2 + 2, 2), t2, srd(S_M2), d0, 32 * ch + 16))

        def drain(k):
            while dq and k > 0:
                nm, ops = dq.pop(0)
                for tx in ops:
                    a(tx, tag='misc')
                k -= len(ops)

        def need(name):
            while any(nm == name for nm, _ in dq):
                drain(1)

        dq.sort(key=lambda x: {'rd': 0, 'clr': 1}.get(x[0], 2))
        drain(o.sdpa if not isb else o.sdpb)
        first_loads()
        need('rd')
        drain(o.sd0a if not isb else o.sd0b)
        for c in range(1, o.pre):
            for f in x_items(c) + w_items(c):
                f()
            self.stamp(a, 'd%d' % c)
        dq[:0] = [x for x in dqm if x[0] == 'bias']
        dq.extend(x for x in dqm if x[0] != 'bias')
        need('bias')

        def clr_item(u, g):
            def f():
                need('clr')
                for tx, tg in self.st_op(self.et, u, g, 'clr'):
                    a(tx + (' sc1' if tg else ''), tag=tg)
            return f
        clr = [clr_item(int(u[1]), g) for u in mine if u in SU for g in range(2)]
        if o.clr0 < 0:
            while clr:
                clr.pop(0)()
        drain(o.sd1)
        self.stamp(a, 'setup')

        order = [u for u in o.order.split(',') if not (isb and u == 'F5')]
        NU = len(order)
        NP = 4 * NU

        ust = dict(ni=0, nr=0)
        upiece = {}
        freep = []

        def u_issue():
            if ust['ni'] >= NP or not freep:
                return False
            need('u')
            i = ust['ni']
            q, prev = freep.pop(0)
            if prev is not None:
                a.wait_lg(prev)
            upiece[i] = q
            ust['ni'] += 1
            if 'u' in self.no:
                return True
            u = order[i // 4]
            rs, sb = (S_U2, sUQ) if u[0] == 'Q' else (S_U, sUF)
            a('s_add_u32 m0, s%d, %d' % (sP, q * 8192))
            a('s_add_u32 s%d, s%d, %d' % (sT3, sb, (int(u[1]) * 32 + (i % 4) * 8) * 1024))
            if u == 'F5':
                a('s_add_u32 s%d, s%d, s%d' % (sT3, sT3, sO5))
            a('buffer_load_dwordx4 v%d, %s, s%d offen lds' % (self.vUd, srd(rs), sT3), tag=('u', i))
            return True

        ufr = {}

        def u_read(dst):
            h = ust['nr']
            assert 2 * h + 1 < ust['ni'], (var, role, h, ust)
            a.wait_vm(('u', 2 * h), ('u', 2 * h + 1))
            for t in range(2):
                for rd in range(2):
                    win, qq = divmod(upiece[2 * h + rd], 8)
                    a.ds('ds_read_b64_tr_b16 %s, v%d offset:%d' % (vr(dst + 4 * t + 2 * rd, 2), self.vUr + win * 2 + t, qq * 8192), tag=('ur', h))
            for rd in range(2):
                freep.append((upiece[2 * h + rd], ('ur', h)))
            ufr[h] = dst
            ust['nr'] += 1

        def free_pieces(qs):
            for q in qs:
                if not (isA and q in KVP):
                    freep.append((q, None))

        def early_pieces(c):
            s = c & 3
            return [8 + 3 * s, 9 + 3 * s] + ([2 * s, 2 * s + 1] if xr else [])

        def late_pieces(c):
            s = c & 3
            return ([] if xr else [2 * s, 2 * s + 1]) + [10 + 3 * s]

        PF = 2

        def fbuf(n):
            return self.fr + (n % 3) * 16

        def xbuf(n):
            return 192 + 4 * (n - 4 * cs) if (xr and nt == 3 and n >= 4 * cs) else fbuf(n)

        def ntile(n):
            return min(nt, 3 if n // 4 < cs else 2)

        def xread(dst, n):
            c, s = divmod(n, 4)
            return 'ds_read_b128 %s, v%d offset:%d' % (vr(dst, 4), self.vXr + s, (c & 3) * XS)

        def wread(dst, n, p):
            c, s = divmod(n, 4)
            win, sl = divmod(c & 3, 2)
            return ['ds_read_b64_tr_b16 %s, v%d offset:%d' % (vr(dst + 2 * rd, 2), self.vWr + win, sl * WSL + p * 8192 + s * 2048 + rd * 512) for rd in range(2)]

        def reads_for(n):
            out = [[xread(xbuf(n), n)], [], []]
            if gate:
                out[2] = ['s_mov_b32 vcc_lo, 0x%x' % (1 << n), 's_mov_b32 vcc_hi, 0x%x' % (1 << n)]
                out[2] += ['v_cndmask_b32 v%d, 0, v%d, vcc' % (fbuf(n) + 12 + i, self.gw + i) for i in range(4)]
            for p in range(ntile(n)):
                if not ('rd' in self.no or ('rd2' in self.no and p)):
                    out[p] += wread(fbuf(n) + 4 + 4 * p, n, p)
            return out

        def rdemit(tx):
            if tx.startswith('ds_'):
                a.ds(tx, tag='fr')
            else:
                a(tx)

        def barrier_for(c):
            a.wait_both([('w', c), ('x', c)], ['fr'])
            a('s_barrier')

        def bar_n(c):
            return max(0, 4 * c - PF)

        def chunk_bar(cb):
            barrier_for(cb)
            if cb >= 5:
                free_pieces(early_pieces(cb - 1) + (late_pieces(cb - 1) if cb - 1 < cs else []))

        items = []
        for c in range(o.pre, 8):
            e = bar_n(c - 3) if c >= 4 else 0
            e = max(e, bar_n(c - o.lead) if c >= o.lead else 0)
            for f in x_items(c) + w_items(c):
                items.append([e, bar_n(c), f])
        if defer:
            for c in range(cs, 8):
                items.append([bar_n(c - 3), 32, w_item(c, 2)])

        def flag_store(level, tags):
            self.stamp(a, 'fw%d' % level)
            a.wait_vm(*tags)
            self.stamp(a, 'fa%d' % level)
            self.dstore(a, 'buffer_store_dword v%d, v%d, %s, 0 offen offset:%d' % (self.vEpoch, self.vFlagW, srd(S_WS), 8 * (2 * level + ch)), 'flag')

        def ep_load(aa):
            aa._put('s_buffer_load_dword s%d, %s, 0%s' % (sE, srd(S_DBG), '' if aa is a else ' glc'))

        def ep_done():
            self.check(a, ep_load, ['s_cmp_lg_u32 s%d, 0' % sE])
            a('s_mov_b32 s%d, s%d' % (sE + 1, sE))
            a('v_mov_b32 v%d, s%d' % (self.vEpoch, sE))
        vIn = self.vG

        ins = ([(sIN, sGRP)] if isA else []) + ([(sIN2, sWV)] if co else [])

        def in_load(aa):
            for d, g in ins:
                aa('s_lshl_b32 s%d, s%d, 2' % (sT2, g))
                aa._put('s_buffer_load_dword s%d, %s, s%d offset:128%s' % (d, srd(S_DBG), sT2, '' if aa is a else ' glc'))

        in_cmp = ['s_cmp_eq_u32 s%d, 1' % d for d, g in ins]
        did = set()
        lstate = dict(F=0, Q=0, k=0, G=0)

        def keys_of(k):
            out = []
            for x in k:
                if x == 'q':
                    out += ['x', 'y']
                elif not (x == '5' and isb):
                    out.append(x)
            return out

        def line_of(x):
            if co and x in 'kG':
                return 'Q'
            return x if x in 'kGFQ' else 'Q' if x in 'xyq' else 'F'

        def line_load(aa, l):
            if l == 'k':
                aa._put('s_buffer_load_dwordx16 s[%d:%d], %s, s%d glc' % (sFL, sFL + 15, srd(S_WS), sKC))
            elif l == 'G':
                aa._put('s_buffer_load_dword s%d, %s, s%d offset:%d glc' % (sIN, srd(S_WS), sGF, 12 * 2048 + 5 * 8))
            elif l == 'Q' and co:
                assert 'in' in did
                aa._put('s_buffer_load_dwordx8 s[%d:%d], %s, s%d glc' % (sQL, sQL + 7, srd(S_WS), sFR))
            elif l == 'Q':
                aa._put('s_buffer_load_dwordx4 s[%d:%d], %s, s%d glc' % (sQL, sQL + 3, srd(S_WS), sFR))
            else:
                aa._put('s_buffer_load_dwordx16 s[%d:%d], %s, s%d offset:%d glc' % (sFL, sFL + 15, srd(S_WS), sFR, 8 * 2048))

        def key_cmp(x):
            if co and x == 'k':
                return ['s_cmp_eq_u32 s%d, 16' % (sQL + 4)]
            if co and x == 'G':
                return ['s_cmp_eq_u64 s[%d:%d], s[%d:%d]' % (sQL + 6, sQL + 7, sE, sE + 1)]
            if x == 'k':
                return ['s_cmp_eq_u64 s[%d:%d], s[%d:%d]' % (sFL + i, sFL + i + 1, sE, sE + 1) for i in range(0, 16, 2)]
            if x == 'G':
                return ['s_cmp_eq_u32 s%d, s%d' % (sIN, sE)]
            r = sQL + 2 * 'xy'.index(x) if x in 'xy' else sFL + 2 * int(x)
            return ['s_cmp_eq_u64 s[%d:%d], s[%d:%d]' % (r, r + 1, sE, sE + 1)]

        def poll_issue(k):
            for l in sorted(set(line_of(x) for x in k)):
                line_load(a, l)
                lstate[l] = max(lstate[l], 1)

        def lines_ready(ks):
            ls = set(line_of(x) for x in ks)
            poll_issue([l for l in ls if lstate[l] == 0])
            w = any(lstate[l] == 1 for l in ls)
            if w:
                for l in lstate:
                    lstate[l] = 2 if lstate[l] else 0
            return w

        def gate_on(k):
            ks = keys_of(k)
            if ks:
                w = lines_ready(ks)

                def load(aa):
                    for l in sorted(set(line_of(x) for x in ks)):
                        line_load(aa, l)
                self.check(a, load, sum([key_cmp(x) for x in ks], []), wait=w)
            self.stamp(a, 'P' + k[0])

        def cnt_addr(v, tmp):
            a('v_lshrrev_b32 v%d, 1, v1' % v)
            a('v_and_b32 v%d, 1, v1' % tmp)
            a('v_lshlrev_b32 v%d, 15, v%d' % (v, v))
            a('s_lshl_b32 s%d, s%d, 11' % (sT2, sGRP))
            a('v_lshl_add_u32 v%d, v%d, 10, v%d' % (v, tmp, v))
            a('s_add_u32 s%d, s%d, 0x%x' % (sT2, sT2, FLAG))

        def kv_init():
            skip = self.newlabel('noinit')
            z, u2, u3 = self.pk, self.pk + 4, self.pk + 5
            a('s_or_b32 s%d, s%d, s%d' % (sT3, sRB, sJ))
            a('s_cbranch_scc1 ' + skip)
            for i in range(4):
                a('v_mov_b32 v%d, 0' % (z + i))
            a('s_mul_i32 s%d, s%d, %d' % (sT2, sGRP, 4 * HSTR))
            a('s_add_u32 s%d, s%d, 0x%x' % (sT2, sT2, KVACC))
            for i in range(4):
                a('buffer_store_dwordx4 %s, v%d, %s, s%d offen offset:%d sc1' % (vr(z, 4), self.vL16, srd(S_WS), sT2, 1024 * i), count=False)
            a('s_add_u32 s%d, s%d, 4096' % (sT2, sT2))
            a('s_mov_b32 exec_hi, 0')
            a('buffer_store_dwordx4 %s, v%d, %s, s%d offen sc1' % (vr(z, 4), self.vL16, srd(S_WS), sT2), count=False)
            if co:
                cnt_addr(u2, u3)
                a('buffer_store_dword v%d, v%d, %s, s%d offen offset:16 sc1' % (z, u2, srd(S_WS), sT2), count=False)
            a('s_mov_b64 exec, -1')
            a.label(skip)
            a.nop(2)

        def init_pub():
            skip = self.newlabel('nopub')
            a('s_or_b32 s%d, s%d, s%d' % (sT3, sRB, sJ))
            a('s_cbranch_scc1 ' + skip)
            a('v_mov_b32 v%d, 1' % vIn)
            a('s_lshl_b32 s%d, s%d, 2' % (sT2, sGRP))
            a('buffer_store_dword v%d, v%d, %s, s%d offen offset:128 sc1' % (vIn, self.vZero, srd(S_DBG), sT2), count=False)
            a.label(skip)

        def epoch_pub():
            skip = self.newlabel('nopub')
            a('s_or_b32 s%d, s2, s%d' % (sT3, sWV))
            a('s_cbranch_scc1 ' + skip)
            a._put('s_waitcnt lgkmcnt(0)')
            a('s_or_b32 s%d, s%d, 1' % (sE, sE))
            a('s_add_u32 s%d, s%d, 2' % (sE, sE))
            a('v_mov_b32 v%d, s%d' % (vIn, sE))
            a('s_mov_b32 s%d, 0x%x' % (sT3, EOFF))
            a('buffer_store_dword v%d, v%d, %s, 0 offen sc1' % (vIn, self.vZero, srd(S_DBG)), count=False)
            a('buffer_store_dword v%d, v%d, %s, s%d offen sc1' % (vIn, self.vZero, srd(S_WS), sT3), count=False)
            a.label(skip)
            a.lgmax += 1

        def bias_mfma(p):
            def f():
                need('bias')
                need('sel')
                bb, sel = [(0, 2), (0, 0), (2, 0)][p]
                a(MFMA % (vr(acc(p), 16), vr(self.vBias + bb, 4), vr(self.vSel + sel, 4), vr(acc(p), 16)))
            return f

        extra = {n: [] for n in range(33)}
        def touch():
            need('u')
            a('s_lshl_b32 s%d, s%d, 3' % (sT2, sIDX))
            a('s_add_u32 s%d, s%d, s%d' % (sT2, sT2, sWV))
            a('v_mov_b32 v%d, 0x%x' % (self.vGv, OOB))
            a('v_lshlrev_b32 v%d, 10, v1' % (self.vGv + 1))
            a('v_cmp_gt_u32 vcc, 6, v1')
            a('s_mul_i32 s%d, s%d, 6144' % (sT3, sT2))
            a('v_cndmask_b32 v%d, v%d, v%d, vcc' % (self.vG + 1, self.vGv, self.vGv + 1))
            a('v_cmp_gt_u32 vcc, 2, v1')
            a('s_lshl_b32 s%d, s%d, 11' % (sT2, sT2))
            a('v_cndmask_b32 v%d, v%d, v%d, vcc' % (self.vGv + 1, self.vGv, self.vGv + 1))
            a('buffer_load_dword v%d, v%d, %s, s%d offen offset:%d' % (self.vGv, self.vG + 1, srd(S_U), sT3, 128 * o.tstrip), tag='touch')
            a('buffer_load_dword v%d, v%d, %s, s%d offen offset:%d' % (self.vGv + 1, self.vGv + 1, srd(S_U2), sT2, 128 * o.tstrip), tag='touch')
        if o.tn >= 0:
            extra[o.tn].append(touch)
        extra[o.ep_issue].append(lambda: ep_load(a))
        extra[o.ep_check].append(ep_done)
        for i, f in enumerate(clr):
            extra[o.clr0 + i * o.clrs].append(f)
        if clrflag and o.clrf >= 0:
            extra[o.clrf].append(lambda: (need('epi'), flag_store(0 if isA else 3, ['clr'])))
        if isA and isb:
            extra[bar_n(o.pre) + 1].append(init_pub)
        if ins:
            extra[o.ep_check + 1].append(lambda: in_load(a))
        if not isA:
            for p in range(nt):
                extra[o.bias_n + p].append(bias_mfma(p))

        if pubpath:
            epoch_pub()
        if isA and isb:
            kv_init()
        barrier_for(0)
        self.stamp(a, 'first')
        for n in range(PF):
            for grp in reads_for(n):
                for tx in grp:
                    rdemit(tx)
        credit = 0.0
        for n in range(32):
            c, s = divmod(n, 4)
            if s == 0:
                self.stamp(a, 'c%d' % c)
            nn = n + PF
            if nn % 4 == 0 and nn < 32:
                chunk_bar(nn // 4)
            rd = reads_for(nn) if nn < 32 else [[], [], []]
            rt_ = o.rate if items else o.urate
            rl = o.ratesA if isA else o.ratesF
            if rl:
                rt_ = float(rl.split(',')[(n + PF) // 4])
            credit = min(credit + rt_, 3.0)
            np_ = 3 if gate else ntile(n)
            for p in range(np_):
                xf = vr(xbuf(n), 4)
                wf = vr(fbuf(n) + 4 + 4 * p, 4)
                d = vr(acc(p), 16)
                A_, B_ = (xf, wf) if (isA and p < 2) else (wf, xf)
                rdl = rd[p] + (rd[2] if p == np_ - 1 and p < 2 else [])
                if o.mf16:
                    for h in range(2):
                        d = vr(acc(p) + 8 * (n & 1) + 4 * h, 4)
                        wf = vr(fbuf(n) + 4 + 4 * ((p - h) % np_ if p else 0), 4)
                        A_, B_ = (xf, wf) if (isA and p < 2) else (wf, xf)
                        a('v_mfma_f32_16x16x32_bf16 %s, %s, %s, %s' % (d, A_, B_, '0' if n < 2 else d))
                        if h == 0 and o.mf16 > 1:
                            k = 2 if o.mf16 == 2 else (len(rdl) + 1) // 2
                            for tx in rdl[:k]:
                                rdemit(tx)
                            rdl = rdl[k:]
                elif 'mf' not in self.no:
                    a(MFMA % (d, A_, B_, '0' if n == 0 else d))
                for tx in rdl:
                    rdemit(tx)
                k = 0
                while k < (1 if p < np_ - 1 else 3):
                    if items:
                        e, dl, f = items[0]
                        must = dl - n <= (len([x for x in items if x[1] == dl]) + 3) // 4
                        if e <= n and (credit >= 1 or must):
                            assert n < dl, (var, role, n, dl)
                            items.pop(0)
                            f()
                            credit -= 1
                            k += 1
                        else:
                            break
                    elif credit >= 1 and n >= o.ustart and u_issue():
                        credit -= 1
                        k += 1
                    else:
                        break
                drain(o.sdr)
            for it in extra[n]:
                it()
        assert not items
        drain(1000)
        self.stamp(a, 'mm1')

        def emit(op):
            if callable(op):
                op()
            elif isinstance(op, list):
                for tx, tg in op:
                    if tx.startswith('buffer_store'):
                        self.dstore(a, tx, tg)
                    else:
                        a(tx, tag=tg)
            elif op.startswith('ds_'):
                a.ds(op)
            else:
                a(op)

        kvres0 = self.fr if xr else self.kvres

        def kvres(hb):
            return kvres0 + 16 * hb

        def kv_write():
            for hb in range(2):
                src = kvres(hb) + 8 * hb
                for q in range(2):
                    a.ds('ds_write_b128 v%d, %s offset:%d' % (self.vMisc, vr(src + 4 * q, 4), hb * 2048 + q * 1024), tag='kvw')

        kad, kaz = self.gw, self.gw + 1

        def kv_reduce():
            ad, az = kad, kaz
            d = kvres0
            po = [(q - KVP[0]) * 32 for q in KVP]
            for r in range(4):
                a.ds('ds_read2st64_b32 %s, v%d offset0:%d offset1:%d' % (vr(d + 2 * r, 2), ad, po[r], po[r] + 2), tag='kvr')
            for r in range(0, 4, 2):
                a.ds('ds_read2st64_b32 %s, v%d offset0:%d offset1:%d' % (vr(d + 8 + r, 2), az, po[r], po[r + 1]), tag='kvr')
            for q in KVP:
                freep.append((q, 'kvr'))

        def kv_atomics():
            az = kaz
            d = kvres0
            a('v_pk_add_f32 %s, %s, %s' % (vr(d, 2), vr(d, 2), vr(d + 2, 2)))
            a('v_pk_add_f32 %s, %s, %s' % (vr(d + 4, 2), vr(d + 4, 2), vr(d + 6, 2)))
            a('v_pk_add_f32 %s, %s, %s' % (vr(d + 8, 2), vr(d + 8, 2), vr(d + 10, 2)))
            a('v_pk_add_f32 %s, %s, %s' % (vr(d, 2), vr(d, 2), vr(d + 4, 2)))
            a('v_add_f32 v%d, v%d, v%d' % (d + 8, d + 8, d + 9))
            if not co:
                self.check(a, in_load, in_cmp)
            for k in range(2):
                a('buffer_atomic_add_f32 v%d, v%d, %s, s%d offen offset:%d' % (d + k, az + 1, srd(S_WS), sKVB, k * 256), tag='kva')
            a('buffer_atomic_add_f32 v%d, v%d, %s, s%d offen offset:512' % (d + 8, az + 2, srd(S_WS), sKVB), tag='kva')
            self.stamp(a, 'kva')
            if not xr:
                blocks.extend([kvres(1), kvres(0)])

        def kv_count(b9=False):
            if not isb and co:
                cnt_addr(t2, t3)
                a('v_mov_b32 v%d, 1' % t3)
            elif not isb:
                a('s_lshl_b32 s%d, s%d, 11' % (sT2, sGRP))
                a('s_lshl_b32 s%d, s%d, 2' % (sT0, sRB))
                a('s_add_u32 s%d, s%d, s%d' % (sT2, sT2, sT0))
                a('s_add_u32 s%d, s%d, 0x%x' % (sT2, sT2, CNT))
                a('v_lshlrev_b32 v%d, 7, v1' % t2)
            self.stamp(a, 'fw1')
            if b9:
                a.wait_both(['kva'], ['fr'])
            else:
                a.wait_vm('kva')
            self.stamp(a, 'fa1')
            a('s_barrier')
            if not isb:
                skip = self.newlabel('nokc')
                a('s_cmp_lg_u32 s%d, 0' % sWV)
                a('s_cbranch_scc1 ' + skip)
                if co:
                    a('s_mov_b32 exec_hi, 0')
                    a('buffer_atomic_add v%d, v%d, %s, s%d offen offset:16' % (t3, t2, srd(S_WS), sT2), count=False)
                else:
                    a('s_mov_b64 exec, 0xffff')
                    a('buffer_store_dword v%d, v%d, %s, s%d offen sc1' % (self.vEpoch, t2, srd(S_WS), sT2), count=False)
                a('s_mov_b64 exec, -1')
                a.label(skip)
            self.stamp(a, 'kc')

        nring = 3
        ring0 = self.ring0
        blocks = [] if (isA or (xr and nt == 3)) else [self.kvres, self.kvres + 16]
        marks = []
        s2 = dict(rd=4 * cs, mm=4 * cs)
        if nt < 3:
            s2 = dict(rd=32, mm=32)

        def rel(b):
            return lambda: blocks.append(b)

        def s2_done():
            assert s2['mm'] == 32, 'stage 2 not finished'
        if isA:
            vmA, vmB = self.et2, self.pk2
            vq = self.phi_ops(acc(0), self.pk) + [rel(acc(0))]
            vq += ['s_mov_b32 exec_lo, 0xffff', 's_mov_b32 exec_hi, 0xffff']
            vq[-2:] = [[(x, None) for x in vq[-2:]] + [('v_cvt_pk_bf16_f32 v%d, v%d, v%d' % (vmA + j, acc(1) + 2 * j, acc(1) + 2 * j + 1), None) for j in range(8)] +
                       [('s_not_b64 exec, exec', None)] + [('v_cvt_pk_bf16_f32 v%d, v%d, v%d' % (vmB + j, acc(1) + 2 * j, acc(1) + 2 * j + 1), None) for j in range(8)] +
                       [('s_mov_b64 exec, -1', None)]]
            for vm, hb in ((vmA, 0), (vmB, 1)):
                for g in range(2):
                    vq.append(MFMA % (vr(kvres(hb), 16), vr(self.pk + 4 * g, 4), vr(vm + 4 * g, 4), '0' if g == 0 else vr(kvres(hb), 16)))
            vq += [rel(acc(1))]
            marks.append(len(vq))
            marks.append(len(vq))
            qpk = self.pk2
            if co:
                vq += [s2_done] + self.with_stores(self.phi_ops(acc(2), qpk), qpk, ch, 'st0') + [lambda: self.stamp(a, 'st0'), rel(acc(2))]
            else:
                vq += [s2_done] + self.phi_ops(acc(2), qpk) + [rel(acc(2))]
            marks.append(len(vq))
            late = [(2, lambda: flag_store(0, ['st0']))]
            vq += [rel(self.et)] + ([rel(self.et2)] if co else [])
        else:
            vq = []
            if gate:
                x, e = acc(2), self.vGv
                for w in (8, 4, 2):
                    vq += ['v_pk_add_f32 %s, %s, %s' % (vr(x + k, 2), vr(x + k, 2), vr(x + w + k, 2)) for k in range(0, w, 2)]
                vq += ['v_add_f32 v%d, v%d, v%d' % (x, x, x + 1),
                       'v_mov_b32 v%d, v%d' % (x + 1, x),
                       'v_permlane32_swap_b32 v%d, v%d' % (x, x + 1),
                       'v_add_f32 v%d, v%d, v%d' % (x, x, x + 1),
                       'v_mul_f32 v%d, 0x%x, v%d' % (e, f2u(LOG2E), x),
                       'v_min_f32 v%d, 0x%x, v%d' % (e, f2u(86.0), e),
                       'v_exp_f32 v%d, v%d' % (e, e),
                       [('buffer_store_dword v%d, v%d, %s, 0 offen' % (e, self.vMisc + 1, srd(S_WS)), 'stG')],
                       rel(acc(2))]
                gmark = len(vq)
            for p in range(nt):
                pkb = self.pk2 if p == 1 else self.pk
                if p == 2:
                    vq.append(s2_done)
                vq += self.with_stores(self.gelu_ops(acc(p), pkb, [self.et, self.et2]), pkb, 2 * p + ch, 'st%d' % p)
                vq += [lambda p=p: self.stamp(a, 'st%d' % p), rel(acc(p))]
                marks.append(len(vq))
            late = [(p, lambda p=p: flag_store(p, ['st%d' % p])) for p in range(nt)]
            if nt < 3:
                marks.append(len(vq))
            vq += [rel(self.et), rel(self.et2)]
        late = [x for x, u in zip(late, mine) if u not in SU]

        def ka_done():
            assert not isA or 'ka' in did
        vq += [ka_done, rel(self.vXr), lambda: self.stamp(a, 'epi')]
        est = dict(i=0, nf=0)

        def epi_to(j, pace=0):
            k = 0
            while est['i'] < min(j, len(vq)):
                emit(vq[est['i']])
                est['i'] += 1
                k += 1
                if pace and k % pace == 0:
                    u_issue()

        def s2buf(n):
            return (self.fr + 28 + 4 * (n % 4)) if xr else self.fr + 8 * (n % 6)

        def s2_read(k):
            while k > 0 and s2['rd'] < 32:
                n = s2['rd']
                assert n - s2['mm'] < (4 if xr else 5)
                for tx in ([] if xr else [xread(s2buf(n), n)]) + wread(s2buf(n) + 4, n, 2):
                    a.ds(tx, tag='fr')
                s2['rd'] += 1
                k -= 1

        def s2_steps(cnt, k):
            lim = marks[1]
            for _ in range(cnt):
                if s2['mm'] < 32:
                    n = s2['mm']
                    s2_read(n + o.s2pf + 1 - s2['rd'])
                    d = vr(acc(2), 16)
                    a(MFMA % (d, vr(s2buf(n) + 4, 4), vr(xbuf(n) if xr else s2buf(n), 4), d))
                    s2['mm'] += 1
                    if xr and s2['mm'] == 32:
                        blocks.extend([self.kvres, self.kvres + 16])
                    fill()
                epi_to(min(est['i'] + k, lim))

        def acc2(t, rt):
            return self.acc2 + 16 * (rt * 2 + t)

        ringc = [0]

        def u_read_next():
            assert s2['mm'] == 32 or not xr
            if ust['nr'] < 2 * NU:
                u_read(ring0 + 8 * (ringc[0] % nring))
                ringc[0] += 1

        ablk = {}

        def act_load(u, aa=None, cond=None):
            if u not in order:
                return
            sb, idx = (sAQ if u[0] == 'Q' else sAF), int(u[1])
            if aa is None:
                aa = a
                ablk[u] = blocks.pop(0)
            if idx:
                aa('s_add_u32 s%d, s%d, %d' % (sT1, sb, idx * UNIT))
                sb = sT1
            if u == 'F5':
                aa('s_add_u32 s%d, s%d, s%d' % (sT1, sT1, sO5))
            if cond is not None:
                aa('s_or_b32 s%d, s%d, s%d' % (sT1, sb, cond))
                sb = sT1
            for g in range(2):
                for rt in range(2):
                    if 'actl' not in self.no:
                        aa('buffer_load_dwordx4 %s, v%d, %s, s%d offen offset:%d sc1' % (
                            vr(ablk[u] + 8 * g + 4 * rt, 4), self.vActLd + rt, srd(S_WS), sb, 1024 * g), tag=('act', u))

        def ukey(u):
            return u[1] if u[0] == 'F' else 'xy'[int(u[1])]
        cond = {}
        cfree = [sD0, sD1, sD2, sWQ]

        def cond_load(u):
            if u not in order:
                return
            x = ukey(u)
            if lines_ready([x]):
                a.force_wait('lgkmcnt(0)')
            a(key_cmp(x)[0])
            cond[u] = cfree.pop(0)
            a('s_cselect_b32 s%d, 0, 0x%x' % (cond[u], OOB))
            act_load(u, cond=cond[u])

        def cond_fix(u):
            if u not in cond:
                return
            x = ukey(u)
            assert lstate[line_of(x)]
            ok, rt = self.newlabel('cok'), self.newlabel('cfix')
            a('s_cmp_eq_u32 s%d, 0' % cond[u])
            cfree.append(cond.pop(u))
            a('s_cbranch_scc0 ' + rt + 'i')
            a.label(ok)
            s = a.fork()
            s.lines = []
            s.vm = []
            s.label(rt + 'i')
            s('s_mov_b32 s%d, %d' % (sSPIN, o.spin))
            if o.diag:
                a.nchk = getattr(a, 'nchk', 0) + 1
                s('s_bitset1_b32 s%d, %d' % (sRC, a.nchk - 1))
            s('s_branch ' + rt + 'w')
            s.label(rt)
            s('s_sub_u32 s%d, s%d, 1' % (sSPIN, sSPIN))
            s('s_cbranch_scc1 ' + rt + 'g')
            if o.sleep:
                s('s_sleep %d' % o.sleep)
            line_load(s, line_of(x))
            s.label(rt + 'w')
            s.force_wait('lgkmcnt(0)')
            s(key_cmp(x)[0])
            s('s_cbranch_scc0 ' + rt)
            s.label(rt + 'g')
            act_load(u, aa=s)
            s('s_branch ' + ok)
            self.ool += s.lines
            dst = set(('v', r) for r in range(ablk[u], ablk[u] + 16))
            if a.vm:
                a.vm[-1]['dst'] = a.vm[-1]['dst'] | dst
            else:
                a.vm.append(dict(dst=dst, tag=('act', u)))
            self.stamp(a, 'P' + ('q' if x == 'y' else x))

        checked = set()

        def act_check(u):
            if u not in order or u in checked or u not in SU:
                return
            checked.add(u)
            b = ablk[u]

            def test(aa):
                for h, t in ((0, t0), (1, t3)):
                    r = b + 8 * h
                    aa('v_max3_u32 v%d, v%d, v%d, v%d' % (t, r, r + 1, r + 2))
                    aa('v_max3_u32 v%d, v%d, v%d, v%d' % (t, t, r + 3, r + 4))
                    aa('v_max3_u32 v%d, v%d, v%d, v%d' % (t, t, r + 5, r + 6))
                aa('v_max3_u32 v%d, v%d, v%d, v%d' % (t0, t0, b + 7, b + 15))
                aa('v_max_u32 v%d, v%d, v%d' % (t0, t0, t3))
                aa('v_cmp_eq_u32 vcc, -1, v%d' % t0)
                aa.nop(1)
            ok, rt = self.newlabel('xok'), self.newlabel('xfix')
            test(a)
            a('s_cbranch_vccnz ' + rt + 'i')
            a.label(ok)
            s = a.fork()
            s.lines = []
            s.vm = []
            s.label(rt + 'i')
            s('s_mov_b32 s%d, %d' % (sSPIN, o.spin))
            if o.diag:
                a.nchk = getattr(a, 'nchk', 0) + 1
                s('s_bitset1_b32 s%d, %d' % (sRC, a.nchk - 1))
            s.label(rt)
            s('s_sub_u32 s%d, s%d, 1' % (sSPIN, sSPIN))
            s('s_cbranch_scc1 ' + rt + 'g')
            if o.xsleep:
                s('s_sleep %d' % o.xsleep)
            act_load(u, aa=s)
            s.force_wait('vmcnt(0)')
            test(s)
            s('s_cbranch_vccnz ' + rt)
            s.label(rt + 'g')
            later = [w for w in order if w in ablk and w not in checked and w in SU][:o.rl]
            for w in later:
                act_load(w, aa=s)
                dst = set(('v', r) for r in range(ablk[w], ablk[w] + 16))
                if a.vm:
                    a.vm[-1]['dst'] = a.vm[-1]['dst'] | dst
                else:
                    a.vm.append(dict(dst=dst, tag=('act', w)))
            s.nop(2)
            s('s_branch ' + ok)
            self.ool += s.lines
            self.stamp(a, 'X' + u)

        def g_load():
            a('buffer_load_dword v%d, v%d, %s, 0 offen sc1' % (self.vG, self.vGa, srd(S_WS)), tag='g')
            if co:
                a('v_xor_b32 v%d, 128, v%d' % (self.vGa, self.vGa))
                a('buffer_load_dword v%d, v%d, %s, 0 offen sc1' % (self.vG + 1, self.vGa, srd(S_WS)), tag='g')

        kvb = []

        def kv_load():
            for i in range(2 if co else 1):
                kvb.append(blocks.pop(0))
                for h in range(2):
                    for q in range(2):
                        a('buffer_load_dwordx4 %s, v%d, %s, 0 offen offset:%d sc1' % (vr(kvb[i] + 8 * h + 4 * q, 4), self.vKV, srd(S_WS), (2 * i + h) * HSTR + q * QSTR), tag='kv')

        def o_queue(i):
            u = 'Q%d' % i
            assert kvb and 'lg' in did and u in ablk
            nd = {}

            def take(k):
                return lambda: nd.__setitem__(k, blocks.pop(0))

            def mf(g, rt):
                return lambda: a(MFMA % (vr(nd[rt], 16), vr(kvb[i] + 8 * g, 4), vr(ablk[u] + 8 * g + 4 * rt, 4), '0'))

            def va(g, rt):
                ops = ['v_add_f32 v{d}, 0x%x, v{d}' % f2u(1e-6), 'v_rcp_f32 v{d}, v{d}', 'v_mul_f32 v{d}, v{d}, v%d' % (self.vG + rt)]
                out = [lambda t=t: a(t.format(d=nd[rt] + 8)) for t in ops]
                out += [lambda k=k: a('v_pk_mul_f32 %s, %s, %s op_sel_hi:[1,0]' % (vr(nd[rt] + k, 2), vr(nd[rt] + k, 2), vr(nd[rt] + 8, 2))) for k in range(0, 8, 2)]
                out += [lambda k=k: a('v_cvt_pk_bf16_f32 v%d, v%d, v%d' % (ablk[u] + 8 * g + 4 * rt + k, nd[rt] + 2 * k, nd[rt] + 2 * k + 1)) for k in range(4)]
                return out

            def cv(g):
                b = kvb[i] + 8 * g
                return ['v_cvt_pk_bf16_f32 v%d, v%d, v%d' % (b + k, b + 2 * k, b + 2 * k + 1) for k in range(4)]
            vq.extend([lambda: (cond_fix(u), act_check(u), take(0)(), take(1)())] + cv(0) + [mf(0, 0), mf(0, 1)] + cv(1) + va(0, 0) + [mf(1, 0)] + va(0, 1) + [mf(1, 1)] +
                      va(1, 0) + va(1, 1) + [lambda: (blocks.extend([nd[0], nd[1], kvb[i]]), did.add('O%d' % i), self.stamp(a, 'O%d' % i))])

        def o_make():
            assert est['i'] == len(vq)
            nd = [blocks.pop(0), blocks.pop(0)]
            for h in range(2):
                b = kvb[0] + 8 * h
                for k in range(4):
                    a('v_cvt_pk_bf16_f32 v%d, v%d, v%d' % (b + k, b + 2 * k, b + 2 * k + 1))
            for h in range(2):
                a(MFMA % (vr(nd[h], 16), vr(kvb[0] + 8 * h, 4), vr(qpk + 4 * h, 4), '0'))
            for h in range(2):
                b = nd[h]
                den = b + 8
                a('v_add_f32 v%d, 0x%x, v%d' % (den, f2u(1e-6), den))
                a('v_rcp_f32 v%d, v%d' % (den, den))
                a('v_mul_f32 v%d, v%d, v%d' % (den, den, self.vGv))
                a('v_mov_b32 v%d, v%d' % (den + 1, den))
                for k in range(0, 8, 2):
                    a('v_pk_mul_f32 %s, %s, %s' % (vr(b + k, 2), vr(b + k, 2), vr(den, 2)))
                ob = self.et2 + 4 * h
                for k in range(4):
                    a('v_cvt_pk_bf16_f32 v%d, v%d, v%d' % (ob + k, b + 2 * k, b + 2 * k + 1))
                emit(self.st_op(ob, ch, h, 'st0'))
            blocks.extend(nd + kvb + [self.et2])
            self.stamp(a, 'st0')

        def fill():
            u_issue()

        def f_unit(u, ek=0):
            if u not in order:
                return
            cond_fix(u)
            act_check(u)
            assert not (co and u[0] == 'Q') or 'O' + u[1] in did
            m = order.index(u)
            assert m == ust.get('cons', 0) and s2['mm'] == 32 and (not isA or 'ka' in did)
            ust['cons'] = m + 1
            for g in range(2):
                h = 2 * m + g
                while ust['nr'] <= min(h + o.upf, 2 * NU - 1) and 2 * ust['nr'] + 1 < ust['ni'] or ust['nr'] <= h:
                    while 2 * ust['nr'] + 1 >= ust['ni']:
                        assert u_issue()
                    u_read_next()
                for rt in range(2):
                    for t in range(2):
                        dd = vr(acc2(t, rt), 16)
                        a(MFMA % (dd, vr(ufr[h] + 4 * t, 4), vr(ablk[u] + 8 * g + 4 * rt, 4), '0' if h == 0 else dd))
                        fill()
                        epi_to(est['i'] + ek)
            blocks.append(ablk[u])

        V = 'A' if isA else 'F'
        for tok in (getattr(o, 'head' + V + role) + ' ' + (getattr(o, 'script' + V + role) or getattr(o, 'script' + V))).split():
            if tok == 'f':
                if late:
                    assert ('o' in did) if (isA and not co) else est['i'] >= marks[late[0][0]]
                    late.pop(0)[1]()
            elif tok == 'fc':
                if clrflag and o.clrf < 0:
                    flag_store(0 if isA else 3, ['clr'])
                did.add(tok)
            elif tok == 'fG':
                if gate:
                    assert est['i'] >= gmark
                    if co:
                        a.wait_vm('stG')
                        self.stamp(a, 'fa2')
                        self.dstore(a, 'buffer_store_dword v%d, v%d, %s, 0 offen' % (self.vEpoch, self.vMisc, srd(S_WS)), 'flag')
                    else:
                        flag_store(2, ['stG'])
                did.add(tok)
            elif tok == 'B8':
                a.wait_both([('w2',)], ['fr', 'kvw'])
                if co:
                    self.check(a, in_load, in_cmp)
                    did.add('in')
                a('s_barrier')
                free_pieces(early_pieces(7) + (late_pieces(7) if cs > 7 else []))
                a.lgmax = min(a.lgmax, 13)
                if 'kw' in did:
                    did.add('kwb')
                did.add(tok)
                self.stamp(a, tok)
            elif tok == 'B9k':
                assert s2['rd'] == 32 and 'B8' in did and 'ka' in did
                kv_count(True)
                for c in range(cs, 8):
                    free_pieces(late_pieces(c))
                did.update(['B9', 'kc'])
            elif tok == 'Gk':
                a.force_wait('lgkmcnt(0)')
                for l in lstate:
                    lstate[l] = 2 if lstate[l] else 0
                if not isb:
                    skip = self.newlabel('nopoll')
                    a('s_cmp_lg_u32 s%d, 0' % sWV)
                    a('s_cbranch_scc1 ' + skip)
                    st = self.o.stamps
                    self.o.stamps = ''
                    a.noflush = True
                    sv = dict(lstate)
                    gate_on('k')
                    lstate.update(sv)
                    lstate['F'] = 0
                    a.noflush = False
                    self.o.stamps = st
                    a.label(skip)
                a('s_barrier')
                self.stamp(a, 'Pk')
            elif tok == 'Bk':
                assert 'kw' in did and 'B8' in did
                a.wait_lg('kvw')
                a('s_barrier')
                did.add('kwb')
                self.stamp(a, tok)
            elif tok == 'B9':
                assert s2['rd'] == 32 and 'B8' in did
                if cs < 8:
                    a.wait_lg('fr', 'kvw')
                    a('s_barrier')
                    if 'kw' in did:
                        did.add('kwb')
                for c in range(cs, 8):
                    free_pieces(late_pieces(c))
                did.add(tok)
                self.stamp(a, tok)
            elif tok[0] == 'e':
                tk, pace = (tok.split('/') + ['0'])[:2]
                epi_to(len(vq) if tk == 'e' else est['i'] + int(tk[2:]) if tk[1] == '+' else marks[int(tk[1:])], int(pace))
            elif tok[0] == 'm':
                assert 'B8' in did or not defer
                cnt, k = tok[1:].split(':')
                s2_steps(int(cnt), int(k))
            elif tok[0] == 'R':
                assert 'B8' in did or not defer
                s2_read(int(tok[1:]))
            elif tok in ('kw', 'kr', 'ka', 'kc'):
                assert est['i'] >= marks[0] and (tok == 'kw' or 'kwb' in did)
                {'kw': kv_write, 'kr': kv_reduce, 'ka': kv_atomics, 'kc': kv_count}[tok]()
                did.add(tok)
            elif tok[0] == 'O':
                o_queue(int(tok[1]))
            elif tok == 'o':
                o_make()
                did.add(tok)
            elif tok[0] == 'p':
                assert 'B8' in did
                poll_issue(tok[1:])
            elif tok[0] == 'u':
                for _ in range(int(tok[1:] or 1)):
                    u_issue()
            elif tok == 'U':
                while u_issue():
                    pass
            elif tok[0] == 's':
                a('s_setprio %s' % tok[1:])
            elif tok == 'r':
                if 2 * ust['nr'] + 1 < ust['ni'] and ust['nr'] < 2 * ust.get('cons', 0) + nring:
                    u_read_next()
            elif tok[0] == 'g':
                gate_on(tok[1:])
                did.update('g' + x for x in keys_of(tok[1:]))
            elif tok[0] == 'l':
                k = tok[1:]
                if k == 'g':
                    assert ('gG' in did) if co else (not SU & {'Q0', 'Q1'} or 'Q0' in checked or 'Q1' in checked)
                    g_load()
                    did.add(tok)
                elif k == 'k':
                    assert not co or 'gk' in did
                    kv_load()
                elif k == 'G':
                    a('buffer_load_dword v%d, v%d, %s, 0 offen sc1' % (self.vGv, self.vMisc + 1, srd(S_WS)), tag='g')
                else:
                    assert k not in order or 'g' + (ukey(k) if k not in SU or k[0] == 'Q' else '67'[int(k[1]) & 1]) in did, (var, role, k)
                    act_load(k)
            elif tok[0] == 'D':
                a('s_lshl_b32 s%d, s2, 3' % sT0)
                a('s_add_u32 s%d, s%d, s%d' % (sT0, sT0, sWV))
                a('s_lshl_b32 s%d, s%d, 7' % (sT0, sT0))
                if tok[1] == '1':
                    a._put('s_buffer_load_dword s%d, %s, s%d offset:0x%x glc' % (sSPIN, srd(S_WS), sT0, 0x740000 - 0x700000 + 0x80000))
                elif tok[1] == '2':
                    a._put('s_buffer_load_dword s%d, %s, s%d glc' % (sSPIN, srd(S_U), sT0))
                elif tok[1] == '3':
                    a('s_add_u32 s%d, s%d, 0x%x' % (sT0, sT0, 0x880000))
                    a._put('s_buffer_load_dword s%d, %s, s%d glc' % (sSPIN, srd(S_WS), sT0))
                a.force_wait('lgkmcnt(0)')
                self.stamp(a, tok)
            elif tok[0] == 'c':
                cond_load(tok[1:])
            elif tok[0] == 'v':
                cond_fix(tok[1:])
            elif tok[0] == 'x':
                act_check(tok[1:])
            elif tok[0] == 't':
                self.stamp(a, tok)
            elif tok == 'w':
                a.wait_all(lg=False)
            elif tok[0] in 'FQ':
                tk, ek = (tok.split(':') + ['0'])[:2]
                f_unit(tk, int(ek))
                self.stamp(a, tk)
            else:
                raise ValueError(tok)
        assert est['i'] == len(vq) and not late and ust['nr'] == 2 * NU and 'B9' in did and (not isA or 'kc' in did) and (not gate or 'fG' in did) and (not clrflag or o.clrf >= 0 or 'fc' in did)
        self.stamp(a, 'mm')
        if o.wb and not isb:
            L = self.newlabel('wb')
            a('s_cmp_lt_u32 s%d, %d' % (sIDX, o.wb))
            a('s_cselect_b32 s%d, s%d, 1' % (sT0, sWV))
            a('s_cmp_lg_u32 s%d, 0' % sT0)
            a('s_cbranch_scc1 ' + L)
            a._put('buffer_wbl2 sc1')
            a.label(L)
        rho = ch

        def kidx(n, hh):
            return max(2 * n + hh - 1, 0)
        a('v_add_u32 v%d, s%d, v%d' % (t2, sP, self.vL16))
        a('v_add_u32 v%d, 0x10000, v%d' % (t3, t2))
        a.wait_all(vm=False)
        for n in (1, 0, 2, 3):
            for hh in range(2):
                if n == 0 and hh == rho:
                    continue
                k = kidx(n, hh)
                for q in range(2):
                    a.ds('ds_write_b128 v%d, %s offset:%d' % (t3 if k >= 4 else t2, vr(self.acc2 + 16 * n + 8 * hh + 4 * q, 4), ((2 * k + q) & 7) * 8192), tag='red')
        a('s_lshl_b32 s%d, s%d, 10' % (sT0, sJ))
        a('v_add_u32 v%d, s%d, v%d' % (t2, sT0, self.vL16))
        for n in range(4):
            a('v_xor_b32 v%d, 0x%x, v%d' % (self.vUr + n, kidx(n, rho) * 16384 + n * 1024, t2))
        a('s_lshl_b32 s%d, s%d, 1' % (sT0, sRT))
        a('s_lshr_b32 s%d, s%d, 1' % (sT1, sJ))
        a('s_add_u32 s%d, s%d, s%d' % (sT0, sT0, sT1))
        a('s_lshl_b32 s%d, s%d, 15' % (sT0, sT0))
        a('s_lshl_b32 s%d, s%d, 7' % (sT1, sCT))
        a('s_add_u32 s%d, s%d, s%d' % (sT0, sT0, sT1))
        a('s_and_b32 s%d, s%d, 1' % (sT1, sJ))
        a('s_lshl_b32 s%d, s%d, 6' % (sT1, sT1))
        a('s_add_u32 s%d, s%d, s%d' % (sT0, sT0, sT1))
        a('v_lshrrev_b32 v%d, 5, v1' % t3)
        a('v_lshlrev_b32 v%d, 4, v%d' % (t3, t3))
        a('v_and_b32 v%d, 31, v1' % t1)
        a('v_lshl_add_u32 v%d, v%d, 10, v%d' % (t3, t1, t3))
        a('v_add_f32 v%d, 1.0, v%d' % (self.vG, self.vG))
        a('v_rcp_f32 v%d, v%d' % (self.vG, self.vG))
        own = self.acc2 + 8 * rho
        ob = 164
        for k in range(4):
            a('v_lshlrev_b32 v%d, 16, v%d' % (ob + 2 * k, self.vB2 + k))
            a('v_and_b32 v%d, 0xffff0000, v%d' % (ob + 2 * k + 1, self.vB2 + k))
        for k in range(0, 8, 2):
            a('v_pk_add_f32 %s, %s, %s' % (vr(own + k, 2), vr(own + k, 2), vr(ob + k, 2)))
        a('v_mov_b32 v%d, v%d' % (self.vG + 1, self.vG))
        a.wait_lg('red')
        self.stamp(a, 'wr')
        a('s_barrier')
        self.stamp(a, 'bar')
        rb_ = 100
        srcs = [(rs, n) for rs in range(2) for n in range(4) if not (rs == rho and n == 0)]
        for q in range(2):
            for i, (rs, n) in enumerate(srcs):
                a.ds('ds_read_b128 %s, v%d offset:%d' % (vr(rb_ + 8 * i + 4 * q, 4), self.vUr + n, rs * 4096 + q * 8192))
        for q in range(2):
            for i in range(7):
                for k in range(4 * q, 4 * q + 4, 2):
                    a('v_pk_add_f32 %s, %s, %s' % (vr(own + k, 2), vr(own + k, 2), vr(rb_ + 8 * i + k, 2)))
            for k in range(4 * q, 4 * q + 4, 2):
                a('v_pk_mul_f32 %s, %s, %s' % (vr(own + k, 2), vr(own + k, 2), vr(self.vG, 2)))
            for k in range(2 * q, 2 * q + 2):
                a('v_cvt_pk_bf16_f32 v%d, v%d, v%d' % (ob + k, own + 2 * k, own + 2 * k + 1))
        a('v_permlane32_swap_b32 v%d, v%d' % (ob, ob + 2))
        a('v_permlane32_swap_b32 v%d, v%d' % (ob + 1, ob + 3))
        a('buffer_store_dwordx4 %s, v%d, %s, s%d offen offset:%d%s' % (vr(ob, 4), t3, srd(S_OUT), sT0, 32 * rho, o.outpol))
        if o.diag:
            self.stamp(a, 'end')
            a._put('s_memrealtime s[86:87]')
            a.force_wait('lgkmcnt(0)')
            names = o.stamps.split(',')
            self.flush(a)
            a('v_writelane_b32 v%d, s100, 25' % self.vStamp)
            a('v_writelane_b32 v%d, s%d, 26' % (self.vStamp, sRC))
            a('v_writelane_b32 v%d, s86, 31' % self.vStamp)
            a('v_writelane_b32 v%d, s98, 29' % self.vStamp)
            a('s_mov_b32 s%d, %d' % (sT0, 'FGA'.index(var) * 2 + ch))
            a('v_writelane_b32 v%d, s%d, 30' % (self.vStamp, sT0))
            a('s_getreg_b32 s%d, hwreg(HW_REG_XCC_ID)' % sT0)
            a('v_writelane_b32 v%d, s%d, 28' % (self.vStamp, sT0))
            a('s_lshl_b32 s%d, s2, 3' % sT0)
            a('s_add_u32 s%d, s%d, s%d' % (sT0, sT0, sWV))
            a('s_lshl_b32 s%d, s%d, 7' % (sT0, sT0))
            a('s_add_u32 s%d, s%d, 0x%x' % (sT0, sT0, STAMP))
            a('v_lshlrev_b32 v%d, 2, v1' % t2)
            a('v_cmp_gt_u32 vcc, 32, v1')
            a('v_mov_b32 v%d, 0x40000000' % t3)
            a('v_cndmask_b32 v%d, v%d, v%d, vcc' % (t2, t3, t2))
            a('buffer_store_dword v%d, v%d, %s, s%d offen' % (self.vStamp, t2, srd(S_WS), sT0))
            self.stampnames = names
        a('s_endpgm')
        for l in self.ool:
            a.raw(l)
        self.ool = []
        if o.verbose:
            print(var + role, 'insts', a.ninst, 'nop states', a.nnop, a.stats)

    def build(self):
        self.prologue()
        for pth in ['Fa', 'Aa', 'Ab', 'Fb', 'Gb']:
            self.path(pth[0], pth[1])
        self.a.label('L_end')
        self.a.raw('    s_endpgm')
        ref = open('cdna_kernels/%s.s.ref' % NAME).read().split('\n')
        head = [l for l in ref if l.startswith(';') and '@launch' not in l]
        out = '\n'.join(head) + '\n; generated by tools/gen4.py\n'
        out += '; @launch grid=(256,1,1) block=(512,1,1) lds=163840\n'
        out += '.amdgcn_target "amdgcn-amd-amdhsa--gfx950"\n.text\n.globl %s_kernel\n.p2align 8\n.type %s_kernel,@function\n' % (NAME, NAME)
        out += self.a.text()
        out += '''.section .rodata,"a"
.p2align 6
.amdhsa_kernel %s_kernel
  .amdhsa_next_free_vgpr 256
  .amdhsa_next_free_sgpr 102
  .amdhsa_accum_offset 256
  .amdhsa_group_segment_fixed_size 0
  .amdhsa_kernarg_size 96
  .amdhsa_user_sgpr_count 2
  .amdhsa_user_sgpr_kernarg_segment_ptr 1
  .amdhsa_system_sgpr_workgroup_id_x 1
.end_amdhsa_kernel
''' % NAME
        return out


def parse(argv=None):
    ap = argparse.ArgumentParser()
    ap.add_argument('-o', default='cdna_kernels/%s.s' % NAME)
    ap.add_argument('--diag', action='store_true')
    ap.add_argument('--verbose', action='store_true')
    ap.add_argument('--pre', type=int, default=2)
    ap.add_argument('--lead', type=int, default=3)
    ap.add_argument('--rate', type=float, default=1.5)
    ap.add_argument('--urate', type=float, default=1.25)
    ap.add_argument('--ustart', type=int, default=0)
    ap.add_argument('--csA', type=int, default=4)
    ap.add_argument('--csF', type=int, default=8)
    ap.add_argument('--dlA', type=int, default=1)
    ap.add_argument('--dlF', type=int, default=0)
    ap.add_argument('--sdpa', type=int, default=0)
    ap.add_argument('--sdpb', type=int, default=0)
    ap.add_argument('--sd0a', type=int, default=30)
    ap.add_argument('--sd0b', type=int, default=0)
    ap.add_argument('--sd1', type=int, default=20)
    ap.add_argument('--sdr', type=int, default=2)
    ap.add_argument('--bias_n', type=int, default=17)
    ap.add_argument('--ep_issue', type=int, default=14)
    ap.add_argument('--ep_check', type=int, default=17)
    ap.add_argument('--s2pf', type=int, default=2)
    ap.add_argument('--upf', type=int, default=2)
    ap.add_argument('--order', default='F0,F2,F4,F1,F3,F5,Q0,Q1')
    ap.add_argument('--scriptF', default='g02 f lF0 lF2 g4 lF4 p1 F0 g1 lF1 p3 F2 g3 lF3 p5 F4 g5 lF5 F1 pq F3 gq lQ0 lQ1 lg F5 Q0 Q1')
    ap.add_argument('--scriptA', default='g024 f lF0 lF2 lF4 p1 F0 g1 lF1 p3 F2 g3 lF3 p5 F4 g5 lF5 F1 pq F3 gq lQ0 lQ1 lg F5 Q0 Q1')
    for v in ('Fa', 'Fb', 'Aa', 'Ab'):
        ap.add_argument('--script' + v, default='')
    ap.add_argument('--headFa', default='e+30 B8 B9 e0/16 e+50/16 f r r r e1/16 e+50/16 f e/16')
    ap.add_argument('--headFb', default='e+18 B8 B9 U e+40 fG r r r e0/12 e+50/12 f e1/12 e+50 f e')
    ap.add_argument('--headAa', default='e+30 B8 m16:3 e0 kw B9 kr u2 ka e/8 kc u6 gkG lk lG u4 o')
    ap.add_argument('--headAb', default='e+30 B8 m16:3 e0 kw B9 kr u2 ka e/8 kc u6 gkG lk lG u4 o')
    ap.add_argument('--outpol', default='')
    ap.add_argument('--spin', type=int, default=20000)
    ap.add_argument('--sleep', type=int, default=1)
    ap.add_argument('--stamps', default='mm1,B8,B9,epi,kc,Pk,st0,fa0,P0,P4,P1,P3,P5,Pq,mm,end')
    ap.add_argument('--no', default='')
    ap.add_argument('--loc', type=int, default=0)
    ap.add_argument('--spol', default=' sc1')
    ap.add_argument('--dual', type=int, default=0)
    ap.add_argument('--wb', type=int, default=0)
    ap.add_argument('--soft', default='')
    ap.add_argument('--ksleep', type=int, default=0)
    ap.add_argument('--dotp', type=int, default=0)
    ap.add_argument('--swap', type=int, default=0)
    ap.add_argument('--xr', type=int, default=0)
    ap.add_argument('--sent', default='')
    ap.add_argument('--co', type=int, default=0)
    ap.add_argument('--clr0', type=int, default=-1)
    ap.add_argument('--clrs', type=int, default=1)
    ap.add_argument('--clrf', type=int, default=20)
    ap.add_argument('--rl', type=int, default=2)
    ap.add_argument('--xsleep', type=int, default=0)
    ap.add_argument('--ratesA', default='')
    ap.add_argument('--ratesF', default='')
    ap.add_argument('--mf16', type=int, default=0)
    ap.add_argument('--mix', type=int, default=0)
    ap.add_argument('--rot1', type=int, default=0)
    ap.add_argument('--rot1m', type=int, default=1)
    ap.add_argument('--tn', type=int, default=-1)
    ap.add_argument('--tstrip', type=int, default=3)
    return ap.parse_args(argv)


if __name__ == '__main__':
    o = parse()
    g = Gen(o)
    txt = g.build()
    open(o.o, 'w').write(txt)
    if o.diag:
        print('stamps:', g.stampnames)
        open(o.o[:-2] + '.stamps', 'w').write(' '.join(g.stampnames))
    print('wrote', o.o, len(txt), 'bytes')
```

```python
import sys, os, struct, argparse
sys.path.insert(0, os.path.dirname(os.path.abspath(__file__)))
from asmlib import Asm

NAME = "gated_mix__linear_attn_block__dense_activation_gelu__prompt"

UNIT = 131072
KVACC = 0x780000
HSTR, QSTR = 1152, 576
CNT = 0x78A000
GOFF = 0x790000
STAMP = 0x7C0000
FLAG = 0x800000
EOFF = 0x900000
WS_SIZE = 0x900080
OOB = 0x40000000

W_BASE = 65536
XS, WSL = 16384, 24576
KVP = [8, 9, 11, 12]
NCNT = 32


def f2u(x):
    return struct.unpack('<I', struct.pack('<f', x))[0]


LOG2E = 1.4426950408889634
GC0 = -2.0 * 0.7978845608028654 * LOG2E
GC1 = GC0 * 0.044715

S_X, S_WA, S_M1, S_M2, S_WF, S_WS, S_U, S_OUT, S_DBG, S_U2 = 4, 8, 12, 16, 20, 24, 28, 32, 36, 40
sWV, sJ, sRB, sCG, sGRP, sRT, sCT, sP, sXQ, sWQ = range(64, 74)
sT0, sT1, sT2, sT3, sT4 = range(74, 79)
sD0, sD1, sD2 = 79, 80, 81
sC1, sONE = 82, 84
sUST, sUF, sUQ, sAF, sAQ, sO5 = range(86, 92)
sXCD, sIDX = 92, 93
sE, sFR, sRC = 94, 96, 97
sKVB = sT4
sCOL = 3
sROT, sROT2 = 62, 63
sSPIN, sIN = 0, 1
sGF, sKC = sONE, sONE + 1
sFL, sQL = 4, 20


def srd(n):
    return 's[%d:%d]' % (n, n + 3)


def vr(b, n):
    return 'v[%d:%d]' % (b, b + n - 1)


MFMA = 'v_mfma_f32_32x32x16_bf16 %s, %s, %s, %s'


class Gen:
    def __init__(self, opt):
        self.o = opt
        self.a = Asm()
        self.lbl = 0
        self.no = set(opt.no.split(','))
        self.vL16, self.vStamp, self.vUd = 2, 3, 4
        self.vUr = 5
        self.vActLd = 11
        self.vFlagW, self.vEpoch = 13, 17
        self.vG = 18
        self.vTmp = 20
        self.vB2 = 24
        self.vActSt = 28
        self.vGa = 29
        self.vGv = 30
        self.vKV = 32
        self.vZero = 33
        self.vMisc = 34
        self.acc2 = 36
        self.fr = 36
        self.vBias = 84
        self.vSel = 90
        self.vXd = 96
        self.vWd = 98
        self.acc = 100
        self.et = 148
        self.pk = 156
        self.et2 = 164
        self.pk2 = 172
        self.vXr = 180
        self.vWr = 184
        self.vC0 = 186
        self.gw = 188
        self.kvres = 196
        self.ring0 = 228
        self.ool = []

    def newlabel(self, s):
        self.lbl += 1
        return 'L%s_%d' % (s, self.lbl)

    def stamp(self, a, name):
        if not self.o.diag:
            return
        for nm, ins in (('R' + name, 's_memrealtime'), (name, 's_memtime')):
            if nm in self.o.stamps.split(','):
                if not a.stpool:
                    a.force_wait('lgkmcnt(0)')
                    self.flush(a)
                r = a.stpool.pop(0)
                a.stampn.append((nm, r))
                a._put('%s s[%d:%d]' % (ins, r, r + 1))

    def flush(self, a):
        names = self.o.stamps.split(',')
        for nm, r in a.stampn:
            a('v_writelane_b32 v%d, s%d, %d' % (self.vStamp, r, names.index(nm)))
            a.stpool.append(r)
        a.stampn = []

    def dstore(self, a, text, tag):
        if not self.o.dual:
            a(text + self.o.spol, tag=tag)
            return
        L = self.newlabel('ds')
        a('s_cmp_lg_u32 s%d, 0' % sMODE)
        a(text, tag=tag)
        st = a.lines.pop()
        a._put('s_cbranch_scc1 %ss' % L)
        a.lines.append(st)
        a.label(L + 'b')
        self.ool += [L + 's:', '    ' + text + ' sc1', '    s_branch %sb' % L]

    def prologue(self):
        a, o = self.a, self.o
        a.label(NAME + '_kernel')
        a('s_cmp_ge_u32 s2, 256')
        a('s_cbranch_scc1 L_end')
        for d, off in ((S_X, 0), (S_WA, 8), (S_WF, 32), (S_WS, 88)):
            a._put('s_load_dwordx2 s[%d:%d], s[0:1], %d' % (d, d + 1, off))
        if o.diag:
            a._put('s_memtime s[100:101]')
            a._put('s_memrealtime s[98:99]')
        a('v_lshrrev_b32 v1, 6, v0')
        a('s_and_b32 s%d, s2, 7' % sXCD)
        a('v_readfirstlane_b32 s%d, v1' % sWV)
        a('s_lshr_b32 s%d, s2, 3' % sIDX)
        a('v_and_b32 v1, 63, v0')
        if o.loc:
            a('s_lshl_b32 s%d, s%d, 1' % (sRB, sXCD))
            a('s_and_b32 s%d, s%d, 1' % (sT2, sIDX))
            a('s_add_u32 s%d, s%d, s%d' % (sRB, sRB, sT2))
            a('s_lshr_b32 s%d, s%d, 1' % (sCG, sIDX))
        else:
            a('s_and_b32 s%d, s%d, 1' % (sRB, sXCD))
            a('s_lshl_b32 s%d, s%d, 3' % (sRB, sRB))
            a('s_and_b32 s%d, s%d, 7' % (sT2, sIDX))
            a('s_add_u32 s%d, s%d, s%d' % (sRB, sRB, sT2))
            if o.mix:
                a('s_and_b32 s%d, s%d, 6' % (sCG, sXCD))
                a('s_bfe_u32 s%d, s%d, 0x10003' % (sT2, sIDX))
                a('s_add_u32 s%d, s%d, s%d' % (sCG, sCG, sT2))
                a('s_lshr_b32 s%d, s%d, 1' % (sT2, sIDX))
                a('s_and_b32 s%d, s%d, 8' % (sT2, sT2))
                a('s_add_u32 s%d, s%d, s%d' % (sCG, sCG, sT2))
                if o.swap:
                    a('s_xor_b32 s%d, s%d, %d' % (sCG, sCG, 4 * o.swap))
            else:
                a('s_lshr_b32 s%d, s%d, 1' % (sCG, sXCD))
                if o.swap:
                    a('s_xor_b32 s%d, s%d, %d' % (sCG, sCG, o.swap))
                a('s_lshl_b32 s%d, s%d, 2' % (sCG, sCG))
                a('s_lshr_b32 s%d, s%d, 3' % (sT2, sIDX))
                a('s_add_u32 s%d, s%d, s%d' % (sCG, sCG, sT2))
        a('s_and_b32 s%d, s%d, 7' % (sGRP, sCG))
        a('s_cmp_lt_u32 s%d, 4' % sWV)
        a('s_cbranch_scc1 L_rolea')
        a('s_cmp_lt_u32 s%d, 8' % sCG)
        a('s_cbranch_scc1 L_pathAb')
        a('s_cmp_lt_u32 s%d, 11' % sCG)
        a('s_cbranch_scc1 L_pathFb')
        a('s_branch L_pathGb')
        a.label('L_rolea')
        a('s_cmp_lt_u32 s%d, 8' % sCG)
        a('s_cbranch_scc1 L_pathAa')

    @staticmethod
    def fstart(dst, g, tmp):
        return ['s_mul_i32 s%d, s%d, 5' % (dst, g), 's_min_u32 s%d, s%d, 3' % (tmp, g), 's_add_u32 s%d, s%d, s%d' % (dst, dst, tmp)]

    def gelu_ops(self, accb, pkb, ets):
        ops = []
        if 'epi' in self.no:
            return ops
        for q in range(0, 16, 8):
            et = ets[q // 8]
            xs = [accb + q + 2 * i for i in range(4)]
            ts = [et + 2 * i for i in range(4)]
            for x, t in zip(xs, ts):
                ops.append('v_pk_mul_f32 %s, %s, %s' % (vr(t, 2), vr(x, 2), vr(x, 2)))
            for x, t in zip(xs, ts):
                ops.append('v_pk_fma_f32 %s, %s, s[%d:%d], %s' % (vr(t, 2), vr(t, 2), sC1, sC1 + 1, vr(self.vC0, 2)))
            for x, t in zip(xs, ts):
                ops.append('v_pk_mul_f32 %s, %s, %s' % (vr(t, 2), vr(t, 2), vr(x, 2)))
            for i in range(8):
                ops.append('v_exp_f32 v%d, v%d' % (et + i, et + i))
            for t in ts:
                ops.append('v_pk_add_f32 %s, %s, s[%d:%d]' % (vr(t, 2), vr(t, 2), sONE, sONE + 1))
            for i in range(8):
                ops.append('v_rcp_f32 v%d, v%d' % (et + i, et + i))
            for x, t in zip(xs, ts):
                ops.append('v_pk_mul_f32 %s, %s, %s' % (vr(t, 2), vr(t, 2), vr(x, 2)))
            for j, t in enumerate(ts):
                ops.append('v_cvt_pk_bf16_f32 v%d, v%d, v%d' % (pkb + q // 2 + j, t, t + 1))
        return ops

    def phi_ops(self, accb, pkb):
        et = self.et
        ops = []
        if 'epi' in self.no:
            return ops
        for q in range(0, 16, 8):
            ops += ['v_pk_mul_f32 %s, %s, s[%d:%d]' % (vr(et + i, 2), vr(accb + q + i, 2), sC1, sC1 + 1) for i in range(0, 8, 2)]
            ops += ['v_exp_f32 v%d, v%d clamp' % (et + i, et + i) for i in range(8)]
            ops += ['v_max_f32 v%d, 0x%x, v%d' % (accb + q + i, f2u(1e-6), accb + q + i) for i in range(8)]
            ops += ['v_pk_add_f32 %s, %s, %s' % (vr(et + i, 2), vr(et + i, 2), vr(accb + q + i, 2)) for i in range(0, 8, 2)]
            ops += ['v_cvt_pk_bf16_f32 v%d, v%d, v%d' % (pkb + q // 2 + j, et + 2 * j, et + 2 * j + 1) for j in range(4)]
        return ops

    def st_op(self, pkb, unit_rel, g, tag):
        return [('s_add_u32 s%d, s%d, %d' % (sT2, sUST, unit_rel * UNIT), None),
                ('buffer_store_dwordx4 %s, v%d, %s, s%d offen offset:%d' % (vr(pkb, 4), self.vActSt, srd(S_WS), sT2, 1024 * g), tag)]

    def with_stores(self, ops, pkb, unit_rel, tag):
        if 'st' in self.no:
            return ops
        st = [self.st_op(pkb + 4 * g, unit_rel, g, tag) for g in range(2)]
        out = []
        done = False
        for i, op in enumerate(ops):
            out.append(op)
            if not done and i >= 2 and ops[i - 2].startswith('v_cvt_pk_bf16_f32 v%d,' % (pkb + 3)):
                out.append(st[0])
                done = True
        if not done:
            out.append(st[0])
        out.append(st[1])
        return out

    def check(self, a, load, cmps, wait=True):
        ok = self.newlabel('ok')
        rt = self.newlabel('retry')
        if wait:
            a.force_wait('lgkmcnt(0)')
            if self.o.diag and len(a.stpool) < 5 and not a.noflush:
                self.flush(a)
        for c in cmps:
            a(c)
            a('s_cbranch_scc0 ' + rt + 'i')
        a.label(ok)
        s = a.fork()
        s.lines = []
        s.label(rt + 'i')
        s('s_mov_b32 s%d, %d' % (sSPIN, self.o.spin))
        if not wait:
            s('s_branch ' + rt + 'w')
        s.label(rt)
        if self.o.diag:
            a.nchk = getattr(a, 'nchk', 0) + 1
            s('s_add_u32 s%d, s%d, %d' % (sRC, sRC, 1 << (3 * (a.nchk - 1))))
        s('s_sub_u32 s%d, s%d, 1' % (sSPIN, sSPIN))
        s('s_cbranch_scc1 ' + ok)
        if self.o.sleep:
            s('s_sleep %d' % self.o.sleep)
        load(s)
        s.label(rt + 'w')
        s.force_wait('lgkmcnt(0)')
        for c in cmps:
            s(c)
            s('s_cbranch_scc0 ' + rt)
        s('s_branch ' + ok)
        self.ool += s.lines

    def path(self, var, role):
        o = self.o
        a = self.a.fork()
        a.stampn = []
        a.noflush = False
        a.stpool = list(range(44, 62, 2))
        a.label('L_path' + var + role)
        a.lgmax = 12 if o.diag else 15
        isA = var == 'A'
        isb = role == 'b'
        ch = 1 if isb else 0
        gate = var == 'G'
        nt = 2 if gate else 3
        S_B1 = S_WA if gate else S_M1
        stride = 3072 if isA else 2752
        S_W = S_WA if isA else S_WF
        woff = [1024, 2048, 0] if isA else [0, 128, 256]
        cs = o.csA if isA else o.csF
        defer = o.dlA if isA else o.dlF
        xr = o.xr and cs < 8
        assert not xr or cs >= 4
        t0, t1, t2, t3 = [self.vTmp + i for i in range(4)]

        def acc(p):
            return self.acc + 16 * p

        def fin(d, size):
            a('s_mov_b32 s%d, 0x%x' % (d + 2, size))
            a('s_mov_b32 s%d, 0x20000' % (d + 3))

        cur = dict(w=0)

        def x_items(c):
            def f(i):
                def g():
                    if i == 0 and c:
                        a('s_add_u32 m0, s%d, %d' % (sXQ, (c & 3) * XS))
                        if o.rot1:
                            a('s_xor_b32 s%d, s%d, %d' % (sT0, sROT, c * 128))
                        else:
                            a('s_movk_i32 s%d, %d' % (sT0, c * 128))
                    a('buffer_load_dwordx4 v%d, %s, %s offen offset:%d lds' % (self.vXd + i, srd(S_X), ('s%d' % sT0) if c else ('s%d' % sROT) if o.rot1 else '0', 1024 * i), tag=('x', c))
                return g
            return [f(0), f(1)]

        def w_item(c, p):
            def g():
                a('s_add_u32 m0, s%d, %d' % (sWQ, (c & 3) * WSL + 8192 * p - woff[p]))
                if c and cur['w'] != c:
                    if o.rot1:
                        a('s_xor_b32 s%d, s%d, %d' % (sT1, sROT, c * 128))
                        a('s_mul_i32 s%d, s%d, %d' % (sT1, sT1, stride // 2))
                    else:
                        a('s_mov_b32 s%d, %d' % (sT1, 64 * c * stride))
                    cur['w'] = c
                a('buffer_load_dwordx4 v%d, %s, %s offen offset:%d lds' % (self.vWd + (1 if not isA and p == 2 else 0), srd(S_W), ('s%d' % sT1) if (c or o.rot1) else '0', woff[p]),
                  tag=('w2',) if (p == 2 and defer and c >= cs) else ('w', c))
            return g

        def w_items(c):
            return [w_item(c, p) for p in range(2 if (defer and c >= cs) else 3)]

        for d, off in ((S_M1, 64 if gate else 40), (S_DBG, 80), (S_U, 48), (S_U2, 16), (S_OUT, 72), (S_M2, 56)):
            a._put('s_load_dwordx2 s[%d:%d], s[0:1], %d' % (d, d + 1, off))
        a('v_lshrrev_b32 v%d, 3, v1' % t0)
        a('v_and_b32 v%d, 7, v1' % t1)
        a('v_lshrrev_b32 v%d, 4, v1' % t2)
        a('v_xor_b32 v%d, v%d, v%d' % (t3, t1, t2))
        a('v_lshlrev_b32 v%d, 4, v%d' % (t3, t3))
        a('v_lshl_add_u32 v%d, v%d, 10, v%d' % (t3, t0, t3))
        a('s_lshl_b32 s%d, s%d, 3' % (sT2, sRB))
        a('s_add_u32 s%d, s%d, s%d' % (sT2, sT2, sWV))
        a('s_lshl_b32 s%d, s%d, 14' % (sT3, sT2))
        a('v_add_u32 v%d, s%d, v%d' % (self.vXd, sT3, t3))
        a('v_xor_b32 v%d, 64, v%d' % (self.vXd + 1, self.vXd))
        a('v_add_u32 v%d, %d, v%d' % (self.vXd + 1, 7168, self.vXd + 1))
        a('v_and_b32 v%d, 1, v%d' % (t2, t2))
        a('v_lshlrev_b32 v%d, 2, v%d' % (t2, t2))
        a('v_xor_b32 v%d, v%d, v%d' % (t1, t1, t2))
        a('v_lshlrev_b32 v%d, 4, v%d' % (t1, t1))
        if o.rot1:
            a('s_xor_b32 s%d, s%d, s%d' % (sROT, sRB, sCG))
            a('s_and_b32 s%d, s%d, %d' % (sROT, sROT, o.rot1m))
            a('s_mul_i32 s%d, s%d, %d' % (sROT, sROT, 128 * o.rot1))
            a('s_mul_i32 s%d, s%d, %d' % (sT1, sROT, stride // 2))
        a('s_lshl_b32 s%d, s%d, 11' % (sXQ, sWV))
        a('s_lshl_b32 s%d, s%d, 10' % (sP, sWV))
        a('s_add_u32 s%d, s%d, %d' % (sWQ, sP, W_BASE))
        a('s_mov_b32 m0, s%d' % sXQ)
        fin(S_X, 2048 * 1024)
        fin(S_W, 512 * stride)
        if isA:
            a('s_lshl_b32 s%d, s%d, 7' % (sCOL, sGRP))
        else:
            for tx in self.fstart(sCOL, sGRP, sT3):
                a(tx)
            a('s_lshl_b32 s%d, s%d, 6' % (sCOL, sCOL))
        a('s_mul_i32 s%d, s%d, %d' % (sT3, sWV, 8 * stride))
        a('s_add_u32 s%d, s%d, s%d' % (sT3, sT3, sCOL))
        a('v_mul_u32_u24 v%d, %d, v%d' % (self.vWd, stride, t0))
        if not isA:
            if var == 'G' or isb:
                a('v_and_b32 v%d, 0x%x, v%d' % (t2, 0x30 if var == 'G' else 0x70, t1))
            else:
                a('s_cmp_lt_u32 s%d, 3' % sGRP)
                a('s_cselect_b32 s%d, 0x70, 0x30' % sT2)
                a('v_and_b32 v%d, s%d, v%d' % (t2, sT2, t1))
            a('v_add3_u32 v%d, v%d, v%d, s%d' % (self.vWd + 1, self.vWd, t2, sT3))
        a('v_add3_u32 v%d, v%d, v%d, s%d' % (self.vWd, self.vWd, t1, sT3))
        a('v_lshl_add_u32 v%d, v%d, 10, v%d' % (self.vUd, t0, t1))
        if gate:
            a('v_and_b32 v%d, 31, v1' % t2)
            a('v_lshlrev_b32 v%d, 5, v%d' % (t2, t2))
            a('v_lshrrev_b32 v%d, 5, v1' % t3)
            a('v_lshl_add_u32 v%d, v%d, 4, v%d' % (self.vGv, t3, t2))
            if o.rot1:
                a('v_xor_b32 v%d, s%d, v%d' % (self.vGv, sROT, self.vGv))
            fin(S_M1, 1024)
        pubpath = (var + role) == ('Fa' if o.swap & 2 else 'Aa')

        def first_loads():
            a._put('s_waitcnt lgkmcnt(0)')
            self.stamp(a, 'karg')
            for f in x_items(0) + w_items(0):
                f()
            if gate:
                a('buffer_load_dwordx4 %s, v%d, %s, 0 offen' % (vr(self.gw, 4), self.vGv, srd(S_M1)), tag='g')
                a._put('s_load_dwordx2 s[%d:%d], s[0:1], 40' % (S_B1, S_B1 + 1))
            if pubpath:
                skip = self.newlabel('nopub')
                a('s_or_b32 s%d, s2, s%d' % (sT3, sWV))
                a('s_cbranch_scc1 ' + skip)
                a('s_mov_b32 s%d, 0x%x' % (sT3, EOFF))
                a._put('s_load_dword s%d, s[%d:%d], s%d' % (sE, S_WS, S_WS + 1, sT3))
                a.label(skip)
                a.lgmax -= 1
            self.stamp(a, 'd0')
        if o.diag:
            a('s_mov_b32 s%d, 0' % sRC)
            a('v_mov_b32 v%d, 0' % self.vStamp)

        dq = []
        dqm = []

        def D(name, *ops):
            (dqm if any(x.startswith('buffer_') for x in ops) else dq).append((name, list(ops)))
        D('rd', 's_and_b32 s%d, s%d, 3' % (sJ, sWV), 'v_and_b32 v%d, 31, v1' % t0, 'v_lshrrev_b32 v%d, 5, v1' % t1,
          'v_bfe_u32 v%d, v1, 1, 3' % t2, 'v_xor_b32 v%d, v%d, v%d' % (t2, t2, t1), 'v_lshlrev_b32 v%d, 4, v%d' % (t2, t2),
          'v_lshl_add_u32 v%d, v%d, 7, v%d' % (t2, t0, t2), 's_lshl_b32 s%d, s%d, 12' % (sT2, sJ),
          'v_add_u32 v%d, s%d, v%d' % (self.vXr, sT2, t2))
        D('rd', *['v_xor_b32 v%d, %d, v%d' % (self.vXr + s, 32 * s, self.vXr) for s in range(1, 4)])
        D('rd', 'v_bfe_u32 v%d, v1, 2, 2' % t0, 'v_and_b32 v%d, 3, v1' % t2, 'v_lshlrev_b32 v%d, 3, v%d' % (t2, t2),
          'v_bfe_u32 v%d, v1, 4, 1' % t3, 'v_lshl_add_u32 v%d, v%d, 5, v%d' % (t2, t3, t2), 'v_bfe_u32 v%d, v1, 3, 1' % t3,
          'v_lshl_add_u32 v%d, v%d, 6, v%d' % (t2, t3, t2), 'v_lshl_add_u32 v%d, v%d, 7, v%d' % (t2, t0, t2),
          'v_lshl_add_u32 v%d, v%d, 10, v%d' % (t3, t1, t2),
          'v_xor_b32 v%d, 0x%x, v%d' % (self.vWr, W_BASE + 64 * ch, t3), 'v_add_u32 v%d, %d, v%d' % (self.vWr + 1, 2 * WSL, self.vWr),
          'v_lshl_add_u32 v%d, v%d, 9, v%d' % (self.vUr, t1, t2))
        D('rd', 'v_lshlrev_b32 v%d, 4, v1' % self.vL16, 'v_mov_b32 v%d, 0' % self.vZero,
          's_mov_b32 s%d, 0x%x' % (S_WS + 2, WS_SIZE), 's_mov_b32 s%d, 0x20000' % (S_WS + 3),
          's_mov_b32 s%d, 0x100' % (S_DBG + 2), 's_mov_b32 s%d, 0x20000' % (S_DBG + 3))
        d0, d1, d2 = sD0, sD1, sD2
        if not isA:
            D('bias', 's_mov_b32 s%d, 0x%x' % (S_B1 + 2, 1376 * 2), 's_mov_b32 s%d, 0x20000' % (S_B1 + 3),
              'v_and_b32 v%d, 31, v1' % t2, 'v_lshlrev_b32 v%d, 1, v%d' % (t2, t2), *((['s_waitcnt lgkmcnt(0)'] if gate else []) +
              ['buffer_load_ushort v%d, v%d, %s, s%d offen offset:%d' % (self.vBias + 2 * p, t2, srd(S_B1), sCOL, 128 * p + 64 * ch) for p in range(nt)]))
            for i in range(6):
                if i != 2:
                    D('sel', 'v_mov_b32 v%d, 0' % (self.vSel + i))
            D('sel', 'v_xor_b32 v%d, 1, v%d' % (t3, t1), 'v_mul_u32_u24 v%d, 0x3f80, v%d' % (self.vSel + 2, t3))
            for i in range(3):
                D('sel', 'v_mov_b32 v%d, 0' % (self.vBias + 2 * i + 1))
        D('u', 's_lshl_b32 s%d, s%d, 2' % (sRT, sXCD), 's_and_b32 s%d, s%d, 3' % (d0, sIDX), 's_add_u32 s%d, s%d, s%d' % (sRT, sRT, d0))
        D('u', 's_lshr_b32 s%d, s%d, 2' % (sCT, sIDX), 's_lshl_b32 s%d, s%d, 7' % (d0, sCT), 'v_add_u32 v%d, s%d, v%d' % (self.vUd, d0, self.vUd))
        D('u', 's_mov_b32 s%d, 0x%x' % (S_U + 2, 1376 * 1024), 's_mov_b32 s%d, 0x20000' % (S_U + 3))
        D('u', 's_mov_b32 s%d, 0x%x' % (S_U2 + 2, 512 * 1024), 's_mov_b32 s%d, 0x20000' % (S_U2 + 3))
        D('u', *(self.fstart(d0, sWV, d1) + ['s_lshl_b32 s%d, s%d, 15' % (sUF, d0), 's_add_u32 s%d, s%d, 16' % (d0, d0), 's_lshl_b32 s%d, s%d, 17' % (sAF, d0)]))
        if not isb:
            D('u', 's_cmp_lt_u32 s%d, 3' % sWV, 's_cselect_b32 s%d, 0, 0x%x' % (sO5, OOB))
        D('u', 's_lshl_b32 s%d, s%d, 16' % (sUQ, sWV), 's_lshl_b32 s%d, s%d, 18' % (sAQ, sWV))
        D('epi', 's_lshl_b32 s%d, s%d, 2' % (d1, sRB), 's_add_u32 s%d, s%d, s%d' % (d1, d1, sJ), 's_lshl_b32 s%d, s%d, 11' % (d0, d1),
          'v_add_u32 v%d, s%d, v%d' % (self.vActSt, d0, self.vL16),
          *([] if not (isA or gate) else
            (['s_lshr_b32 s%d, s%d, 1' % (d0, sGRP), 's_lshl_b32 s%d, s%d, 13' % (d0, d0)] if isA else ['s_lshl_b32 s%d, s%d, 13' % (d0, sGRP)]) +
            ['s_lshl_b32 s%d, s%d, 7' % (d1, d1), 's_add_u32 s%d, s%d, s%d' % (d0, d0, d1),
             's_add_u32 s%d, s%d, 0x%x' % (d0, d0, GOFF + (4 * 8192 if isA else 0)), 'v_and_b32 v%d, 31, v1' % t0,
             'v_lshl_add_u32 v%d, v%d, 2, s%d' % (self.vMisc + 1, t0, d0)]))
        if isA:
            D('epi', 's_lshl_b32 s%d, s%d, 18' % (sUST, sGRP))
            D('epi', 's_mov_b32 s%d, 0x%x' % (sC1, f2u(LOG2E)), 's_mov_b32 s%d, 0x%x' % (sC1 + 1, f2u(LOG2E)))
            D('epi', 's_lshr_b32 s%d, s%d, 1' % (d0, sJ), 's_add_u32 s%d, s%d, s%d' % (d0, d0, sJ), 's_lshl_b32 s%d, s%d, 13' % (d0, d0),
              's_add_u32 s%d, s%d, %d' % (d0, d0, KVP[0] * 8192 + ch * 4096), 'v_add_u32 v%d, s%d, v%d' % (self.vMisc, d0, self.vL16))
            for j in range(8):
                D('epi', 'v_mov_b32 v%d, 0x3f803f80' % (self.et2 + j), 'v_mov_b32 v%d, 0x3f803f80' % (self.pk2 + j))
            ad, az = self.gw, self.gw + 1
            D('epi', 's_bfe_u32 s%d, s%d, 0x10001' % (d0, sWV), 's_lshl_b32 s%d, s%d, 8' % (d0, d0), 's_add_u32 s%d, s%d, s%d' % (d0, d0, sP),
              's_add_u32 s%d, s%d, %d' % (d0, d0, KVP[0] * 8192), 'v_lshl_add_u32 v%d, v1, 2, s%d' % (ad, d0), 's_xor_b32 s%d, s%d, 256' % (d0, d0),
              'v_bfe_u32 v%d, v1, 2, 1' % az, 'v_and_b32 v%d, 3, v1' % (az + 1), 'v_lshlrev_b32 v%d, 2, v%d' % (az + 1, az + 1),
              'v_lshl_add_u32 v%d, v%d, 9, v%d' % (az, az, az + 1), 'v_add_u32 v%d, s%d, v%d' % (az, d0, az))
            D('epi', 'v_cmp_gt_u32 vcc, 8, v1', 'v_lshlrev_b32 v%d, 2, v1' % (az + 1), 'v_mov_b32 v%d, 0x%x' % (az + 2, OOB),
              'v_cndmask_b32 v%d, v%d, v%d, vcc' % (az + 2, az + 2, az + 1))
            D('epi', 's_lshl_b32 s%d, s%d, 3' % (d0, sGRP), 's_add_u32 s%d, s%d, s%d' % (d0, d0, sWV),
              's_mul_i32 s%d, s%d, %d' % (sKVB, d0, QSTR), 's_add_u32 s%d, s%d, 0x%x' % (sKVB, sKVB, KVACC))
            D('epi', 'v_and_b32 v%d, 31, v1' % t0, 'v_lshlrev_b32 v%d, 4, v%d' % (self.vKV, t0), 'v_lshl_add_u32 v%d, v%d, 8, v%d' % (self.vKV, t1, self.vKV))
            D('epi', 'v_lshlrev_b32 v%d, 4, v%d' % (t2, t1), 'v_add_u32 v%d, 512, v%d' % (t2, t2), 'v_cmp_gt_u32 vcc, 16, v%d' % t0,
              's_mul_i32 s%d, s%d, %d' % (d0, sGRP, 4 * HSTR), 's_add_u32 s%d, s%d, 0x%x' % (d0, d0, KVACC + 2 * ch * HSTR),
              'v_cndmask_b32 v%d, v%d, v%d, vcc' % (self.vKV, t2, self.vKV), 'v_add_u32 v%d, s%d, v%d' % (self.vKV, d0, self.vKV))
        else:
            D('epi', 's_lshl_b32 s%d, s%d, 11' % (sUST, sCOL), 's_add_u32 s%d, s%d, %d' % (sUST, sUST, 16 * UNIT))
            D('epi', 's_mov_b32 s%d, 0x%x' % (sC1, f2u(GC1)), 's_mov_b32 s%d, 0x%x' % (sC1 + 1, f2u(GC1)))
            D('epi', 's_mov_b32 s%d, 1.0' % sONE, 's_mov_b32 s%d, 1.0' % (sONE + 1))
            D('epi', 'v_mov_b32 v%d, 0x%x' % (self.vC0, f2u(GC0)), 'v_mov_b32 v%d, 0x%x' % (self.vC0 + 1, f2u(GC0)))
        D('epi', 's_lshl_b32 s%d, s%d, 15' % (d2, sRB), 's_lshr_b32 s%d, s%d, 1' % (d0, sJ), 's_lshl_b32 s%d, s%d, 10' % (d0, d0),
          's_add_u32 s%d, s%d, s%d' % (d2, d2, d0), 's_and_b32 s%d, s%d, 1' % (d0, sJ), 's_lshl_b32 s%d, s%d, 2' % (d0, d0),
          's_add_u32 s%d, s%d, s%d' % (d2, d2, d0), 's_add_u32 s%d, s%d, 0x%x' % (d2, d2, FLAG))
        D('epi', 's_lshl_b32 s%d, s%d, 11' % (d0, sCG), 's_add_u32 s%d, s%d, s%d' % (d0, d0, d2), 'v_mov_b32 v%d, s%d' % (self.vFlagW, d0))
        if isA:
            D('epi', 's_lshr_b32 s%d, s%d, 1' % (d0, sGRP), 's_lshl_b32 s%d, s%d, 11' % (d0, d0), 's_add_u32 s%d, s%d, s%d' % (sGF, d0, d2),
              's_lshl_b32 s%d, s%d, 4' % (sKC, sGRP), 's_add_u32 s%d, s%d, s%d' % (sKC, sKC, sRB), 's_lshl_b32 s%d, s%d, 7' % (sKC, sKC),
              's_add_u32 s%d, s%d, 0x%x' % (sKC, sKC, CNT))
        D('p2', 's_and_b32 s%d, s%d, 1' % (d0, sWV), 's_lshl_b32 s%d, s%d, 6' % (d0, d0), 's_add_u32 s%d, s%d, s%d' % (d0, d0, sP),
          'v_xor_b32 v%d, s%d, v%d' % (self.vUr, d0, self.vUr), 'v_xor_b32 v%d, 64, v%d' % (self.vUr + 1, self.vUr))
        for i in range(2, 6):
            D('p2', 'v_add_u32 v%d, 0x10000, v%d' % (self.vUr + i, self.vUr + i - 2))
        D('p2', 's_mov_b32 s%d, 0x%x' % (S_OUT + 2, 2048 * 1024), 's_mov_b32 s%d, 0x20000' % (S_OUT + 3))
        D('p2', 's_lshl_b32 s%d, s%d, 1' % (d0, sRT), 's_lshr_b32 s%d, s%d, 1' % (d1, sJ), 's_add_u32 s%d, s%d, s%d' % (d0, d0, d1),
          's_lshl_b32 s%d, s%d, 11' % (d1, d0), 'v_add_u32 v%d, s%d, v%d' % (self.vActLd, d1, self.vL16),
          'v_xor_b32 v%d, 2048, v%d' % (self.vActLd + 1, self.vActLd),
          's_lshl_b32 s%d, s%d, 7' % (d0, d0), 's_lshr_b32 s%d, s%d, 1' % (d1, sWV), 's_lshl_b32 s%d, s%d, 13' % (d1, d1),
          's_add_u32 s%d, s%d, s%d' % (d0, d0, d1), 's_add_u32 s%d, s%d, 0x%x' % (d0, d0, GOFF + 4 * 8192), 'v_and_b32 v%d, 31, v1' % t0, 'v_lshl_add_u32 v%d, v%d, 2, s%d' % (self.vGa, t0, d0))
        D('p2', 's_lshr_b32 s%d, s%d, 1' % (d0, sRT), 's_lshl_b32 s%d, s%d, 15' % (d0, d0), 's_and_b32 s%d, s%d, 1' % (d1, sRT),
          's_lshl_b32 s%d, s%d, 10' % (d1, d1), 's_add_u32 s%d, s%d, s%d' % (d0, d0, d1), 's_add_u32 s%d, s%d, 0x%x' % (d0, d0, FLAG),
          's_add_u32 s%d, s%d, s%d' % (sFR, d0, sXQ))
        D('p2', 's_mov_b32 s%d, 0x400' % (S_M2 + 2), 's_mov_b32 s%d, 0x20000' % (S_M2 + 3), 's_lshl_b32 s%d, s%d, 7' % (d0, sCT),
          's_and_b32 s%d, s%d, 1' % (d1, sJ), 's_lshl_b32 s%d, s%d, 6' % (d1, d1), 's_add_u32 s%d, s%d, s%d' % (d0, d0, d1),
          'v_lshlrev_b32 v%d, 3, v%d' % (t2, t1),
          'buffer_load_dwordx2 %s, v%d, %s, s%d offen offset:%d' % (vr(self.vB2, 2), t2, srd(S_M2), d0, 32 * ch),
          'buffer_load_dwordx2 %s, v%d, %s, s%d offen offset:%d' % (vr(self.vB2 + 2, 2), t2, srd(S_M2), d0, 32 * ch + 16))

        def drain(k):
            while dq and k > 0:
                nm, ops = dq.pop(0)
                for tx in ops:
                    a(tx, tag='misc')
                k -= len(ops)

        def need(name):
            while any(nm == name for nm, _ in dq):
                drain(1)

        drain(o.sdpa if not isb else o.sdpb)
        first_loads()
        need('rd')
        drain(o.sd0a if not isb else o.sd0b)
        for c in range(1, o.pre):
            for f in x_items(c) + w_items(c):
                f()
            self.stamp(a, 'd%d' % c)
        dq[:0] = [x for x in dqm if x[0] == 'bias']
        dq.extend(x for x in dqm if x[0] != 'bias')
        need('bias')
        drain(o.sd1)
        self.stamp(a, 'setup')

        order = [u for u in o.order.split(',') if not (isb and u == 'F5')]
        NU = len(order)
        NP = 4 * NU

        ust = dict(ni=0, nr=0)
        upiece = {}
        freep = []

        def u_issue():
            if ust['ni'] >= NP or not freep:
                return False
            need('u')
            i = ust['ni']
            q, prev = freep.pop(0)
            if prev is not None:
                a.wait_lg(prev)
            upiece[i] = q
            ust['ni'] += 1
            if 'u' in self.no:
                return True
            u = order[i // 4]
            rs, sb = (S_U2, sUQ) if u[0] == 'Q' else (S_U, sUF)
            a('s_add_u32 m0, s%d, %d' % (sP, q * 8192))
            a('s_add_u32 s%d, s%d, %d' % (sT3, sb, (int(u[1]) * 32 + (i % 4) * 8) * 1024))
            if u == 'F5':
                a('s_add_u32 s%d, s%d, s%d' % (sT3, sT3, sO5))
            a('buffer_load_dwordx4 v%d, %s, s%d offen lds' % (self.vUd, srd(rs), sT3), tag=('u', i))
            return True

        ufr = {}

        def u_read(dst):
            h = ust['nr']
            assert 2 * h + 1 < ust['ni'], (var, role, h, ust)
            a.wait_vm(('u', 2 * h), ('u', 2 * h + 1))
            for t in range(2):
                for rd in range(2):
                    win, qq = divmod(upiece[2 * h + rd], 8)
                    a.ds('ds_read_b64_tr_b16 %s, v%d offset:%d' % (vr(dst + 4 * t + 2 * rd, 2), self.vUr + win * 2 + t, qq * 8192), tag=('ur', h))
            for rd in range(2):
                freep.append((upiece[2 * h + rd], ('ur', h)))
            ufr[h] = dst
            ust['nr'] += 1

        def free_pieces(qs):
            for q in qs:
                if not (isA and q in KVP):
                    freep.append((q, None))

        def early_pieces(c):
            s = c & 3
            return [8 + 3 * s, 9 + 3 * s] + ([2 * s, 2 * s + 1] if xr else [])

        def late_pieces(c):
            s = c & 3
            return ([] if xr else [2 * s, 2 * s + 1]) + [10 + 3 * s]

        PF = 2

        def fbuf(n):
            return self.fr + (n % 3) * 16

        def xbuf(n):
            return 192 + 4 * (n - 4 * cs) if (xr and nt == 3 and n >= 4 * cs) else fbuf(n)

        def ntile(n):
            return min(nt, 3 if n // 4 < cs else 2)

        def xread(dst, n):
            c, s = divmod(n, 4)
            return 'ds_read_b128 %s, v%d offset:%d' % (vr(dst, 4), self.vXr + s, (c & 3) * XS)

        def wread(dst, n, p):
            c, s = divmod(n, 4)
            win, sl = divmod(c & 3, 2)
            return ['ds_read_b64_tr_b16 %s, v%d offset:%d' % (vr(dst + 2 * rd, 2), self.vWr + win, sl * WSL + p * 8192 + s * 2048 + rd * 512) for rd in range(2)]

        def reads_for(n):
            out = [[xread(xbuf(n), n)], [], []]
            if gate:
                out[2] = ['s_mov_b32 vcc_lo, 0x%x' % (1 << n), 's_mov_b32 vcc_hi, 0x%x' % (1 << n)]
                out[2] += ['v_cndmask_b32 v%d, 0, v%d, vcc' % (fbuf(n) + 12 + i, self.gw + i) for i in range(4)]
            for p in range(ntile(n)):
                if not ('rd' in self.no or ('rd2' in self.no and p)):
                    out[p] += wread(fbuf(n) + 4 + 4 * p, n, p)
            return out

        def rdemit(tx):
            if tx.startswith('ds_'):
                a.ds(tx, tag='fr')
            else:
                a(tx)

        def barrier_for(c):
            a.wait_both([('w', c), ('x', c)], ['fr'])
            a('s_barrier')

        def bar_n(c):
            return max(0, 4 * c - PF)

        def chunk_bar(cb):
            barrier_for(cb)
            if cb >= 5:
                free_pieces(early_pieces(cb - 1) + (late_pieces(cb - 1) if cb - 1 < cs else []))

        items = []
        for c in range(o.pre, 8):
            e = bar_n(c - 3) if c >= 4 else 0
            e = max(e, bar_n(c - o.lead) if c >= o.lead else 0)
            for f in x_items(c) + w_items(c):
                items.append([e, bar_n(c), f])
        if defer:
            for c in range(cs, 8):
                items.append([bar_n(c - 3), 32, w_item(c, 2)])

        def flag_store(level, tags):
            self.stamp(a, 'fw%d' % level)
            a.wait_vm(*tags)
            self.stamp(a, 'fa%d' % level)
            self.dstore(a, 'buffer_store_dword v%d, v%d, %s, 0 offen offset:%d' % (self.vEpoch, self.vFlagW, srd(S_WS), 8 * (2 * level + ch)), 'flag')

        def ep_load(aa):
            aa._put('s_buffer_load_dword s%d, %s, 0%s' % (sE, srd(S_DBG), '' if aa is a else ' glc'))

        def ep_done():
            self.check(a, ep_load, ['s_cmp_lg_u32 s%d, 0' % sE])
            a('s_mov_b32 s%d, s%d' % (sE + 1, sE))
            a('v_mov_b32 v%d, s%d' % (self.vEpoch, sE))
        vIn = self.vG

        def in_load(aa):
            aa('s_lshl_b32 s%d, s%d, 2' % (sT2, sGRP))
            aa._put('s_buffer_load_dword s%d, %s, s%d offset:128%s' % (sIN, srd(S_DBG), sT2, '' if aa is a else ' glc'))

        in_cmp = ['s_cmp_eq_u32 s%d, 1' % sIN]
        lstate = dict(F=0, Q=0, k=0, G=0)

        def keys_of(k):
            out = []
            for x in k:
                if x == 'q':
                    out += ['x', 'y']
                elif not (x == '5' and isb):
                    out.append(x)
            return out

        def line_of(x):
            return x if x in 'kGFQ' else 'Q' if x in 'xyq' else 'F'

        def line_load(aa, l):
            if l == 'k':
                aa._put('s_buffer_load_dwordx16 s[%d:%d], %s, s%d glc' % (sFL, sFL + 15, srd(S_WS), sKC))
            elif l == 'G':
                aa._put('s_buffer_load_dword s%d, %s, s%d offset:%d glc' % (sIN, srd(S_WS), sGF, 12 * 2048 + 5 * 8))
            elif l == 'Q':
                aa._put('s_buffer_load_dwordx4 s[%d:%d], %s, s%d glc' % (sQL, sQL + 3, srd(S_WS), sFR))
            else:
                aa._put('s_buffer_load_dwordx16 s[%d:%d], %s, s%d offset:%d glc' % (sFL, sFL + 15, srd(S_WS), sFR, 8 * 2048))

        def key_cmp(x):
            if x == 'k':
                return ['s_cmp_eq_u64 s[%d:%d], s[%d:%d]' % (sFL + i, sFL + i + 1, sE, sE + 1) for i in range(0, 16, 2)]
            if x == 'G':
                return ['s_cmp_eq_u32 s%d, s%d' % (sIN, sE)]
            r = sQL + 2 * 'xy'.index(x) if x in 'xy' else sFL + 2 * int(x)
            return ['s_cmp_eq_u64 s[%d:%d], s[%d:%d]' % (r, r + 1, sE, sE + 1)]

        def poll_issue(k):
            for l in sorted(set(line_of(x) for x in k)):
                line_load(a, l)
                lstate[l] = max(lstate[l], 1)

        def lines_ready(ks):
            ls = set(line_of(x) for x in ks)
            poll_issue([l for l in ls if lstate[l] == 0])
            w = any(lstate[l] == 1 for l in ls)
            if w:
                for l in lstate:
                    lstate[l] = 2 if lstate[l] else 0
            return w

        def gate_on(k):
            ks = keys_of(k)
            if ks:
                w = lines_ready(ks)

                def load(aa):
                    for l in sorted(set(line_of(x) for x in ks)):
                        line_load(aa, l)
                self.check(a, load, sum([key_cmp(x) for x in ks], []), wait=w)
            self.stamp(a, 'P' + k[0])

        def kv_init():
            skip = self.newlabel('noinit')
            z, u2, u3 = self.pk, self.pk + 4, self.pk + 5
            a('s_or_b32 s%d, s%d, s%d' % (sT3, sRB, sJ))
            a('s_cbranch_scc1 ' + skip)
            for i in range(4):
                a('v_mov_b32 v%d, 0' % (z + i))
            a('s_mul_i32 s%d, s%d, %d' % (sT2, sGRP, 4 * HSTR))
            a('s_add_u32 s%d, s%d, 0x%x' % (sT2, sT2, KVACC))
            for i in range(4):
                a('buffer_store_dwordx4 %s, v%d, %s, s%d offen offset:%d sc1' % (vr(z, 4), self.vL16, srd(S_WS), sT2, 1024 * i), count=False)
            a('s_add_u32 s%d, s%d, 4096' % (sT2, sT2))
            a('s_mov_b32 exec_hi, 0')
            a('buffer_store_dwordx4 %s, v%d, %s, s%d offen sc1' % (vr(z, 4), self.vL16, srd(S_WS), sT2), count=False)
            a('s_mov_b64 exec, -1')
            a.label(skip)
            a.nop(2)

        def init_pub():
            skip = self.newlabel('nopub')
            a('s_or_b32 s%d, s%d, s%d' % (sT3, sRB, sJ))
            a('s_cbranch_scc1 ' + skip)
            a('v_mov_b32 v%d, 1' % vIn)
            a('s_lshl_b32 s%d, s%d, 2' % (sT2, sGRP))
            a('buffer_store_dword v%d, v%d, %s, s%d offen offset:128 sc1' % (vIn, self.vZero, srd(S_DBG), sT2), count=False)
            a.label(skip)

        def epoch_pub():
            skip = self.newlabel('nopub')
            a('s_or_b32 s%d, s2, s%d' % (sT3, sWV))
            a('s_cbranch_scc1 ' + skip)
            a._put('s_waitcnt lgkmcnt(0)')
            a('s_or_b32 s%d, s%d, 1' % (sE, sE))
            a('s_add_u32 s%d, s%d, 2' % (sE, sE))
            a('v_mov_b32 v%d, s%d' % (vIn, sE))
            a('s_mov_b32 s%d, 0x%x' % (sT3, EOFF))
            a('buffer_store_dword v%d, v%d, %s, 0 offen sc1' % (vIn, self.vZero, srd(S_DBG)), count=False)
            a('buffer_store_dword v%d, v%d, %s, s%d offen sc1' % (vIn, self.vZero, srd(S_WS), sT3), count=False)
            a.label(skip)
            a.lgmax += 1

        def bias_mfma(p):
            def f():
                need('bias')
                need('sel')
                bb, sel = [(0, 2), (0, 0), (2, 0)][p]
                a(MFMA % (vr(acc(p), 16), vr(self.vBias + bb, 4), vr(self.vSel + sel, 4), vr(acc(p), 16)))
            return f

        extra = {n: [] for n in range(33)}
        def touch():
            need('u')
            a('s_lshl_b32 s%d, s%d, 3' % (sT2, sIDX))
            a('s_add_u32 s%d, s%d, s%d' % (sT2, sT2, sWV))
            a('v_mov_b32 v%d, 0x%x' % (self.vGv, OOB))
            a('v_lshlrev_b32 v%d, 10, v1' % (self.vGv + 1))
            a('v_cmp_gt_u32 vcc, 6, v1')
            a('s_mul_i32 s%d, s%d, 6144' % (sT3, sT2))
            a('v_cndmask_b32 v%d, v%d, v%d, vcc' % (self.vKV if not isA else self.vG + 1, self.vGv, self.vGv + 1))
            a('v_cmp_gt_u32 vcc, 2, v1')
            a('s_lshl_b32 s%d, s%d, 11' % (sT2, sT2))
            a('v_cndmask_b32 v%d, v%d, v%d, vcc' % (self.vGv + 1, self.vGv, self.vGv + 1))
            a('buffer_load_dword v%d, v%d, %s, s%d offen offset:%d' % (self.vGv, self.vKV if not isA else self.vG + 1, srd(S_U), sT3, 128 * o.tstrip), tag='touch')
            a('buffer_load_dword v%d, v%d, %s, s%d offen offset:%d' % (self.vGv + 1, self.vGv + 1, srd(S_U2), sT2, 128 * o.tstrip), tag='touch')
        if o.tn >= 0:
            extra[o.tn].append(touch)
        extra[o.ep_issue].append(lambda: ep_load(a))
        extra[o.ep_check].append(ep_done)
        if isA and isb:
            extra[bar_n(o.pre) + 1].append(init_pub)
        if isA:
            extra[o.ep_check + 1].append(lambda: in_load(a))
        else:
            for p in range(nt):
                extra[o.bias_n + p].append(bias_mfma(p))

        if pubpath:
            epoch_pub()
        if isA and isb:
            kv_init()
        barrier_for(0)
        self.stamp(a, 'first')
        for n in range(PF):
            for grp in reads_for(n):
                for tx in grp:
                    rdemit(tx)
        credit = 0.0
        for n in range(32):
            c, s = divmod(n, 4)
            if s == 0:
                self.stamp(a, 'c%d' % c)
            nn = n + PF
            if nn % 4 == 0 and nn < 32:
                chunk_bar(nn // 4)
            rd = reads_for(nn) if nn < 32 else [[], [], []]
            rt_ = o.rate if items else o.urate
            rl = o.ratesA if isA else o.ratesF
            if rl:
                rt_ = float(rl.split(',')[(n + PF) // 4])
            credit = min(credit + rt_, 3.0)
            np_ = 3 if gate else ntile(n)
            for p in range(np_):
                xf = vr(xbuf(n), 4)
                wf = vr(fbuf(n) + 4 + 4 * p, 4)
                d = vr(acc(p), 16)
                A_, B_ = (xf, wf) if (isA and p < 2) else (wf, xf)
                rdl = rd[p] + (rd[2] if p == np_ - 1 and p < 2 else [])
                if o.mf16:
                    for h in range(2):
                        d = vr(acc(p) + 8 * (n & 1) + 4 * h, 4)
                        wf = vr(fbuf(n) + 4 + 4 * ((p - h) % np_ if p else 0), 4)
                        A_, B_ = (xf, wf) if (isA and p < 2) else (wf, xf)
                        a('v_mfma_f32_16x16x32_bf16 %s, %s, %s, %s' % (d, A_, B_, '0' if n < 2 else d))
                        if h == 0 and o.mf16 > 1:
                            k = 2 if o.mf16 == 2 else (len(rdl) + 1) // 2
                            for tx in rdl[:k]:
                                rdemit(tx)
                            rdl = rdl[k:]
                elif 'mf' not in self.no:
                    a(MFMA % (d, A_, B_, '0' if n == 0 else d))
                for tx in rdl:
                    rdemit(tx)
                k = 0
                while k < (1 if p < np_ - 1 else 3):
                    if items:
                        e, dl, f = items[0]
                        must = dl - n <= (len([x for x in items if x[1] == dl]) + 3) // 4
                        if e <= n and (credit >= 1 or must):
                            assert n < dl, (var, role, n, dl)
                            items.pop(0)
                            f()
                            credit -= 1
                            k += 1
                        else:
                            break
                    elif credit >= 1 and n >= o.ustart and u_issue():
                        credit -= 1
                        k += 1
                    else:
                        break
                drain(o.sdr)
            for it in extra[n]:
                it()
        assert not items
        drain(1000)
        self.stamp(a, 'mm1')

        def emit(op):
            if callable(op):
                op()
            elif isinstance(op, list):
                for tx, tg in op:
                    if tx.startswith('buffer_store'):
                        self.dstore(a, tx, tg)
                    else:
                        a(tx, tag=tg)
            elif op.startswith('ds_'):
                a.ds(op)
            else:
                a(op)

        kvres0 = self.fr if xr else self.kvres

        def kvres(hb):
            return kvres0 + 16 * hb

        def kv_write():
            for hb in range(2):
                src = kvres(hb) + 8 * hb
                for q in range(2):
                    a.ds('ds_write_b128 v%d, %s offset:%d' % (self.vMisc, vr(src + 4 * q, 4), hb * 2048 + q * 1024), tag='kvw')

        kad, kaz = self.gw, self.gw + 1

        def kv_reduce():
            ad, az = kad, kaz
            d = kvres0
            po = [(q - KVP[0]) * 32 for q in KVP]
            for r in range(4):
                a.ds('ds_read2st64_b32 %s, v%d offset0:%d offset1:%d' % (vr(d + 2 * r, 2), ad, po[r], po[r] + 2), tag='kvr')
            for r in range(0, 4, 2):
                a.ds('ds_read2st64_b32 %s, v%d offset0:%d offset1:%d' % (vr(d + 8 + r, 2), az, po[r], po[r + 1]), tag='kvr')
            for q in KVP:
                freep.append((q, 'kvr'))

        def kv_atomics():
            az = kaz
            d = kvres0
            a('v_pk_add_f32 %s, %s, %s' % (vr(d, 2), vr(d, 2), vr(d + 2, 2)))
            a('v_pk_add_f32 %s, %s, %s' % (vr(d + 4, 2), vr(d + 4, 2), vr(d + 6, 2)))
            a('v_pk_add_f32 %s, %s, %s' % (vr(d + 8, 2), vr(d + 8, 2), vr(d + 10, 2)))
            a('v_pk_add_f32 %s, %s, %s' % (vr(d, 2), vr(d, 2), vr(d + 4, 2)))
            a('v_add_f32 v%d, v%d, v%d' % (d + 8, d + 8, d + 9))
            self.check(a, in_load, in_cmp)
            for k in range(2):
                a('buffer_atomic_add_f32 v%d, v%d, %s, s%d offen offset:%d' % (d + k, az + 1, srd(S_WS), sKVB, k * 256), tag='kva')
            a('buffer_atomic_add_f32 v%d, v%d, %s, s%d offen offset:512' % (d + 8, az + 2, srd(S_WS), sKVB), tag='kva')
            self.stamp(a, 'kva')
            if not xr:
                blocks.extend([kvres(1), kvres(0)])

        def kv_count(b9=False):
            if not isb:
                a('s_lshl_b32 s%d, s%d, 11' % (sT2, sGRP))
                a('s_lshl_b32 s%d, s%d, 2' % (sT0, sRB))
                a('s_add_u32 s%d, s%d, s%d' % (sT2, sT2, sT0))
                a('s_add_u32 s%d, s%d, 0x%x' % (sT2, sT2, CNT))
                a('v_lshlrev_b32 v%d, 7, v1' % t2)
            self.stamp(a, 'fw1')
            if b9:
                a.wait_both(['kva'], ['fr'])
            else:
                a.wait_vm('kva')
            self.stamp(a, 'fa1')
            a('s_barrier')
            if not isb:
                skip = self.newlabel('nokc')
                a('s_cmp_lg_u32 s%d, 0' % sWV)
                a('s_cbranch_scc1 ' + skip)
                a('s_mov_b64 exec, 0xffff')
                a('buffer_store_dword v%d, v%d, %s, s%d offen sc1' % (self.vEpoch, t2, srd(S_WS), sT2), count=False)
                a('s_mov_b64 exec, -1')
                a.label(skip)
            self.stamp(a, 'kc')

        nring = 3
        ring0 = self.ring0
        blocks = [] if (isA or (xr and nt == 3)) else [self.kvres, self.kvres + 16]
        marks = []
        s2 = dict(rd=4 * cs, mm=4 * cs)
        if nt < 3:
            s2 = dict(rd=32, mm=32)

        def rel(b):
            return lambda: blocks.append(b)

        def s2_done():
            assert s2['mm'] == 32, 'stage 2 not finished'
        if isA:
            vmA, vmB = self.et2, self.pk2
            vq = self.phi_ops(acc(0), self.pk) + [rel(acc(0))]
            vq += ['s_mov_b32 exec_lo, 0xffff', 's_mov_b32 exec_hi, 0xffff']
            vq[-2:] = [[(x, None) for x in vq[-2:]] + [('v_cvt_pk_bf16_f32 v%d, v%d, v%d' % (vmA + j, acc(1) + 2 * j, acc(1) + 2 * j + 1), None) for j in range(8)] +
                       [('s_not_b64 exec, exec', None)] + [('v_cvt_pk_bf16_f32 v%d, v%d, v%d' % (vmB + j, acc(1) + 2 * j, acc(1) + 2 * j + 1), None) for j in range(8)] +
                       [('s_mov_b64 exec, -1', None)]]
            for vm, hb in ((vmA, 0), (vmB, 1)):
                for g in range(2):
                    vq.append(MFMA % (vr(kvres(hb), 16), vr(self.pk + 4 * g, 4), vr(vm + 4 * g, 4), '0' if g == 0 else vr(kvres(hb), 16)))
            vq += [rel(acc(1))]
            marks.append(len(vq))
            marks.append(len(vq))
            qpk = self.pk2
            vq += [s2_done] + self.phi_ops(acc(2), qpk) + [rel(acc(2))]
            marks.append(len(vq))
            late = [lambda: flag_store(0, ['st0'])]
            vq += [rel(self.et)]
        else:
            vq = []
            if gate:
                x, e = acc(2), self.vGv
                for w in (8, 4, 2):
                    vq += ['v_pk_add_f32 %s, %s, %s' % (vr(x + k, 2), vr(x + k, 2), vr(x + w + k, 2)) for k in range(0, w, 2)]
                vq += ['v_add_f32 v%d, v%d, v%d' % (x, x, x + 1),
                       'v_mov_b32 v%d, v%d' % (x + 1, x),
                       'v_permlane32_swap_b32 v%d, v%d' % (x, x + 1),
                       'v_add_f32 v%d, v%d, v%d' % (x, x, x + 1),
                       'v_mul_f32 v%d, 0x%x, v%d' % (e, f2u(LOG2E), x),
                       'v_min_f32 v%d, 0x%x, v%d' % (e, f2u(86.0), e),
                       'v_exp_f32 v%d, v%d' % (e, e),
                       [('buffer_store_dword v%d, v%d, %s, 0 offen' % (e, self.vMisc + 1, srd(S_WS)), 'stG')],
                       rel(acc(2))]
                gmark = len(vq)
            for p in range(nt):
                pkb = self.pk2 if p == 1 else self.pk
                if p == 2:
                    vq.append(s2_done)
                vq += self.with_stores(self.gelu_ops(acc(p), pkb, [self.et, self.et2]), pkb, 2 * p + ch, 'st%d' % p)
                vq += [lambda p=p: self.stamp(a, 'st%d' % p), rel(acc(p))]
                marks.append(len(vq))
            late = [lambda p=p: flag_store(p, ['st%d' % p]) for p in range(nt)]
            if nt < 3:
                marks.append(len(vq))
            vq += [rel(self.et), rel(self.et2)]
        def ka_done():
            assert not isA or 'ka' in did
        vq += [ka_done, rel(self.vXr), lambda: self.stamp(a, 'epi')]
        est = dict(i=0, nf=0)

        def epi_to(j, pace=0):
            k = 0
            while est['i'] < min(j, len(vq)):
                emit(vq[est['i']])
                est['i'] += 1
                k += 1
                if pace and k % pace == 0:
                    u_issue()

        def s2buf(n):
            return (self.fr + 28 + 4 * (n % 4)) if xr else self.fr + 8 * (n % 6)

        def s2_read(k):
            while k > 0 and s2['rd'] < 32:
                n = s2['rd']
                assert n - s2['mm'] < (4 if xr else 5)
                for tx in ([] if xr else [xread(s2buf(n), n)]) + wread(s2buf(n) + 4, n, 2):
                    a.ds(tx, tag='fr')
                s2['rd'] += 1
                k -= 1

        def s2_steps(cnt, k):
            lim = marks[1]
            for _ in range(cnt):
                if s2['mm'] < 32:
                    n = s2['mm']
                    s2_read(n + o.s2pf + 1 - s2['rd'])
                    d = vr(acc(2), 16)
                    a(MFMA % (d, vr(s2buf(n) + 4, 4), vr(xbuf(n) if xr else s2buf(n), 4), d))
                    s2['mm'] += 1
                    if xr and s2['mm'] == 32:
                        blocks.extend([self.kvres, self.kvres + 16])
                    fill()
                epi_to(min(est['i'] + k, lim))

        def acc2(t, rt):
            return self.acc2 + 16 * (rt * 2 + t)

        ringc = [0]

        def u_read_next():
            assert s2['mm'] == 32 or not xr
            if ust['nr'] < 2 * NU:
                u_read(ring0 + 8 * (ringc[0] % nring))
                ringc[0] += 1

        ablk = {}

        def act_load(u, aa=None, cond=None):
            if u not in order:
                return
            sb, idx = (sAQ if u[0] == 'Q' else sAF), int(u[1])
            if aa is None:
                aa = a
                ablk[u] = blocks.pop(0)
            if idx:
                aa('s_add_u32 s%d, s%d, %d' % (sT1, sb, idx * UNIT))
                sb = sT1
            if u == 'F5':
                aa('s_add_u32 s%d, s%d, s%d' % (sT1, sT1, sO5))
            if cond is not None:
                aa('s_or_b32 s%d, s%d, s%d' % (sT1, sb, cond))
                sb = sT1
            for g in range(2):
                for rt in range(2):
                    if 'actl' not in self.no:
                        aa('buffer_load_dwordx4 %s, v%d, %s, s%d offen offset:%d sc1' % (
                            vr(ablk[u] + 8 * g + 4 * rt, 4), self.vActLd + rt, srd(S_WS), sb, 1024 * g), tag=('act', u))

        def ukey(u):
            return u[1] if u[0] == 'F' else 'xy'[int(u[1])]
        cond = {}
        cfree = [sD0, sD1, sD2, sWQ]

        def cond_load(u):
            if u not in order:
                return
            x = ukey(u)
            if lines_ready([x]):
                a.force_wait('lgkmcnt(0)')
            a(key_cmp(x)[0])
            cond[u] = cfree.pop(0)
            a('s_cselect_b32 s%d, 0, 0x%x' % (cond[u], OOB))
            act_load(u, cond=cond[u])

        def cond_fix(u):
            if u not in cond:
                return
            x = ukey(u)
            assert lstate[line_of(x)]
            ok, rt = self.newlabel('cok'), self.newlabel('cfix')
            a('s_cmp_eq_u32 s%d, 0' % cond[u])
            cfree.append(cond.pop(u))
            a('s_cbranch_scc0 ' + rt + 'i')
            a.label(ok)
            s = a.fork()
            s.lines = []
            s.vm = []
            s.label(rt + 'i')
            s('s_mov_b32 s%d, %d' % (sSPIN, o.spin))
            if o.diag:
                a.nchk = getattr(a, 'nchk', 0) + 1
                s('s_add_u32 s%d, s%d, %d' % (sRC, sRC, 1 << (3 * (a.nchk - 1))))
            s('s_branch ' + rt + 'w')
            s.label(rt)
            s('s_sub_u32 s%d, s%d, 1' % (sSPIN, sSPIN))
            s('s_cbranch_scc1 ' + rt + 'g')
            if o.sleep:
                s('s_sleep %d' % o.sleep)
            line_load(s, line_of(x))
            s.label(rt + 'w')
            s.force_wait('lgkmcnt(0)')
            s(key_cmp(x)[0])
            s('s_cbranch_scc0 ' + rt)
            s.label(rt + 'g')
            act_load(u, aa=s)
            s('s_branch ' + ok)
            self.ool += s.lines
            dst = set(('v', r) for r in range(ablk[u], ablk[u] + 16))
            if a.vm:
                a.vm[-1]['dst'] = a.vm[-1]['dst'] | dst
            else:
                a.vm.append(dict(dst=dst, tag=('act', u)))
            self.stamp(a, 'P' + ('q' if x == 'y' else x))

        def g_load():
            a('buffer_load_dword v%d, v%d, %s, 0 offen sc1' % (self.vG, self.vGa, srd(S_WS)), tag='g')

        kvb = []

        def kv_load():
            kvb.append(blocks.pop(0))
            for h in range(2):
                for q in range(2):
                    a('buffer_load_dwordx4 %s, v%d, %s, 0 offen offset:%d sc1' % (vr(kvb[0] + 8 * h + 4 * q, 4), self.vKV, srd(S_WS), h * HSTR + q * QSTR), tag='kv')

        def o_make():
            assert est['i'] == len(vq)
            nd = [blocks.pop(0), blocks.pop(0)]
            for h in range(2):
                b = kvb[0] + 8 * h
                for k in range(4):
                    a('v_cvt_pk_bf16_f32 v%d, v%d, v%d' % (b + k, b + 2 * k, b + 2 * k + 1))
            for h in range(2):
                a(MFMA % (vr(nd[h], 16), vr(kvb[0] + 8 * h, 4), vr(qpk + 4 * h, 4), '0'))
            for h in range(2):
                b = nd[h]
                den = b + 8
                a('v_add_f32 v%d, 0x%x, v%d' % (den, f2u(1e-6), den))
                a('v_rcp_f32 v%d, v%d' % (den, den))
                a('v_mul_f32 v%d, v%d, v%d' % (den, den, self.vGv))
                a('v_mov_b32 v%d, v%d' % (den + 1, den))
                for k in range(0, 8, 2):
                    a('v_pk_mul_f32 %s, %s, %s' % (vr(b + k, 2), vr(b + k, 2), vr(den, 2)))
                ob = self.et2 + 4 * h
                for k in range(4):
                    a('v_cvt_pk_bf16_f32 v%d, v%d, v%d' % (ob + k, b + 2 * k, b + 2 * k + 1))
                emit(self.st_op(ob, ch, h, 'st0'))
            blocks.extend(nd + kvb + [self.et2])
            self.stamp(a, 'st0')

        def fill():
            u_issue()

        def f_unit(u, ek=0):
            if u not in order:
                return
            cond_fix(u)
            m = order.index(u)
            assert m == ust.get('cons', 0) and s2['mm'] == 32 and (not isA or 'ka' in did)
            ust['cons'] = m + 1
            for g in range(2):
                h = 2 * m + g
                while ust['nr'] <= min(h + o.upf, 2 * NU - 1) and 2 * ust['nr'] + 1 < ust['ni'] or ust['nr'] <= h:
                    while 2 * ust['nr'] + 1 >= ust['ni']:
                        assert u_issue()
                    u_read_next()
                for rt in range(2):
                    for t in range(2):
                        dd = vr(acc2(t, rt), 16)
                        a(MFMA % (dd, vr(ufr[h] + 4 * t, 4), vr(ablk[u] + 8 * g + 4 * rt, 4), '0' if h == 0 else dd))
                        fill()
                        epi_to(est['i'] + ek)
            blocks.append(ablk[u])

        did = set()
        V = 'A' if isA else 'F'
        for tok in (getattr(o, 'head' + V + role) + ' ' + (getattr(o, 'script' + V + role) or getattr(o, 'script' + V))).split():
            if tok == 'f':
                if late:
                    assert ('o' in did) if isA else est['i'] >= marks[est['nf']]
                    est['nf'] += 1
                    late.pop(0)()
            elif tok == 'fG':
                if gate:
                    assert est['i'] >= gmark
                    flag_store(2, ['stG'])
                did.add(tok)
            elif tok == 'B8':
                a.wait_both([('w2',)], ['fr', 'kvw'])
                a('s_barrier')
                free_pieces(early_pieces(7) + (late_pieces(7) if cs > 7 else []))
                a.lgmax = min(a.lgmax, 13)
                if 'kw' in did:
                    did.add('kwb')
                did.add(tok)
                self.stamp(a, tok)
            elif tok == 'B9k':
                assert s2['rd'] == 32 and 'B8' in did and 'ka' in did
                kv_count(True)
                for c in range(cs, 8):
                    free_pieces(late_pieces(c))
                did.update(['B9', 'kc'])
            elif tok == 'Gk':
                a.force_wait('lgkmcnt(0)')
                for l in lstate:
                    lstate[l] = 2 if lstate[l] else 0
                if not isb:
                    skip = self.newlabel('nopoll')
                    a('s_cmp_lg_u32 s%d, 0' % sWV)
                    a('s_cbranch_scc1 ' + skip)
                    st = self.o.stamps
                    self.o.stamps = ''
                    a.noflush = True
                    sv = dict(lstate)
                    gate_on('k')
                    lstate.update(sv)
                    lstate['F'] = 0
                    a.noflush = False
                    self.o.stamps = st
                    a.label(skip)
                a('s_barrier')
                self.stamp(a, 'Pk')
            elif tok == 'Bk':
                assert 'kw' in did and 'B8' in did
                a.wait_lg('kvw')
                a('s_barrier')
                did.add('kwb')
                self.stamp(a, tok)
            elif tok == 'B9':
                assert s2['rd'] == 32 and 'B8' in did
                if cs < 8:
                    a.wait_lg('fr', 'kvw')
                    a('s_barrier')
                    if 'kw' in did:
                        did.add('kwb')
                for c in range(cs, 8):
                    free_pieces(late_pieces(c))
                did.add(tok)
                self.stamp(a, tok)
            elif tok[0] == 'e':
                tk, pace = (tok.split('/') + ['0'])[:2]
                epi_to(len(vq) if tk == 'e' else est['i'] + int(tk[2:]) if tk[1] == '+' else marks[int(tk[1:])], int(pace))
            elif tok[0] == 'm':
                assert 'B8' in did or not defer
                cnt, k = tok[1:].split(':')
                s2_steps(int(cnt), int(k))
            elif tok[0] == 'R':
                assert 'B8' in did or not defer
                s2_read(int(tok[1:]))
            elif tok in ('kw', 'kr', 'ka', 'kc'):
                assert est['i'] >= marks[0] and (tok == 'kw' or 'kwb' in did)
                {'kw': kv_write, 'kr': kv_reduce, 'ka': kv_atomics, 'kc': kv_count}[tok]()
                did.add(tok)
            elif tok == 'o':
                o_make()
                did.add(tok)
            elif tok[0] == 'p':
                assert 'B8' in did
                poll_issue(tok[1:])
            elif tok[0] == 'u':
                for _ in range(int(tok[1:] or 1)):
                    u_issue()
            elif tok == 'U':
                while u_issue():
                    pass
            elif tok[0] == 's':
                a('s_setprio %s' % tok[1:])
            elif tok == 'r':
                if 2 * ust['nr'] + 1 < ust['ni'] and ust['nr'] < 2 * ust.get('cons', 0) + nring:
                    u_read_next()
            elif tok[0] == 'g':
                gate_on(tok[1:])
            elif tok[0] == 'l':
                k = tok[1:]
                if k == 'g':
                    g_load()
                elif k == 'k':
                    kv_load()
                elif k == 'G':
                    a('buffer_load_dword v%d, v%d, %s, 0 offen sc1' % (self.vGv, self.vMisc + 1, srd(S_WS)), tag='g')
                else:
                    act_load(k)
            elif tok[0] == 'D':
                a('s_lshl_b32 s%d, s2, 3' % sT0)
                a('s_add_u32 s%d, s%d, s%d' % (sT0, sT0, sWV))
                a('s_lshl_b32 s%d, s%d, 7' % (sT0, sT0))
                if tok[1] == '1':
                    a._put('s_buffer_load_dword s%d, %s, s%d offset:0x%x glc' % (sSPIN, srd(S_WS), sT0, 0x740000 - 0x700000 + 0x80000))
                elif tok[1] == '2':
                    a._put('s_buffer_load_dword s%d, %s, s%d glc' % (sSPIN, srd(S_U), sT0))
                elif tok[1] == '3':
                    a('s_add_u32 s%d, s%d, 0x%x' % (sT0, sT0, 0x880000))
                    a._put('s_buffer_load_dword s%d, %s, s%d glc' % (sSPIN, srd(S_WS), sT0))
                a.force_wait('lgkmcnt(0)')
                self.stamp(a, tok)
            elif tok[0] == 'c':
                cond_load(tok[1:])
            elif tok[0] == 'v':
                cond_fix(tok[1:])
            elif tok[0] == 't':
                self.stamp(a, tok)
            elif tok == 'w':
                a.wait_all(lg=False)
            elif tok[0] in 'FQ':
                tk, ek = (tok.split(':') + ['0'])[:2]
                f_unit(tk, int(ek))
                self.stamp(a, tk)
            else:
                raise ValueError(tok)
        assert est['i'] == len(vq) and not late and ust['nr'] == 2 * NU and 'B9' in did and (not isA or 'kc' in did) and (not gate or 'fG' in did)
        self.stamp(a, 'mm')
        if o.wb and not isb:
            L = self.newlabel('wb')
            a('s_cmp_lt_u32 s%d, %d' % (sIDX, o.wb))
            a('s_cselect_b32 s%d, s%d, 1' % (sT0, sWV))
            a('s_cmp_lg_u32 s%d, 0' % sT0)
            a('s_cbranch_scc1 ' + L)
            a._put('buffer_wbl2 sc1')
            a.label(L)
        rho = ch

        def kidx(n, hh):
            return max(2 * n + hh - 1, 0)
        a('v_add_u32 v%d, s%d, v%d' % (t2, sP, self.vL16))
        a('v_add_u32 v%d, 0x10000, v%d' % (t3, t2))
        a.wait_all(vm=False)
        for n in (1, 0, 2, 3):
            for hh in range(2):
                if n == 0 and hh == rho:
                    continue
                k = kidx(n, hh)
                for q in range(2):
                    a.ds('ds_write_b128 v%d, %s offset:%d' % (t3 if k >= 4 else t2, vr(self.acc2 + 16 * n + 8 * hh + 4 * q, 4), ((2 * k + q) & 7) * 8192), tag='red')
        a('s_lshl_b32 s%d, s%d, 10' % (sT0, sJ))
        a('v_add_u32 v%d, s%d, v%d' % (t2, sT0, self.vL16))
        for n in range(4):
            a('v_xor_b32 v%d, 0x%x, v%d' % (self.vUr + n, kidx(n, rho) * 16384 + n * 1024, t2))
        a('s_lshl_b32 s%d, s%d, 1' % (sT0, sRT))
        a('s_lshr_b32 s%d, s%d, 1' % (sT1, sJ))
        a('s_add_u32 s%d, s%d, s%d' % (sT0, sT0, sT1))
        a('s_lshl_b32 s%d, s%d, 15' % (sT0, sT0))
        a('s_lshl_b32 s%d, s%d, 7' % (sT1, sCT))
        a('s_add_u32 s%d, s%d, s%d' % (sT0, sT0, sT1))
        a('s_and_b32 s%d, s%d, 1' % (sT1, sJ))
        a('s_lshl_b32 s%d, s%d, 6' % (sT1, sT1))
        a('s_add_u32 s%d, s%d, s%d' % (sT0, sT0, sT1))
        a('v_lshrrev_b32 v%d, 5, v1' % t3)
        a('v_lshlrev_b32 v%d, 4, v%d' % (t3, t3))
        a('v_and_b32 v%d, 31, v1' % t1)
        a('v_lshl_add_u32 v%d, v%d, 10, v%d' % (t3, t1, t3))
        a('v_add_f32 v%d, 1.0, v%d' % (self.vG, self.vG))
        a('v_rcp_f32 v%d, v%d' % (self.vG, self.vG))
        own = self.acc2 + 8 * rho
        ob = 164
        for k in range(4):
            a('v_lshlrev_b32 v%d, 16, v%d' % (ob + 2 * k, self.vB2 + k))
            a('v_and_b32 v%d, 0xffff0000, v%d' % (ob + 2 * k + 1, self.vB2 + k))
        for k in range(0, 8, 2):
            a('v_pk_add_f32 %s, %s, %s' % (vr(own + k, 2), vr(own + k, 2), vr(ob + k, 2)))
        a('v_mov_b32 v%d, v%d' % (self.vG + 1, self.vG))
        a.wait_lg('red')
        self.stamp(a, 'wr')
        a('s_barrier')
        self.stamp(a, 'bar')
        rb_ = 100
        srcs = [(rs, n) for rs in range(2) for n in range(4) if not (rs == rho and n == 0)]
        for q in range(2):
            for i, (rs, n) in enumerate(srcs):
                a.ds('ds_read_b128 %s, v%d offset:%d' % (vr(rb_ + 8 * i + 4 * q, 4), self.vUr + n, rs * 4096 + q * 8192))
        for q in range(2):
            for i in range(7):
                for k in range(4 * q, 4 * q + 4, 2):
                    a('v_pk_add_f32 %s, %s, %s' % (vr(own + k, 2), vr(own + k, 2), vr(rb_ + 8 * i + k, 2)))
            for k in range(4 * q, 4 * q + 4, 2):
                a('v_pk_mul_f32 %s, %s, %s' % (vr(own + k, 2), vr(own + k, 2), vr(self.vG, 2)))
            for k in range(2 * q, 2 * q + 2):
                a('v_cvt_pk_bf16_f32 v%d, v%d, v%d' % (ob + k, own + 2 * k, own + 2 * k + 1))
        a('v_permlane32_swap_b32 v%d, v%d' % (ob, ob + 2))
        a('v_permlane32_swap_b32 v%d, v%d' % (ob + 1, ob + 3))
        a('buffer_store_dwordx4 %s, v%d, %s, s%d offen offset:%d%s' % (vr(ob, 4), t3, srd(S_OUT), sT0, 32 * rho, o.outpol))
        if o.diag:
            self.stamp(a, 'end')
            a._put('s_memrealtime s[86:87]')
            a.force_wait('lgkmcnt(0)')
            names = o.stamps.split(',')
            self.flush(a)
            a('v_writelane_b32 v%d, s100, 25' % self.vStamp)
            a('v_writelane_b32 v%d, s%d, 26' % (self.vStamp, sRC))
            a('v_writelane_b32 v%d, s86, 31' % self.vStamp)
            a('v_writelane_b32 v%d, s98, 29' % self.vStamp)
            a('s_mov_b32 s%d, %d' % (sT0, 'FGA'.index(var) * 2 + ch))
            a('v_writelane_b32 v%d, s%d, 30' % (self.vStamp, sT0))
            a('s_getreg_b32 s%d, hwreg(HW_REG_XCC_ID)' % sT0)
            a('v_writelane_b32 v%d, s%d, 28' % (self.vStamp, sT0))
            a('s_lshl_b32 s%d, s2, 3' % sT0)
            a('s_add_u32 s%d, s%d, s%d' % (sT0, sT0, sWV))
            a('s_lshl_b32 s%d, s%d, 7' % (sT0, sT0))
            a('s_add_u32 s%d, s%d, 0x%x' % (sT0, sT0, STAMP))
            a('v_lshlrev_b32 v%d, 2, v1' % t2)
            a('v_cmp_gt_u32 vcc, 32, v1')
            a('v_mov_b32 v%d, 0x40000000' % t3)
            a('v_cndmask_b32 v%d, v%d, v%d, vcc' % (t2, t3, t2))
            a('buffer_store_dword v%d, v%d, %s, s%d offen' % (self.vStamp, t2, srd(S_WS), sT0))
            self.stampnames = names
        a('s_endpgm')
        for l in self.ool:
            a.raw(l)
        self.ool = []
        if o.verbose:
            print(var + role, 'insts', a.ninst, 'nop states', a.nnop, a.stats)

    def build(self):
        self.prologue()
        for pth in ['Fa', 'Aa', 'Ab', 'Fb', 'Gb']:
            self.path(pth[0], pth[1])
        self.a.label('L_end')
        self.a.raw('    s_endpgm')
        ref = open('cdna_kernels/%s.s.ref' % NAME).read().split('\n')
        head = [l for l in ref if l.startswith(';') and '@launch' not in l]
        out = '\n'.join(head) + '\n; generated by tools/gen4.py\n'
        out += '; @launch grid=(256,1,1) block=(512,1,1) lds=163840\n'
        out += '.amdgcn_target "amdgcn-amd-amdhsa--gfx950"\n.text\n.globl %s_kernel\n.p2align 8\n.type %s_kernel,@function\n' % (NAME, NAME)
        out += self.a.text()
        out += '''.section .rodata,"a"
.p2align 6
.amdhsa_kernel %s_kernel
  .amdhsa_next_free_vgpr 256
  .amdhsa_next_free_sgpr 102
  .amdhsa_accum_offset 256
  .amdhsa_group_segment_fixed_size 0
  .amdhsa_kernarg_size 96
  .amdhsa_user_sgpr_count 2
  .amdhsa_user_sgpr_kernarg_segment_ptr 1
  .amdhsa_system_sgpr_workgroup_id_x 1
.end_amdhsa_kernel
''' % NAME
        return out


def parse(argv=None):
    ap = argparse.ArgumentParser()
    ap.add_argument('-o', default='cdna_kernels/%s.s' % NAME)
    ap.add_argument('--diag', action='store_true')
    ap.add_argument('--verbose', action='store_true')
    ap.add_argument('--pre', type=int, default=2)
    ap.add_argument('--lead', type=int, default=3)
    ap.add_argument('--rate', type=float, default=1.5)
    ap.add_argument('--urate', type=float, default=1.25)
    ap.add_argument('--ustart', type=int, default=0)
    ap.add_argument('--csA', type=int, default=4)
    ap.add_argument('--csF', type=int, default=8)
    ap.add_argument('--dlA', type=int, default=1)
    ap.add_argument('--dlF', type=int, default=0)
    ap.add_argument('--sdpa', type=int, default=0)
    ap.add_argument('--sdpb', type=int, default=0)
    ap.add_argument('--sd0a', type=int, default=30)
    ap.add_argument('--sd0b', type=int, default=0)
    ap.add_argument('--sd1', type=int, default=20)
    ap.add_argument('--sdr', type=int, default=2)
    ap.add_argument('--bias_n', type=int, default=17)
    ap.add_argument('--ep_issue', type=int, default=14)
    ap.add_argument('--ep_check', type=int, default=17)
    ap.add_argument('--s2pf', type=int, default=2)
    ap.add_argument('--upf', type=int, default=2)
    ap.add_argument('--order', default='F0,F2,F4,F1,F3,F5,Q0,Q1')
    ap.add_argument('--scriptF', default='g02 f lF0 lF2 g4 lF4 p1 F0 g1 lF1 p3 F2 g3 lF3 p5 F4 g5 lF5 F1 pq F3 gq lQ0 lQ1 lg F5 Q0 Q1')
    ap.add_argument('--scriptA', default='g024 f lF0 lF2 lF4 p1 F0 g1 lF1 p3 F2 g3 lF3 p5 F4 g5 lF5 F1 pq F3 gq lQ0 lQ1 lg F5 Q0 Q1')
    for v in ('Fa', 'Fb', 'Aa', 'Ab'):
        ap.add_argument('--script' + v, default='')
    ap.add_argument('--headFa', default='e+30 B8 B9 e0/16 e+50/16 f r r r e1/16 e+50/16 f e/16')
    ap.add_argument('--headFb', default='e+18 B8 B9 U e+40 fG r r r e0/12 e+50/12 f e1/12 e+50 f e')
    ap.add_argument('--headAa', default='e+30 B8 m16:3 e0 kw B9 kr u2 ka e/8 kc u6 gkG lk lG u4 o')
    ap.add_argument('--headAb', default='e+30 B8 m16:3 e0 kw B9 kr u2 ka e/8 kc u6 gkG lk lG u4 o')
    ap.add_argument('--outpol', default='')
    ap.add_argument('--spin', type=int, default=20000)
    ap.add_argument('--sleep', type=int, default=1)
    ap.add_argument('--stamps', default='mm1,B8,B9,epi,kc,Pk,st0,fa0,P0,P4,P1,P3,P5,Pq,mm,end')
    ap.add_argument('--no', default='')
    ap.add_argument('--loc', type=int, default=0)
    ap.add_argument('--spol', default=' sc1')
    ap.add_argument('--dual', type=int, default=0)
    ap.add_argument('--wb', type=int, default=0)
    ap.add_argument('--soft', default='')
    ap.add_argument('--ksleep', type=int, default=0)
    ap.add_argument('--dotp', type=int, default=0)
    ap.add_argument('--swap', type=int, default=0)
    ap.add_argument('--xr', type=int, default=0)
    ap.add_argument('--ratesA', default='')
    ap.add_argument('--ratesF', default='')
    ap.add_argument('--mf16', type=int, default=0)
    ap.add_argument('--mix', type=int, default=0)
    ap.add_argument('--rot1', type=int, default=0)
    ap.add_argument('--rot1m', type=int, default=1)
    ap.add_argument('--tn', type=int, default=-1)
    ap.add_argument('--tstrip', type=int, default=3)
    return ap.parse_args(argv)


if __name__ == '__main__':
    o = parse()
    g = Gen(o)
    txt = g.build()
    open(o.o, 'w').write(txt)
    if o.diag:
        print('stamps:', g.stampnames)
        open(o.o[:-2] + '.stamps', 'w').write(' '.join(g.stampnames))
    print('wrote', o.o, len(txt), 'bytes')
```
